```python
import torch

def _softmax(x, axis=-1):
    return torch.softmax(x, dim=axis)
def _gelu(x):
    return torch.nn.functional.gelu(x, approximate="tanh")
def _silu(x):
    return torch.nn.functional.silu(x)
def _sigmoid(x):
    return torch.sigmoid(x)
def _layernorm(x, axis=-1, eps=1e-5):
    m = x.mean(dim=axis, keepdim=True)
    v = x.var(dim=axis, keepdim=True, unbiased=False)
    return (x - m) / torch.sqrt(v + eps)
def _scatter_add(tgt, idx, src, axis=0):
    return tgt.clone().index_add_(axis, idx, src)
def _segment_sum(src, seg, n):
    out = torch.zeros((n,) + src.shape[1:], dtype=src.dtype)
    return out.index_add_(0, seg, src)
def _pad(x, pw):
    flat = tuple(v for pair in reversed(pw) for v in pair)
    return torch.nn.functional.pad(x, flat)

kernel_name = 'sequential_preLN__linear_kernel_hedgehog__mixer_s_mlp__prompt'

def setup_inputs():

    _w = (lambda a: (lambda t: t.to(torch.bfloat16) if t.is_floating_point() else t)(torch.as_tensor(a)))
    def _A_setup():
        B, S, D, H = 1, 2048, 512, 32
        Dh = D // H
        return {
            "x": _w((lambda *s: torch.randn(*s, dtype=torch.bfloat16) * 0.05)(B, S, D)),
            "wqkv": _w((lambda *s: torch.randn(*s, dtype=torch.bfloat16) * 0.2)(D, 3 * D)),
            "w_phi": _w((lambda *s: torch.randn(*s, dtype=torch.bfloat16) * 0.2)(H, Dh, Dh) * (Dh ** -0.5)),
            "wo": _w((lambda *s: torch.randn(*s, dtype=torch.bfloat16) * 0.05)(D, D)),
        }
    _A_in = _A_setup()

    def _B_setup():
        B, S, D, F = 1, 2048, 512, 1376
        return {
            "x":  _w((lambda *s: torch.randn(*s, dtype=torch.bfloat16) * 0.05)(B, S, D)),
            "w1": _w((lambda *s: torch.randn(*s, dtype=torch.bfloat16) * 3.2)(D, D) * (D ** -0.5)),
            "w2": _w((lambda *s: torch.randn(*s, dtype=torch.bfloat16) * 3.2)(D, D) * (D ** -0.5)),
            "w3": _w((lambda *s: torch.randn(*s, dtype=torch.bfloat16) * 3.2)(D, F) * (D ** -0.5)),
            "w4": _w((lambda *s: torch.randn(*s, dtype=torch.bfloat16) * 3.2)(F, D) * (F ** -0.5)),
        }
    _B_in = _B_setup()

    return {
        "A_x": _A_in["x"],
        "A_wqkv": _A_in["wqkv"],
        "A_w_phi": _A_in["w_phi"],
        "A_wo": _A_in["wo"],
        "B_x": _B_in["x"],
        "B_w1": _B_in["w1"],
        "B_w2": _B_in["w2"],
        "B_w3": _B_in["w3"],
        "B_w4": _B_in["w4"],
    }

def reference(A_x, A_wqkv, A_w_phi, A_wo, B_x, B_w1, B_w2, B_w3, B_w4):
    def _A_ref(x, wqkv, w_phi, wo):
        B, S, D = x.shape
        H = 32; Dh = D // H
        qkv = (lambda x, *d: x.permute(*d))((x @ wqkv).reshape(B, S, 3, H, Dh), 2, 0, 3, 1, 4)
        q, k, v = qkv[0], qkv[1], qkv[2]
        pq = torch.einsum("bhsd,hdf->bhsf", q, w_phi)
        pk = torch.einsum("bhsd,hdf->bhsf", k, w_phi)
        phi_q = torch.concatenate([_softmax(pq, axis=-1), _softmax(-pq, axis=-1)], axis=-1)
        phi_k = torch.concatenate([_softmax(pk, axis=-1), _softmax(-pk, axis=-1)], axis=-1)
        kv = torch.einsum("bhsf,bhsd->bhfd", phi_k, v)
        z  = torch.einsum("bhsf->bhf", phi_k)
        num = torch.einsum("bhqf,bhfd->bhqd", phi_q, kv)
        den = torch.einsum("bhqf,bhf->bhq", phi_q, z)[..., None] + 1e-6
        o = num / den
        return (lambda x, *d: x.permute(*d))(o, 0, 2, 1, 3).reshape(B, S, D) @ wo

    def _B_ref(x, w1, w2, w3, w4):
        B, S, D = x.shape
        h = _gelu(_layernorm(x, axis=-1) @ w1)
        c = D // 4
        g0 = _pad(h[:, :, 0*c:1*c], ((0, 0), (1, 0), (0, 0)))[:, :S, :]
        g1 = _pad(h[:, :, 1*c:2*c], ((0, 0), (0, 1), (0, 0)))[:, 1:, :]
        g2 = _pad(h[:, :, 2*c:3*c], ((0, 0), (2, 0), (0, 0)))[:, :S, :]
        g3 = _pad(h[:, :, 3*c:   ], ((0, 0), (0, 2), (0, 0)))[:, 2:, :]
        hs = torch.concatenate([g0, g1, g2, g3], axis=-1) @ w2
        x1 = x + hs
        h2 = _gelu(_layernorm(x1, axis=-1) @ w3) @ w4
        return x1 + h2

    x = A_x
    h = x + _A_ref(_layernorm(x, axis=-1), A_wqkv, A_w_phi, A_wo)
    h2 = h + _B_ref(_layernorm(h, axis=-1), B_w1, B_w2, B_w3, B_w4)
    return h2
```

```python
import re

TRANS = ('v_exp_f32','v_log_f32','v_rcp_f32','v_rsq_f32','v_sqrt_f32','v_sin_f32','v_cos_f32')

class Ins:
    __slots__ = ('text','kind','tag','nocount','op','wr','rd','cls','passes','srcC','comment')
    def __init__(self, text, kind='i', tag=None, nocount=False):
        self.text = text; self.kind = kind; self.tag = tag; self.nocount = nocount

REG_RE = re.compile(r'\b([vas])(?:(\d+)|\[(\d+):(\d+)\])')
def regs_of(tok):
    out = []
    for m in REG_RE.finditer(tok):
        t = m.group(1)
        if m.group(2) is not None: out.append((t, int(m.group(2))))
        else: out += [(t, i) for i in range(int(m.group(3)), int(m.group(4))+1)]
    if re.search(r'\bvcc\b', tok): out += [('s','vcc')]
    if re.search(r'\bexec\b', tok): out += [('s','exec')]
    if re.search(r'\bm0\b', tok): out += [('s','m0')]
    return out

def split_ops(s):
    ops = []; depth = 0; cur = ''
    for ch in s:
        if ch == '[': depth += 1
        if ch == ']': depth -= 1
        if ch == ',' and depth == 0: ops.append(cur.strip()); cur = ''
        else: cur += ch
    if cur.strip(): ops.append(cur.strip())
    return ops

def analyze(ins):
    t = ins.text.split(';')[0].strip()
    parts = t.split(None, 1)
    op = parts[0]; rest = parts[1] if len(parts) > 1 else ''
    ins.op = op; ins.wr = []; ins.rd = []; ins.cls = 'other'; ins.passes = 0; ins.srcC = []
    ops = split_ops(rest)
    if op.startswith('v_mfma'):
        ins.cls = 'mfma'
        ins.passes = 8 if '32x32' in op else 4
        ins.wr = regs_of(ops[0]); ins.rd = regs_of(ops[1]) + regs_of(ops[2]) + regs_of(ops[3].split()[0])
        ins.srcC = regs_of(ops[3].split()[0])
    elif op.startswith('v_'):
        base = op.replace('_e32','').replace('_e64','').replace('_dpp','').replace('_sdwa','')
        ins.cls = 'valu'
        if base in TRANS: ins.cls = 'trans'
        mods = ops[-1] if ops else ''
        if 'row_' in t or 'quad_perm' in t or '_dpp' in op or 'wave_' in t: ins.cls = 'dpp'
        if base.startswith('v_permlane'):
            ins.cls = 'permlane'; ins.wr = regs_of(ops[0]) + regs_of(ops[1]); ins.rd = list(ins.wr)
        elif base.startswith('v_cmp'):
            ins.wr = regs_of(ops[0]); ins.rd = sum((regs_of(o.split()[0]) for o in ops[1:]), [])
            if base.startswith('v_cmpx'): ins.wr += [('s','exec')]
        elif base in ('v_readfirstlane_b32','v_readlane_b32'):
            ins.cls = 'readlane'; ins.wr = regs_of(ops[0]); ins.rd = sum((regs_of(o.split()[0]) for o in ops[1:]), [])
        elif base == 'v_writelane_b32':
            ins.cls = 'writelane'; ins.wr = regs_of(ops[0]); ins.rd = sum((regs_of(o.split()[0]) for o in ops[1:]), []) + ins.wr
        elif base in ('v_add_co_u32','v_sub_co_u32','v_addc_co_u32','v_subb_co_u32'):
            ins.wr = regs_of(ops[0]) + regs_of(ops[1]); ins.rd = sum((regs_of(o.split()[0]) for o in ops[2:]), [])
        else:
            ins.wr = regs_of(ops[0]); ins.rd = sum((regs_of(o.split()[0]) for o in ops[1:]), [])
            if base in ('v_fmac_f32','v_dot2c_f32_bf16','v_pk_fmac_f16'): ins.rd += ins.wr
            if base == 'v_cndmask_b32' and len(ops) == 3: ins.rd += [('s','vcc')]
    elif op.startswith('buffer_') or op.startswith('global_'):
        ins.cls = 'vmem'
        islds = re.search(r'\blds\b', t) is not None
        if 'load' in op and not islds:
            ins.wr = regs_of(ops[0]); ins.rd = sum((regs_of(o.split()[0]) for o in ops[1:]), [])
        else:
            ins.rd = sum((regs_of(o.split()[0]) for o in ops), [])
            if islds: ins.rd += [('s','m0')]
            if 'store' in op: ins.cls = 'vstore'
    elif op.startswith('ds_'):
        ins.cls = 'ds'
        if op.startswith('ds_read') or 'permute' in op or 'swizzle' in op:
            ins.wr = regs_of(ops[0]); ins.rd = sum((regs_of(o.split()[0]) for o in ops[1:]), [])
        else:
            ins.rd = sum((regs_of(o.split()[0]) for o in ops), [])
    elif op.startswith('s_'):
        ins.cls = 'salu'
        if op in ('s_waitcnt','s_nop','s_barrier','s_branch','s_endpgm','s_sleep','s_setprio') or op.startswith('s_cbranch'):
            pass
        elif op.startswith('s_cmp') or op.startswith('s_bitcmp'):
            ins.rd = sum((regs_of(o.split()[0]) for o in ops), [])
        elif op in ('s_setpc_b64',):
            ins.rd = regs_of(ops[0])
        else:
            ins.wr = regs_of(ops[0]); ins.rd = sum((regs_of(o.split()[0]) for o in ops[1:]), [])
            if 'saveexec' in op: ins.wr += [('s','exec')]; ins.rd += [('s','exec')]
    return ins

def nstates(ins):
    if ins.op == 's_nop': return int(ins.text.split()[1].split(';')[0]) + 1
    return 1

def need(p, c):
    n = 0
    pw = set(p.wr); cr = set(c.rd); cw = set(c.wr)
    isvalu = lambda i: i.cls in ('valu','trans','dpp','permlane','readlane','writelane')
    vw = set(r for r in pw if r[0] in 'va')
    sw = set(r for r in pw if r[0] == 's')
    if p.cls == 'mfma':
        D = vw
        if c.cls == 'mfma':
            C = set(c.srcC); AB = cr - C if False else set(c.rd[:len(c.rd)-len(c.srcC)])
            if AB & D: n = max(n, {4:8, 8:12}[p.passes])
            if C & D:
                if C == D and c.passes == p.passes: pass
                else: n = max(n, {4:6, 8:10}[p.passes])
            if (cw & D) and not (C & D): n = max(n, {4:8, 8:12}[p.passes])
        elif isvalu(c) or c.cls in ('vmem','vstore','ds'):
            if (cr | cw) & D: n = max(n, {4:8, 8:12}[p.passes])
        if isvalu(c) and (cw & set(p.srcC)): n = max(n, {4:3, 8:7}[p.passes])
    if isvalu(p):
        if c.cls == 'mfma' and (cr & vw): n = max(n, 2)
        if c.cls in ('dpp',) and (cr & vw): n = max(n, 2)
        if c.cls == 'permlane' and (cr & vw): n = max(n, 2)
        if c.cls == 'readlane' and (cr & vw): n = max(n, 1)
        if p.cls == 'trans' and isvalu(c) and c.cls != 'trans' and (cr & vw): n = max(n, 1)
        if p.cls == 'trans' and c.cls == 'trans' and (cr & vw): n = max(n, 1)
        if sw:
            if isvalu(c) and (cr & sw): n = max(n, 2)
            if c.cls in ('readlane','writelane') and (cr & sw): n = max(n, 4)
            if c.cls in ('vmem','vstore') and (cr & sw): n = max(n, 5)
            if ('s','exec') in sw and (isvalu(c) or c.cls == 'mfma'): n = max(n, 5)
            if c.op.startswith('s_cbranch_vcc') and ('s','vcc') in sw: n = max(n, 0)
            if c.cls == 'salu' and (cr & sw): n = max(n, 1)
    if p.cls == 'vstore' and ('x4' in p.op or 'x3' in p.op):
        data = set(r for r in p.rd if r[0] in 'va')
        if (cw & data): n = max(n, 2)
    if p.cls == 'salu' and ('s','m0') in pw and c.cls in ('vmem',) and ('s','m0') in cr: n = max(n, 1)
    if p.cls == 'salu' and ('s','exec') in pw and c.cls == 'mfma': n = max(n, 4)
    return n

class Kern:
    def __init__(self):
        self.L = []
        self.lbl = 0
    def e(self, text, tag=None, nocount=False):
        for line in text.strip().split('\n'):
            line = line.strip()
            if not line or line.startswith(';'): continue
            if line.endswith(':'): self.L.append(Ins(line, 'label'))
            else: self.L.append(Ins(line, 'i', tag, nocount))
    def wait_vm(self, tag): self.L.append(Ins('', 'wvm', tag))
    def wait_lg(self, tag): self.L.append(Ins('', 'wlg', tag))
    def wait_vm_all(self): self.L.append(Ins('s_waitcnt vmcnt(0)', 'i'))
    def wait_lg_all(self): self.L.append(Ins('s_waitcnt lgkmcnt(0)', 'i'))
    def label(self, p='L'):
        self.lbl += 1; return f'{p}_{self.lbl}'
    def push(self): self.L.append(Ins('', 'push'))
    def pop(self): self.L.append(Ins('', 'pop'))
    def raw(self, text): self.L.append(Ins(text, 'raw'))
    def capture(self):
        prev = self.L; self.L = []; return prev
    def end_capture(self, prev):
        got = self.L; self.L = prev; return got
    def extend(self, lst): self.L += lst

    def finalize(self):
        out = []
        vmq = []; lgq = []
        done_vm = set(); done_lg = set()
        stack = []
        hist = []
        def flush_hist(n):
            pass
        def emit(ins):
            analyze(ins)
            reqn = 0; dist = 0
            for p in reversed(hist):
                nd = need(p, ins)
                if nd - dist > reqn: reqn = nd - dist
                dist += nstates(p)
                if dist > 20: break
            while reqn > 0:
                k = min(reqn, 16)
                nop = Ins(f's_nop {k-1}'); analyze(nop); out.append(nop); hist.append(nop); reqn -= k
            out.append(ins); hist.append(ins)
            if len(hist) > 40: del hist[:-30]
        def pad_worst():
                worst = 0; dist = 0
                for p in reversed(hist):
                    w = 0
                    if p.cls == 'mfma': w = {4:8, 8:12}[p.passes]
                    elif p.cls in ('valu','trans','dpp','permlane','readlane','writelane'):
                        w = 5 if any(r[0]=='s' for r in p.wr) else 2
                    elif p.cls == 'vstore': w = 2
                    elif p.cls == 'salu' and (('s','m0') in p.wr): w = 1
                    if w - dist > worst: worst = w - dist
                    dist += nstates(p)
                    if dist > 20: break
                while worst > 0:
                    k = min(worst, 16)
                    nop = Ins(f's_nop {k-1}'); analyze(nop); out.append(nop); hist.append(nop); worst -= k
        for ins in self.L:
            if ins.kind == 'raw':
                out.append(ins); continue
            if ins.kind == 'label':
                pad_worst()
                out.append(ins); del hist[:]
                continue
            if ins.kind == 'i' and (ins.text.startswith('s_branch') or ins.text.startswith('s_cbranch') or ins.text.startswith('s_swappc') or ins.text.startswith('s_setpc')):
                pad_worst()
            if ins.kind == 'push':
                stack.append((list(vmq), list(lgq), set(done_vm), set(done_lg))); continue
            if ins.kind == 'pop':
                vmq, lgq, done_vm, done_lg = stack.pop(); continue
            if ins.kind == 'wvm':
                if ins.tag in done_vm: continue
                assert ins.tag in vmq, f'wait_vm unknown tag {ins.tag}'
                idx = len(vmq) - 1 - vmq[::-1].index(ins.tag)
                n = len(vmq) - 1 - idx
                w = Ins(f's_waitcnt vmcnt({min(n,63)})'); emit(w)
                keep = min(n, 63)
                for t in vmq[:len(vmq)-keep]: done_vm.add(t)
                vmq = vmq[len(vmq)-keep:] if keep else []
                continue
            if ins.kind == 'wlg':
                if ins.tag in done_lg: continue
                assert ins.tag in lgq, f'wait_lg unknown tag {ins.tag}'
                idx = len(lgq) - 1 - lgq[::-1].index(ins.tag)
                n = len(lgq) - 1 - idx
                w = Ins(f's_waitcnt lgkmcnt({min(n,15)})'); emit(w)
                keep = min(n, 15)
                for t in lgq[:len(lgq)-keep]: done_lg.add(t)
                lgq = lgq[len(lgq)-keep:] if keep else []
                continue
            emit(ins)
            if ins.op == 's_waitcnt':
                m = re.search(r'vmcnt\((\d+)\)', ins.text)
                if m:
                    keep = int(m.group(1))
                    for t in vmq[:len(vmq)-keep] if keep else vmq: done_vm.add(t)
                    vmq = vmq[len(vmq)-keep:] if keep else []
                m = re.search(r'lgkmcnt\((\d+)\)', ins.text)
                if m:
                    keep = int(m.group(1))
                    for t in lgq[:len(lgq)-keep] if keep else lgq: done_lg.add(t)
                    lgq = lgq[len(lgq)-keep:] if keep else []
            elif not ins.nocount:
                if ins.cls in ('vmem','vstore'):
                    tag = ins.tag if ins.tag is not None else object()
                    vmq.append(tag); done_vm.discard(tag)
                elif ins.cls == 'ds' or ins.op.startswith('s_load') or ins.op in ('s_memtime','s_memrealtime'):
                    tag = ins.tag if ins.tag is not None else object()
                    lgq.append(tag); done_lg.discard(tag)
        return '\n'.join(i.text for i in out) + '\n'
```

```python
import sys, struct
from asmgen import Kern

NAME = 'sequential_preLN__linear_kernel_hedgehog__mixer_s_mlp__prompt_kernel'

def f2u(x): return struct.unpack('<I', struct.pack('<f', x))[0]

EPOCH = 0
IDS   = 0x1000
F_KV1 = 0x2000
F_KV2 = 0x4000
F_O   = 0x5000
F_H   = 0x6000
F_HH  = 0x7000
F_HALO= 0x8000
F_X1  = 0x9000
F_P   = 0xA000
DBG   = 0x10000
KV1Z  = 0x60000
KV2K  = 0xA0000
KV2Z  = 0xE0000
ST_H  = 0x100000
ST_X1 = 0x120000
HALO  = 0x140000
OB    = 0x200000
HB    = 0x400000
HHB   = 0x600000
X1B   = 0x800000
KV1K  = 0xA00000
PB    = 0x1000000
WS_BYTES = 0x10000000
OOB   = 0x40000000
INC   = 0x9E3779B0

SRD_X, SRD_WQKV, SRD_WPHI, SRD_WO, SRD_W1, SRD_W2, SRD_W3, SRD_W4, SRD_OUT, SRD_WS = [8+4*i for i in range(10)]
def srd(b): return f's[{b}:{b+3}]'
sX, sI, sJ, sR, sW, sA, sB, sT, sFAST, sTO, sXCC, sRHO = [f's{i}' for i in range(48, 60)]
sM0W = 's60'
sCNT = 's61'
sT0, sT1, sT2, sT3, sT4, sT5 = 's62','s63','s64','s65','s66','s67'
sMK1, sMK2, sMK3, sMKD = 's[68:69]','s[70:71]','s[72:73]','s[74:75]'
sS0 = 's[76:77]'
sLL = 's[78:79]'
sGC0, sGC1 = 's80', 's81'
sEPS = 's82'
sINV = 's83'
sTS = 's[84:85]'
sTS0 = 's86'
sF0 = 's87'
sFW = 's88'
sSTAMP = 's[90:91]'
sEX = 's[92:93]'

class G:
    def __init__(self, debug=True, stop_after=None):
        self.k = Kern()
        self.debug = debug
        self.stop_after = stop_after
        self.nstamp = 0
        self.stamp_names = []

    def e(self, t, tag=None, nocount=False): self.k.e(t, tag, nocount)

    def stamp(self, name):
        if not self.debug: return
        n = self.nstamp; self.nstamp += 1; self.stamp_names.append(name)
        self.e(f"""s_memtime {sTS}
s_waitcnt lgkmcnt(0)
s_sub_u32 s84, s84, {sTS0}
v_writelane_b32 v19, s84, {n}""")

    def poll(self, vaddr, vtmp):
        k = self.k
        Lp = k.label('Lpoll'); Ld = k.label('Lpd')
        self.e(f"""s_movk_i32 {sCNT}, 1
s_cmp_lg_u32 {sTO}, 0
s_cbranch_scc1 {Lp}
s_mov_b32 {sCNT}, 0x8000
{Lp}:
buffer_load_dword {vtmp}, {vaddr}, {srd(SRD_WS)}, 0 offen sc1""", nocount=True)
        self.e(f"""s_waitcnt vmcnt(0)
v_cmp_ne_u32 vcc, {sT}, {vtmp}
s_cbranch_vccz {Ld}
s_sub_u32 {sCNT}, {sCNT}, 1
s_cmp_lg_u32 {sCNT}, 0
s_cbranch_scc1 {Lp}
s_mov_b32 {sTO}, 1
{Ld}:""")

    def pub(self, lines, force_sc1=False):
        k = self.k
        if force_sc1:
            for l in lines: self.e(l + ' sc1')
            return
        Ls = k.label('Lslow'); Ld = k.label('Lpub')
        self.e(f"s_cmp_eq_u32 {sFAST}, 0\ns_cbranch_scc1 {Ls}")
        for l in lines: self.e(l)
        self.e(f"s_branch {Ld}\n{Ls}:")
        for l in lines: self.e(l + ' sc1', nocount=True)
        self.e(f"{Ld}:")

    def flag(self, soff, force_sc1=False):
        self.e("s_waitcnt vmcnt(0)")
        self.e("s_mov_b64 exec, 1")
        self.pub([f"buffer_store_dword v9, off, {srd(SRD_WS)}, {soff}"], force_sc1)
        self.e("s_mov_b64 exec, -1")

    def allred2(self, A, B, op):
        self.e(f"""v_permlane32_swap_b32 {A}, {B}
{op} {A}, {A}, {B}
v_mov_b32 {B}, {A}
v_permlane16_swap_b32 {A}, {B}
{op} {A}, {A}, {B}
v_mov_b32 {B}, {A}
v_permlane32_swap_b32 {A}, {B}""")

    def prologue(self):
        e = self.e
        e(f"s_cmp_ge_u32 s2, 256\ns_cbranch_scc1 L_end")
        if self.debug:
            e(f"s_memtime s[86:87]")
        ptrs = [(SRD_X,0,0x200000),(SRD_WQKV,8,0x180000),(SRD_WPHI,16,0x4000),(SRD_WO,24,0x80000),
                (SRD_W1,40,0x80000),(SRD_W2,48,0x80000),(SRD_W3,56,512*1376*2),(SRD_W4,64,1376*512*2),
                (SRD_OUT,72,0x200000),(SRD_WS,88,WS_BYTES)]
        for b,off,sz in ptrs: e(f"s_load_dwordx2 s[{b}:{b+1}], s[0:1], {off}")
        e(f"""
s_and_b32 {sX}, s2, 7
s_lshr_b32 {sT0}, s2, 3
s_and_b32 {sJ}, {sT0}, 7
s_lshr_b32 {sI}, {sT0}, 3
s_lshl_b32 {sR}, {sX}, 2
s_add_u32 {sR}, {sR}, {sI}
v_lshrrev_b32 v2, 6, v0
v_and_b32 v0, 63, v0
v_and_b32 v3, 15, v0
v_readfirstlane_b32 {sW}, v2
v_mov_b32 v2, v3
v_lshrrev_b32 v3, 4, v0
v_lshlrev_b32 v1, 4, v0
s_lshr_b32 {sA}, {sW}, 1
s_and_b32 {sB}, {sW}, 1
s_lshl_b32 {sM0W}, {sW}, 11
s_lshl_b32 {sRHO}, {sR}, 2
s_add_u32 {sRHO}, {sRHO}, {sW}
s_mov_b32 {sTO}, 0
s_getreg_b32 {sXCC}, hwreg(HW_REG_XCC_ID, 0, 4)
""")
        e(f"""
v_lshrrev_b32 v10, 3, v0            ; l>>3
v_and_b32 v11, 7, v0                ; l&7
v_lshrrev_b32 v12, 4, v0            ; l>>4
; x offsets
s_lshl_b32 {sT0}, {sR}, 16
s_lshl_b32 {sT1}, {sW}, 14
s_add_u32 {sT0}, {sT0}, {sT1}
v_lshlrev_b32 v13, 10, v10
v_add_u32 v13, {sT0}, v13
v_xor_b32 v14, v11, v12
v_lshl_add_u32 v4, v14, 4, v13      ; u=0
v_xor_b32 v14, 4, v14
v_lshl_add_u32 v5, v14, 4, v13
v_add_u32 v5, 0x2000, v5            ; +8 rows
s_mul_i32 {sT0}, {sW}, {16*3072}
s_lshl_b32 {sT1}, {sJ}, 7
s_add_u32 {sT0}, {sT0}, {sT1}
v_mul_u32_u24 v13, 3072, v10
v_add_u32 v13, {sT0}, v13
v_and_b32 v14, 2, v10
v_xor_b32 v14, v11, v14
v_lshl_add_u32 v6, v14, 4, v13
v_xor_b32 v14, 4, v14
v_lshl_add_u32 v7, v14, 4, v13
v_add_u32 v7, {8*3072}, v7
s_waitcnt lgkmcnt(0)
""")
        for b,off,sz in ptrs: e(f"s_mov_b32 s{b+2}, {hex(sz)}\ns_mov_b32 s{b+3}, 0x20000")
        e(f"s_load_dword {sT}, s[{SRD_WS}:{SRD_WS+1}], {EPOCH}")
        e(f"""
s_lshl_b32 {sT0}, {sJ}, 2
s_lshl_b32 {sT1}, {sB}, 1
s_add_u32 {sT0}, {sT0}, {sT1}
s_lshl_b32 {sT0}, {sT0}, 9          ; H*512 bytes
v_lshlrev_b32 v13, 7, v3            ; g*4*32
v_lshl_add_u32 v13, v2, 1, v13      ; + f*2
""")
        for ep in range(2):
            for jj in range(4):
                e(f"buffer_load_ushort v{160+ep*4+jj}, v13, {srd(SRD_WPHI)}, {sT0} offen offset:{ep*512+jj*32}", tag='wphi')
        for c in range(8):
            self.dma_x(c); self.dma_wqkv(c, 1, 65536 + c*8192, f'k{c}')
        for c in range(4):
            self.dma_wqkv(c, 2, 131072 + c*8192, f'v{c}')
        e("s_waitcnt lgkmcnt(0)")
        e(f"""
s_add_u32 {sT}, {sT}, {hex(INC)}
v_mov_b32 v9, {sT}
s_add_u32 {sT0}, {sT}, {sXCC}
v_mov_b32 v13, {sT0}
s_lshl_b32 {sT1}, {sX}, 7
s_lshl_b32 {sT2}, {sI}, 5
s_add_u32 {sT1}, {sT1}, {sT2}
s_lshl_b32 {sT2}, {sJ}, 2
s_add_u32 {sT1}, {sT1}, {sT2}
s_add_u32 {sT1}, {sT1}, {IDS}
s_cmp_lg_u32 {sW}, 0
s_cbranch_scc1 L_noid
s_mov_b64 exec, 1
buffer_store_dword v13, off, {srd(SRD_WS)}, {sT1} sc1
s_mov_b64 exec, -1
L_noid:
""", nocount=True)
        L = 1.4426950408889634
        c0 = -2.0*L*0.7978845608028654
        e(f"""
s_mov_b32 s78, {hex(f2u(L))}
s_mov_b32 s79, {hex(f2u(-L))}
s_mov_b32 {sGC0}, {hex(f2u(c0))}
s_mov_b32 {sGC1}, {hex(f2u(c0*0.044715))}
s_mov_b32 {sEPS}, {hex(f2u(1e-5))}
s_mov_b32 {sINV}, {hex(f2u(1.0/512))}
v_and_b32 v13, 3, v2
v_cmp_eq_u32 {sMK1}, 1, v13
v_cmp_eq_u32 {sMK2}, 2, v13
v_cmp_eq_u32 {sMK3}, 3, v13
v_lshrrev_b32 v14, 2, v2
v_cmp_eq_u32 {sMKD}, v14, v3
v_cmp_eq_u32 {sS0}, 0, v2
v_mov_b32 v20, 0x3f803f80
v_mov_b32 v21, 0x3f803f80
v_mov_b32 v22, 0x3f803f80
v_mov_b32 v23, 0x3f803f80
; identity: v[24:29] = Z Z I0 I1 Z Z
v_and_b32 v13, 1, v2
v_lshlrev_b32 v13, 4, v13
v_mov_b32 v14, 0x3f80
v_lshlrev_b32 v14, v13, v14
v_cndmask_b32 v14, 0, v14, {sMKD}
v_and_b32 v13, 2, v2
v_cmp_eq_u32 vcc, 0, v13
v_mov_b32 v24, 0
v_mov_b32 v25, 0
v_mov_b32 v28, 0
v_mov_b32 v29, 0
v_cndmask_b32 v26, 0, v14, vcc
v_cndmask_b32 v27, v14, 0, vcc
""")
        e(f"""
v_lshrrev_b32 v13, 1, v2
v_xor_b32 v13, v13, v3
v_and_b32 v13, 7, v13
v_lshlrev_b32 v13, 4, v13
v_lshl_add_u32 v13, v2, 7, v13
s_lshl_b32 {sT0}, {sA}, 12
v_add_u32 v10, {sT0}, v13
v_xor_b32 v11, 64, v10
v_lshrrev_b32 v13, 2, v2             ; i>>2
v_and_b32 v14, 2, v13
v_and_b32 v15, 1, v3
v_lshl_or_b32 v14, v15, 2, v14       ; f
v_bfe_u32 v15, v2, 1, 1              ; b_
v_xor_b32 v14, v14, v15
v_lshlrev_b32 v14, 4, v14
v_and_b32 v15, 1, v2
v_lshl_add_u32 v14, v15, 3, v14
v_lshl_add_u32 v15, v3, 3, v13       ; 8g + (i>>2)
v_lshl_add_u32 v16, v15, 7, v14
v_lshl_add_u32 v15, v3, 2, v13       ; 4g + (i>>2)
v_lshl_add_u32 v17, v15, 7, v14
s_lshl_b32 {sT0}, {sB}, 6
v_xor_b32 v12, {sT0}, v16
v_xor_b32 v13, 32, v12               ; ct=2b+1
v_mov_b32 v14, v17
v_xor_b32 v15, 32, v17
v_xor_b32 v16, 64, v17
v_xor_b32 v17, 0x60, v17
v_lshrrev_b32 v18, 3, v0
v_and_b32 v19, 6, v18
v_and_b32 v8, 7, v0
v_xor_b32 v8, v8, v19
v_lshlrev_b32 v8, 4, v8
v_lshl_add_u32 v8, v18, 10, v8
s_lshl_b32 {sT0}, {sJ}, 7
v_add_u32 v8, {sT0}, v8
""")
        self.k.wait_vm('wphi')
        e("""
v_lshl_or_b32 v30, v161, 16, v160
v_lshl_or_b32 v31, v163, 16, v162
v_lshl_or_b32 v32, v165, 16, v164
v_lshl_or_b32 v33, v167, 16, v166
""")

    def dma_x(self, c):
        for u in range(2):
            self.e(f"s_add_u32 m0, {sM0W}, {c*8192 + u*1024}\ns_movk_i32 {sT5}, {c*128}")
            self.e(f"buffer_load_dwordx4 v{4+u}, {srd(SRD_X)}, {sT5} offen lds", tag=f'x{c}')

    def dma_wqkv(self, c, part, ldsbase, tag):
        for u in range(2):
            self.e(f"s_add_u32 m0, {sM0W}, {ldsbase + u*1024}\ns_mov_b32 {sT5}, {c*64*3072 + part*1024}")
            self.e(f"buffer_load_dwordx4 v{6+u}, {srd(SRD_WQKV)}, {sT5} offen lds", tag=tag)

    def dma_w64(self, srdb, ldsbase, tag, units=range(16)):
        for u in units:
            self.e(f"s_lshl_b32 {sT4}, {sW}, 14\ns_add_u32 m0, {sT4}, {ldsbase + u*1024}\ns_lshl_b32 {sT5}, {sW}, 17\ns_add_u32 {sT5}, {sT5}, {u*8192}")
            self.e(f"buffer_load_dwordx4 v8, {srd(srdb)}, {sT5} offen lds", tag=tag)

    def zero(self, regs):
        for r in regs: self.e(f"v_mov_b32 v{r}, 0")

    def pass_k(self):
        e = self.e; k = self.k
        self.zero(range(40, 80))
        e("v_add_u32 v34, 0x10000, v12\nv_add_u32 v35, 0x10000, v13")
        for c in range(8):
            k.wait_vm(f'k{c}')
            e("s_barrier")
            if 1 <= c <= 4: self.dma_wqkv(3 + c, 2, (c-1)*8192, f'v{3+c}')
            if c >= 5:
                for cc in ((c-5)*2, (c-5)*2+1): self.dma_wqkv(cc, 0, 65536 + cc*8192, f'q{cc}')
            for u in range(2):
                t = 2*c + u
                for ee in range(2):
                    e(f"ds_read_b128 a[{(ee*16+t)*4}:{(ee*16+t)*4+3}], v{10+u} offset:{c*8192 + ee*2048}", tag=f'kx{t}')
                for ep in range(2):
                    wb = 128 + (u*2+ep)*4
                    for h in range(2):
                        e(f"ds_read_b64_tr_b16 v[{wb+2*h}:{wb+2*h+1}], v{34+ep} offset:{c*8192 + u*4096 + h*512}", tag=f'kw{t}')
            for u in range(2):
                t = 2*c + u
                k.wait_lg(f'kw{t}')
                for ep in range(2):
                    wb = 128 + (u*2+ep)*4
                    for ee in range(2):
                        acc = 40 + (ep*2+ee)*4
                        e(f"v_mfma_f32_16x16x32_bf16 v[{acc}:{acc+3}], v[{wb}:{wb+3}], a[{(ee*16+t)*4}:{(ee*16+t)*4+3}], v[{acc}:{acc+3}]")
                    e(f"v_mfma_f32_16x16x32_bf16 v[{56+ep*4}:{59+ep*4}], v[{wb}:{wb+3}], v[20:23], v[{56+ep*4}:{59+ep*4}]")
                for ee in range(2):
                    xa = f"a[{(ee*16+t)*4}:{(ee*16+t)*4+3}]"
                    e(f"v_mfma_f32_16x16x32_bf16 v[{64+ee*4}:{67+ee*4}], v[20:23], {xa}, v[{64+ee*4}:{67+ee*4}]")
                    e(f"v_mfma_f32_16x16x32_bf16 v[{72+ee*4}:{75+ee*4}], {xa}, {xa}, v[{72+ee*4}:{75+ee*4}]")

    def resid_x(self):
        e = self.e
        e(f"""
s_lshl_b32 {sT0}, {sRHO}, 14
s_lshl_b32 {sT1}, {sJ}, 7
s_add_u32 {sT0}, {sT0}, {sT1}
v_lshlrev_b32 v160, 10, v2
v_lshl_add_u32 v160, v3, 3, v160
""")
        for ct in range(4):
            e(f"buffer_load_dwordx2 v[{240+2*ct}:{241+2*ct}], v160, {srd(SRD_X)}, {sT0} offen offset:{ct*32}", tag='resx')

    def stats1(self):
        e = self.e
        ST = 4*8192
        for ee in range(2):
            g0 = 72 + ee*4; t = 160 + ee
            e(f"""v_cndmask_b32 v{t}, v{g0}, v{g0+1}, {sMK1}
v_cndmask_b32 v{t}, v{t}, v{g0+2}, {sMK2}
v_cndmask_b32 v{t}, v{t}, v{g0+3}, {sMK3}
v_cndmask_b32 v{t}, 0, v{t}, {sMKD}""")
        self.allred2('v160', 'v161', 'v_add_f32')
        for ee in range(2):
            e(f"""v_mul_f32 v{36+ee}, {sINV}, v{64+ee*4}
v_mul_f32 v{160+ee}, {sINV}, v{160+ee}
v_fma_f32 v{160+ee}, -v{36+ee}, v{36+ee}, v{160+ee}
v_max_f32 v{160+ee}, 0, v{160+ee}
v_add_f32 v{160+ee}, {sEPS}, v{160+ee}
v_rsq_f32 v{38+ee}, v{160+ee}""")
        e(f"""s_lshl_b32 {sT0}, {sA}, 7
v_lshlrev_b32 v162, 2, v2
v_add_u32 v162, {sT0}, v162""")
        for ee in range(2):
            e(f"ds_write_b32 v162, v{36+ee} offset:{ST + ee*64}", tag='st1w')
            e(f"ds_write_b32 v162, v{38+ee} offset:{ST + 256 + ee*64}", tag='st1w')
        e(f"""v_lshlrev_b32 v163, 4, v3
v_add_u32 v163, {sT0}, v163""")
        self.k.wait_lg('st1w')
        for ee in range(2):
            e(f"ds_read_b128 v[{168+8*ee}:{171+8*ee}], v163 offset:{ST + ee*64}", tag='st1r')
            e(f"ds_read_b128 v[{172+8*ee}:{175+8*ee}], v163 offset:{ST + 256 + ee*64}", tag='st1r')

    def pass_vq(self, which):
        e = self.e; k = self.k
        if which == 'v':
            self.zero(range(80, 104))
            e("v_add_u32 v34, 0x20000, v12\nv_add_u32 v35, 0x20000, v13")
        else:
            self.zero(range(104, 128))
            e("v_add_u32 v34, 0x10000, v12\nv_add_u32 v35, 0x10000, v13")
        for c in range(8):
            k.wait_vm(f'{which}{c}')
            e("s_barrier")
            if which == 'v' and c == 0:
                for cc in (6, 7): self.dma_wqkv(cc, 0, 65536 + cc*8192, f'q{cc}')
            if which == 'v' and c == 4:
                e("v_mov_b32 v34, v12\nv_mov_b32 v35, v13")
            off = (c*8192 if c < 4 else (c-4)*8192) if which == 'v' else c*8192
            for u in range(2):
                t = 2*c+u
                for ep in range(2):
                    wb = 128 + (u*2+ep)*4
                    for h in range(2):
                        e(f"ds_read_b64_tr_b16 v[{wb+2*h}:{wb+2*h+1}], v{34+ep} offset:{off + u*4096 + h*512}", tag=f'{which}w{t}')
            for u in range(2):
                t = 2*c+u
                k.wait_lg(f'{which}w{t}')
                for ep in range(2):
                    wb = 128 + (u*2+ep)*4
                    for ee in range(2):
                        xa = f"a[{(ee*16+t)*4}:{(ee*16+t)*4+3}]"
                        if which == 'v':
                            acc = 80 + (ee*2+ep)*4
                            e(f"v_mfma_f32_16x16x32_bf16 v[{acc}:{acc+3}], {xa}, v[{wb}:{wb+3}], v[{acc}:{acc+3}]")
                        else:
                            acc = 104 + (ep*2+ee)*4
                            e(f"v_mfma_f32_16x16x32_bf16 v[{acc}:{acc+3}], v[{wb}:{wb+3}], {xa}, v[{acc}:{acc+3}]")
                    if which == 'v':
                        e(f"v_mfma_f32_16x16x32_bf16 v[{96+ep*4}:{99+ep*4}], v[20:23], v[{wb}:{wb+3}], v[{96+ep*4}:{99+ep*4}]")
                    else:
                        e(f"v_mfma_f32_16x16x32_bf16 v[{120+ep*4}:{123+ep*4}], v[{wb}:{wb+3}], v[20:23], v[{120+ep*4}:{123+ep*4}]")

    def features(self, acc, cs, m, rs, wphi, out, T):
        e = self.e
        t = T
        e(f"""v_pk_fma_f32 v[{t}:{t+1}], v[{cs}:{cs+1}], v[{m&~1}:{(m&~1)+1}], v[{acc}:{acc+1}] op_sel:[0,{m&1},0] op_sel_hi:[1,{m&1},1] neg_lo:[1,0,0] neg_hi:[1,0,0]
v_pk_fma_f32 v[{t+2}:{t+3}], v[{cs+2}:{cs+3}], v[{m&~1}:{(m&~1)+1}], v[{acc+2}:{acc+3}] op_sel:[0,{m&1},0] op_sel_hi:[1,{m&1},1] neg_lo:[1,0,0] neg_hi:[1,0,0]
v_pk_mul_f32 v[{t}:{t+1}], v[{t}:{t+1}], v[{rs&~1}:{(rs&~1)+1}] op_sel:[0,{rs&1}] op_sel_hi:[1,{rs&1}]
v_pk_mul_f32 v[{t+2}:{t+3}], v[{t+2}:{t+3}], v[{rs&~1}:{(rs&~1)+1}] op_sel:[0,{rs&1}] op_sel_hi:[1,{rs&1}]
v_cvt_pk_bf16_f32 v{t+4}, v{t}, v{t+1}
v_cvt_pk_bf16_f32 v{t+5}, v{t+2}, v{t+3}
v_mfma_f32_16x16x16_bf16 v[{t}:{t+3}], v[{wphi}:{wphi+1}], v[{t+4}:{t+5}], 0
v_max3_f32 v{t+4}, v{t}, v{t+1}, v{t+2}
v_max3_f32 v{t+5}, -v{t}, -v{t+1}, -v{t+2}
v_max_f32 v{t+4}, v{t+4}, v{t+3}
v_max_f32_e64 v{t+5}, v{t+5}, -v{t+3}""")
        self.allred2(f'v{t+4}', f'v{t+5}', 'v_max_f32')
        e(f"v_pk_mul_f32 v[{t+4}:{t+5}], v[{t+4}:{t+5}], {sLL} op_sel_hi:[1,0]")
        for r in range(4):
            pr = t + (r & ~1); sel = r & 1
            e(f"v_pk_fma_f32 v[{t+8+2*r}:{t+9+2*r}], v[{pr}:{pr+1}], {sLL}, v[{t+4}:{t+5}] op_sel:[{sel},0,0] op_sel_hi:[{sel},1,1] neg_lo:[0,0,1] neg_hi:[0,0,1]")
        for i in range(8): e(f"v_exp_f32 v{t+8+i}, v{t+8+i}")
        e(f"""v_pk_add_f32 v[{t}:{t+1}], v[{t+8}:{t+9}], v[{t+10}:{t+11}]
v_pk_add_f32 v[{t+2}:{t+3}], v[{t+12}:{t+13}], v[{t+14}:{t+15}]
v_pk_add_f32 v[{t}:{t+1}], v[{t}:{t+1}], v[{t+2}:{t+3}]""")
        self.allred2(f'v{t}', f'v{t+1}', 'v_add_f32')
        e(f"v_rcp_f32 v{t}, v{t}\nv_rcp_f32 v{t+1}, v{t+1}")
        for r in range(4):
            e(f"v_pk_mul_f32 v[{t+8+2*r}:{t+9+2*r}], v[{t+8+2*r}:{t+9+2*r}], v[{t}:{t+1}]")
        e(f"""v_cvt_pk_bf16_f32 v{out}, v{t+8}, v{t+10}
v_cvt_pk_bf16_f32 v{out+1}, v{t+12}, v{t+14}
v_cvt_pk_bf16_f32 v{out+2}, v{t+9}, v{t+11}
v_cvt_pk_bf16_f32 v{out+3}, v{t+13}, v{t+15}""")

    def kfeat_publish(self):
        e = self.e; k = self.k
        k.wait_lg('st1r')
        for ee in range(2):
            M = 168 + 8*ee; RS = 172 + 8*ee
            for ep in range(2):
                acc = 80 + (ee*2+ep)*4; cs = 96 + ep*4
                t = 192
                e(f"""v_pk_fma_f32 v[{t}:{t+1}], v[{M}:{M+1}], v[{cs}:{cs+1}], v[{acc}:{acc+1}] op_sel_hi:[1,0,1] neg_lo:[1,0,0] neg_hi:[1,0,0]
v_pk_fma_f32 v[{t+2}:{t+3}], v[{M+2}:{M+3}], v[{cs}:{cs+1}], v[{acc+2}:{acc+3}] op_sel_hi:[1,0,1] neg_lo:[1,0,0] neg_hi:[1,0,0]
v_pk_mul_f32 v[{t}:{t+1}], v[{t}:{t+1}], v[{RS}:{RS+1}]
v_pk_mul_f32 v[{t+2}:{t+3}], v[{t+2}:{t+3}], v[{RS+2}:{RS+3}]
v_cvt_pk_bf16_f32 v{184+4*ep+2*ee}, v{t}, v{t+1}
v_cvt_pk_bf16_f32 v{184+4*ep+2*ee+1}, v{t+2}, v{t+3}""")
        for ep in range(2):
            for ee in range(2):
                self.features(40 + (ep*2+ee)*4, 56 + ep*4, 36+ee, 38+ee, 30+2*ep, 224, 192)
                for sg in range(2):
                    e(f"v_mfma_f32_16x16x16_bf16 v[{228+4*sg}:{231+4*sg}], v[{224+2*sg}:{225+2*sg}], v[26:27], 0")
                for sg in range(2):
                    d = 208 + 8*ep + 4*sg + 2*ee
                    e(f"v_cvt_pk_bf16_f32 v{d}, v{228+4*sg}, v{229+4*sg}\nv_cvt_pk_bf16_f32 v{d+1}, v{230+4*sg}, v{231+4*sg}")
        for ep in range(2):
            for sg in range(2):
                pa = 208 + 8*ep + 4*sg
                e(f"v_mfma_f32_16x16x32_bf16 v[{40+8*ep+4*sg}:{43+8*ep+4*sg}], v[{pa}:{pa+3}], v[{184+4*ep}:{187+4*ep}], 0")
                e(f"v_mfma_f32_16x16x32_bf16 v[{56+8*ep+4*sg}:{59+8*ep+4*sg}], v[{pa}:{pa+3}], v[20:23], 0")
        e(f"""s_lshl_b32 {sT0}, {sX}, 3
s_add_u32 {sT0}, {sT0}, {sJ}
s_lshl_b32 {sT0}, {sT0}, 2
s_lshl_b32 {sT1}, {sB}, 1
s_add_u32 {sT0}, {sT0}, {sT1}
s_lshl_b32 {sT1}, {sI}, 1
s_add_u32 {sT1}, {sT1}, {sA}         ; src
s_lshl_b32 {sT2}, {sT0}, 3
s_add_u32 {sT2}, {sT2}, {sT1}        ; idx
s_lshl_b32 {sT3}, {sT2}, 11
s_add_u32 {sT3}, {sT3}, {KV1K}
s_add_u32 {sT4}, {sT3}, {8*2048}     ; e'=1
s_lshl_b32 {sT2}, {sT2}, 7
s_add_u32 {sT2}, {sT2}, {KV1Z}       ; z offset e'=0 ; e'=1 -> +1024
v_lshlrev_b32 v160, 5, v3            ; g*32""")
        lines = []
        for ep in range(2):
            so = sT3 if ep == 0 else sT4
            lines.append(f"buffer_store_dwordx4 v[{40+8*ep}:{43+8*ep}], v1, {srd(SRD_WS)}, {so} offen")
            lines.append(f"buffer_store_dwordx4 v[{44+8*ep}:{47+8*ep}], v1, {srd(SRD_WS)}, {so} offen offset:1024")
        self.pub(lines)
        e(f"s_mov_b64 exec, {sS0}")
        lines = []
        for ep in range(2):
            lines.append(f"buffer_store_dwordx4 v[{56+8*ep}:{59+8*ep}], v160, {srd(SRD_WS)}, {sT2} offen offset:{ep*1024}")
            lines.append(f"buffer_store_dwordx4 v[{60+8*ep}:{63+8*ep}], v160, {srd(SRD_WS)}, {sT2} offen offset:{ep*1024+16}")
        self.pub(lines)
        e("s_mov_b64 exec, -1")
        e(f"""s_lshl_b32 {sT0}, {sT0}, 5
s_lshl_b32 {sT1}, {sT1}, 2
s_add_u32 {sT0}, {sT0}, {sT1}
s_add_u32 {sT0}, {sT0}, {F_KV1}
s_add_u32 {sT1}, {sT0}, 32
s_waitcnt vmcnt(0)
s_mov_b64 exec, 1""")
        self.pub([f"buffer_store_dword v9, off, {srd(SRD_WS)}, {sT0}", f"buffer_store_dword v9, off, {srd(SRD_WS)}, {sT1}"])
        e("s_mov_b64 exec, -1")

    def check_ids(self):
        e = self.e; k = self.k
        Lp = k.label('Lid'); Ld = k.label('Lidd')
        e(f"""s_lshl_b32 {sT0}, {sX}, 7
s_add_u32 {sT0}, {sT0}, {IDS}
v_and_b32 v160, 31, v0
v_lshlrev_b32 v160, 2, v160
v_add_u32 v160, {sT0}, v160
s_mov_b32 {sCNT}, 0x8000
{Lp}:""")
        e(f"buffer_load_dword v161, v160, {srd(SRD_WS)}, 0 offen sc1", nocount=True)
        e(f"""s_waitcnt vmcnt(0)
v_subrev_u32 v161, {sT}, v161
v_cmp_lt_u32 vcc, 7, v161
s_cbranch_vccz {Ld}
s_sub_u32 {sCNT}, {sCNT}, 1
s_cmp_lg_u32 {sCNT}, 0
s_cbranch_scc1 {Lp}
s_mov_b32 {sTO}, 1
{Ld}:
v_cmp_ne_u32 vcc, {sXCC}, v161
s_cmp_eq_u64 vcc, 0
s_cselect_b32 {sFAST}, 1, 0""")

    def reduce1(self):
        e = self.e; k = self.k
        Lskip = k.label('Lred')
        e(f"s_cmp_lg_u32 {sW}, 0\ns_cbranch_scc1 {Lskip}")
        e(f"""s_lshl_b32 {sT0}, {sX}, 3
s_add_u32 {sT0}, {sT0}, {sJ}
s_lshl_b32 {sT0}, {sT0}, 2
s_add_u32 {sT0}, {sT0}, {sI}         ; group
s_lshl_b32 {sT1}, {sT0}, 5
s_add_u32 {sT1}, {sT1}, {F_KV1}
v_and_b32 v160, 7, v0
v_lshlrev_b32 v160, 2, v160
v_add_u32 v160, {sT1}, v160""")
        self.poll('v160', 'v161')
        e(f"""s_lshl_b32 {sT2}, {sT0}, 14
s_add_u32 {sT2}, {sT2}, {KV1K}
s_lshl_b32 {sT3}, {sT0}, 10
s_add_u32 {sT3}, {sT3}, {KV1Z}
v_lshlrev_b32 v160, 5, v3""")
        acc = 40
        for half in range(2):
            for sidx in range(4):
                src = half*4 + sidx
                b = 176 + 16*sidx
                e(f"s_add_u32 {sT4}, {sT2}, {src*2048}")
                e(f"buffer_load_dwordx4 v[{b}:{b+3}], v1, {srd(SRD_WS)}, {sT4} offen sc1", tag=f'r{src}')
                e(f"buffer_load_dwordx4 v[{b+4}:{b+7}], v1, {srd(SRD_WS)}, {sT4} offen offset:1024 sc1", tag=f'r{src}')
                e(f"buffer_load_dwordx4 v[{b+8}:{b+11}], v160, {srd(SRD_WS)}, {sT3} offen offset:{src*128} sc1", tag=f'r{src}')
                e(f"buffer_load_dwordx4 v[{b+12}:{b+15}], v160, {srd(SRD_WS)}, {sT3} offen offset:{src*128+16} sc1", tag=f'r{src}')
            for sidx in range(4):
                src = half*4 + sidx
                b = 176 + 16*sidx
                k.wait_vm(f'r{src}')
                for q in range(8):
                    if src == 0:
                        e(f"v_pk_mul_f32 v[{acc+2*q}:{acc+2*q+1}], v[{b+2*q}:{b+2*q+1}], 1.0 op_sel_hi:[1,0]")
                    else:
                        e(f"v_pk_add_f32 v[{acc+2*q}:{acc+2*q+1}], v[{acc+2*q}:{acc+2*q+1}], v[{b+2*q}:{b+2*q+1}]")
        for q in range(8):
            e(f"v_cvt_pk_bf16_f32 v{56+q}, v{acc+2*q}, v{acc+2*q+1}")
        e(f"""s_lshl_b32 {sT0}, {sJ}, 2
s_add_u32 {sT0}, {sT0}, {sI}
s_lshl_b32 {sT1}, {sT0}, 3
s_add_u32 {sT1}, {sT1}, {sX}
s_lshl_b32 {sT2}, {sT1}, 10
s_add_u32 {sT2}, {sT2}, {KV2K}
s_lshl_b32 {sT3}, {sT1}, 7
s_add_u32 {sT3}, {sT3}, {KV2Z}
v_lshlrev_b32 v160, 4, v3
buffer_store_dwordx4 v[56:59], v1, {srd(SRD_WS)}, {sT2} offen sc1
s_mov_b64 exec, {sS0}
buffer_store_dwordx4 v[60:63], v160, {srd(SRD_WS)}, {sT3} offen sc1
s_mov_b64 exec, -1
s_lshl_b32 {sT0}, {sT0}, 7
s_lshl_b32 {sT1}, {sX}, 2
s_add_u32 {sT0}, {sT0}, {sT1}
s_add_u32 {sT0}, {sT0}, {F_KV2}""", nocount=True)
        self.flag(sT0, force_sc1=True)
        e(f"{Lskip}:")

    def qfeat(self):
        for ep in range(2):
            for ee in range(2):
                self.features(104 + (ep*2+ee)*4, 120 + ep*4, 36+ee, 38+ee, 30+2*ep, 128 + 8*ep + 4*ee, 192)

    def final_kv_and_o(self):
        e = self.e; k = self.k
        SC = 152*1024
        e(f"""s_lshl_b32 {sT0}, {sJ}, 2
s_add_u32 {sT0}, {sT0}, {sW}         ; H
s_lshl_b32 {sT1}, {sT0}, 7
s_add_u32 {sT1}, {sT1}, {F_KV2}
v_and_b32 v160, 7, v0
v_lshlrev_b32 v160, 2, v160
v_add_u32 v160, {sT1}, v160""")
        self.poll('v160', 'v161')
        e(f"""s_lshl_b32 {sT2}, {sT0}, 13
s_add_u32 {sT2}, {sT2}, {KV2K}
s_lshl_b32 {sT3}, {sT0}, 10
s_add_u32 {sT3}, {sT3}, {KV2Z}
v_lshlrev_b32 v160, 4, v3""")
        for x in range(8):
            if x == 4: e(f"s_add_u32 {sT2}, {sT2}, 4096")
            e(f"buffer_load_dwordx4 v[{176+4*x}:{179+4*x}], v1, {srd(SRD_WS)}, {sT2} offen offset:{(x&3)*1024} sc1", tag=f'kv{x}')
            e(f"buffer_load_dwordx4 v[{208+4*x}:{211+4*x}], v160, {srd(SRD_WS)}, {sT3} offen offset:{x*128} sc1", tag=f'kv{x}')
        self.zero(range(40, 56))
        for x in range(8):
            k.wait_vm(f'kv{x}')
            e(f"""v_mfma_f32_16x16x32_bf16 v[40:43], v[26:29], v[{176+4*x}:{179+4*x}], v[40:43]
v_mfma_f32_16x16x32_bf16 v[44:47], v[24:27], v[{176+4*x}:{179+4*x}], v[44:47]
v_mfma_f32_16x16x32_bf16 v[48:51], v[26:29], v[{208+4*x}:{211+4*x}], v[48:51]
v_mfma_f32_16x16x32_bf16 v[52:55], v[24:27], v[{208+4*x}:{211+4*x}], v[52:55]""")
        for q in range(8):
            e(f"v_cvt_pk_bf16_f32 v{56+q}, v{40+2*q}, v{41+2*q}")
        e(f"""s_lshl_b32 {sT0}, {sW}, 11
v_add_u32 v160, {sT0}, v1
v_add_u32 v160, {SC}, v160""")
        e("ds_write_b128 v160, v[56:59]", tag='kvw')
        e("ds_write_b128 v160, v[60:63] offset:1024", tag='kvw')
        k.wait_lg('kvw')
        e("s_barrier")
        e(f"""s_lshl_b32 {sT0}, {sB}, 12
v_add_u32 v160, {sT0}, v1
v_add_u32 v160, {SC}, v160""")
        for ep in range(2):
            e(f"ds_read_b128 v[{40+8*ep}:{43+8*ep}], v160 offset:{ep*2048}", tag='kvr')
            e(f"ds_read_b128 v[{44+8*ep}:{47+8*ep}], v160 offset:{ep*2048+1024}", tag='kvr')
        k.wait_lg('kvr')
        for ee in range(2):
            for ep in range(2):
                pq = 128 + 8*ep + 4*ee
                n = 176 + (ee*2+ep)*8
                e(f"v_mfma_f32_16x16x32_bf16 v[{n}:{n+3}], v[{40+8*ep}:{43+8*ep}], v[{pq}:{pq+3}], 0")
                e(f"v_mfma_f32_16x16x32_bf16 v[{n+4}:{n+7}], v[{44+8*ep}:{47+8*ep}], v[{pq}:{pq+3}], 0")
        for ee in range(2):
            for ep in range(2):
                n = 176 + (ee*2+ep)*8
                e(f"""v_add_f32 v{n+4}, 0x358637bd, v{n+4}
v_rcp_f32 v{n+4}, v{n+4}
v_pk_mul_f32 v[{n}:{n+1}], v[{n}:{n+1}], v[{n+4}:{n+5}] op_sel_hi:[1,0]
v_pk_mul_f32 v[{n+2}:{n+3}], v[{n+2}:{n+3}], v[{n+4}:{n+5}] op_sel_hi:[1,0]
v_cvt_pk_bf16_f32 v{72+4*ee+2*ep}, v{n}, v{n+1}
v_cvt_pk_bf16_f32 v{72+4*ee+2*ep+1}, v{n+2}, v{n+3}""")
        e(f"""s_lshl_b32 {sT0}, {sR}, 2
s_lshl_b32 {sT1}, {sA}, 1
s_add_u32 {sT0}, {sT0}, {sT1}
s_lshl_b32 {sT0}, {sT0}, 14
s_lshl_b32 {sT1}, {sJ}, 1
s_add_u32 {sT1}, {sT1}, {sB}         ; t
s_lshl_b32 {sT2}, {sT1}, 10
s_add_u32 {sT0}, {sT0}, {sT2}
s_add_u32 {sT0}, {sT0}, {OB}
s_add_u32 {sT2}, {sT0}, 16384""")
        self.pub([f"buffer_store_dwordx4 v[72:75], v1, {srd(SRD_WS)}, {sT0} offen",
                  f"buffer_store_dwordx4 v[76:79], v1, {srd(SRD_WS)}, {sT2} offen"])
        e(f"""s_lshl_b32 {sT0}, {sR}, 1
s_add_u32 {sT0}, {sT0}, {sA}
s_lshl_b32 {sT0}, {sT0}, 6
s_lshl_b32 {sT1}, {sT1}, 2
s_add_u32 {sT0}, {sT0}, {sT1}
s_add_u32 {sT0}, {sT0}, {F_O}""")
        self.flag(sT0)

    def unpack16(self, src, dst):
        for q in range(8):
            self.e(f"v_lshlrev_b32 v{dst+2*q}, 16, v{src+q}\nv_and_b32 v{dst+2*q+1}, 0xffff0000, v{src+q}")

    def a_reads(self, t, wl_regs, imm0, tagp):
        buf = 128 + (t % 3)*16
        for ct in range(4):
            for h in range(2):
                self.e(f"ds_read_b64_tr_b16 v[{buf+4*ct+2*h}:{buf+4*ct+2*h+1}], v{wl_regs+ct} offset:{imm0 + t*4096 + h*2048}", tag=f'{tagp}{t}')

    def gemm64_pre(self, ldsbase, tagp):
        for ct in range(4): self.e(f"v_add_u32 v{176+ct}, {hex(ldsbase)}, v{14+ct}")
        for t in range(3): self.a_reads(t, 176, 0, tagp)

    def gemm64_main(self, tagp, btag):
        k = self.k
        for t in range(16):
            k.wait_lg(f'{tagp}{t}')
            k.wait_vm(f'{btag}{t}')
            buf = 128 + (t % 3)*16
            for ct in range(4):
                self.e(f"v_mfma_f32_16x16x32_bf16 v[{40+4*ct}:{43+4*ct}], v[{buf+4*ct}:{buf+4*ct+3}], v[{64+4*t}:{67+4*t}], v[{40+4*ct}:{43+4*ct}]")
            if t + 3 < 16: self.a_reads(t+3, 176, 0, tagp)

    def load_frags(self, base_sgpr, btag, vaddr_of_t=None):
        for t in range(16):
            if t % 4 == 0:
                self.e(f"s_add_u32 {sT5}, {base_sgpr}, {t*1024}")
            va = 'v1' if vaddr_of_t is None else vaddr_of_t(t)
            self.e(f"buffer_load_dwordx4 v[{64+4*t}:{67+4*t}], {va}, {srd(SRD_WS)}, {sT5} offen offset:{(t%4)*1024} sc1", tag=f'{btag}{t}')

    def row_stats_pub(self, STB):
        e = self.e
        e("v_pk_add_f32 v[180:181], v[40:41], v[42:43]\nv_pk_mul_f32 v[182:183], v[40:41], v[40:41]")
        e("v_pk_fma_f32 v[182:183], v[42:43], v[42:43], v[182:183]")
        for q in range(2, 8):
            e(f"v_pk_add_f32 v[180:181], v[180:181], v[{40+2*q}:{41+2*q}]")
            e(f"v_pk_fma_f32 v[182:183], v[{40+2*q}:{41+2*q}], v[{40+2*q}:{41+2*q}], v[182:183]")
        e("v_add_f32 v180, v180, v181\nv_add_f32 v181, v182, v183")
        self.allred2('v180', 'v181', 'v_add_f32')
        e(f"""s_lshl_b32 {sT0}, {sRHO}, 10
s_lshl_b32 {sT1}, {sJ}, 3
s_add_u32 {sT0}, {sT0}, {sT1}
s_add_u32 {sT0}, {sT0}, {STB}
v_lshlrev_b32 v182, 6, v2""")

    def pack_store_tile(self, dstpack, BUF, FL, STB=None):
        e = self.e
        for q in range(8): e(f"v_cvt_pk_bf16_f32 v{dstpack+q}, v{40+2*q}, v{41+2*q}")
        if STB is not None: self.row_stats_pub(STB)
        e(f"""s_lshl_b32 {sT2}, {sRHO}, 14
s_lshl_b32 {sT3}, {sJ}, 11
s_add_u32 {sT2}, {sT2}, {sT3}
s_add_u32 {sT2}, {sT2}, {BUF}""")
        self.pub([f"buffer_store_dwordx4 v[{dstpack}:{dstpack+3}], v1, {srd(SRD_WS)}, {sT2} offen",
                  f"buffer_store_dwordx4 v[{dstpack+4}:{dstpack+7}], v1, {srd(SRD_WS)}, {sT2} offen offset:1024"])
        if STB is not None:
            e("s_mov_b64 exec, 0xffff")
            self.pub([f"buffer_store_dwordx2 v[180:181], v182, {srd(SRD_WS)}, {sT0} offen"])
            e("s_mov_b64 exec, -1")

    def tile_flag(self, FL):
        self.e(f"""s_lshl_b32 {sT0}, {sRHO}, 5
s_lshl_b32 {sT1}, {sJ}, 2
s_add_u32 {sT0}, {sT0}, {sT1}
s_add_u32 {sT0}, {sT0}, {FL}""")
        self.flag(sT0)

    def poll8(self, FL):
        self.e(f"""s_lshl_b32 {sT0}, {sRHO}, 5
s_add_u32 {sT0}, {sT0}, {FL}
v_and_b32 v184, 7, v0
v_lshlrev_b32 v184, 2, v184
v_add_u32 v184, {sT0}, v184""")
        self.poll('v184', 'v185')

    def load_stats(self, STB, tag):
        self.e(f"""s_lshl_b32 {sT0}, {sRHO}, 10
s_add_u32 {sT0}, {sT0}, {STB}
v_lshlrev_b32 v184, 6, v2
v_lshl_add_u32 v184, v3, 4, v184""")
        self.e(f"buffer_load_dwordx4 v[188:191], v184, {srd(SRD_WS)}, {sT0} offen sc1", tag=tag)

    def reduce_stats(self, tag, m, rs):
        e = self.e
        self.k.wait_vm(tag)
        e("v_pk_add_f32 v[188:189], v[188:189], v[190:191]")
        self.allred2('v188', 'v189', 'v_add_f32')
        e(f"""v_mul_f32 v{m}, {sINV}, v188
v_mul_f32 v189, {sINV}, v189
v_fma_f32 v189, -v{m}, v{m}, v189
v_max_f32 v189, 0, v189
v_add_f32 v190, {sEPS}, v189
v_rsq_f32 v{rs}, v190""")

    def gelu_pairs(self, regs, T):
        e = self.e
        n = len(regs)
        for i, y in enumerate(regs):
            t = T + 2*i
            e(f"v_pk_mul_f32 v[{t}:{t+1}], v[{y}:{y+1}], v[{y}:{y+1}]")
        for i, y in enumerate(regs):
            t = T + 2*i
            e(f"v_pk_fma_f32 v[{t}:{t+1}], v[{t}:{t+1}], s[80:81], s[80:81] op_sel:[0,1,0] op_sel_hi:[1,1,0]")
        for i, y in enumerate(regs):
            t = T + 2*i
            e(f"v_pk_mul_f32 v[{t}:{t+1}], v[{t}:{t+1}], v[{y}:{y+1}]")
        for i, y in enumerate(regs):
            t = T + 2*i
            e(f"v_exp_f32 v{t}, v{t}\nv_exp_f32 v{t+1}, v{t+1}")
        for i, y in enumerate(regs):
            t = T + 2*i
            e(f"v_pk_add_f32 v[{t}:{t+1}], v[{t}:{t+1}], s[94:95]")
        for i, y in enumerate(regs):
            t = T + 2*i
            e(f"v_rcp_f32 v{t}, v{t}\nv_rcp_f32 v{t+1}, v{t+1}")
        for i, y in enumerate(regs):
            t = T + 2*i
            e(f"v_pk_mul_f32 v[{y}:{y+1}], v[{y}:{y+1}], v[{t}:{t+1}]")

    def phase_wo(self):
        e = self.e; k = self.k
        k.wait_vm('wo'); e("s_barrier")
        self.gemm64_pre(0, 'ao')
        k.wait_vm('resx')
        self.unpack16(240, 40)
        e(f"""s_lshl_b32 {sT0}, {sR}, 1
s_add_u32 {sT0}, {sT0}, {sA}
s_lshl_b32 {sT0}, {sT0}, 6
s_add_u32 {sT0}, {sT0}, {F_O}
v_lshlrev_b32 v184, 2, v2
v_add_u32 v184, {sT0}, v184""")
        self.poll('v184', 'v185')
        self.stamp('o ready')
        e(f"s_lshl_b32 {sT0}, {sRHO}, 14\ns_add_u32 {sT0}, {sT0}, {OB}")
        self.load_frags(sT0, 'bo')
        self.gemm64_main('ao', 'bo')
        self.stamp('wo gemm')
        self.pack_store_tile(232, HB, F_H, ST_H)
        self.tile_flag(F_H)

    def cs1(self):
        e = self.e; k = self.k
        SC = 152*1024
        e(f"s_lshl_b32 {sT0}, {sW}, 5\nv_xor_b32 v184, {sT0}, v14\nv_add_u32 v184, 0x10000, v184")
        self.zero(range(188, 192))
        for half in range(2):
            for tt in range(8):
                t = half*8 + tt
                for h in range(2):
                    e(f"ds_read_b64_tr_b16 v[{64+4*tt+2*h}:{64+4*tt+2*h+1}], v184 offset:{t*4096 + h*2048}", tag=f'c1{t}')
            for tt in range(8):
                t = half*8 + tt
                k.wait_lg(f'c1{t}')
                e(f"v_mfma_f32_16x16x32_bf16 v[188:191], v[{64+4*tt}:{67+4*tt}], v[20:23], v[188:191]")
        e(f"""s_lshl_b32 {sT0}, {sW}, 6
v_lshlrev_b32 v185, 4, v3
v_add_u32 v185, {SC}, v185
v_add_u32 v186, {sT0}, v185
s_mov_b64 exec, {sS0}""")
        e("ds_write_b128 v186, v[188:191]", tag='c1w')
        e("s_mov_b64 exec, -1")
        k.wait_lg('c1w')
        e("s_barrier")
        for ct in range(4):
            e(f"ds_read_b128 v[{208+4*ct}:{211+4*ct}], v185 offset:{ct*64}", tag='c1r')

    def phase_w1(self):
        e = self.e; k = self.k
        k.wait_vm('w1'); e("s_barrier")
        self.dma_w64(SRD_W2, 0, 'w2')
        self.cs1()
        self.gemm64_pre(0x10000, 'a1')
        self.zero(range(40, 56))
        self.poll8(F_H)
        self.stamp('h ready')
        self.load_stats(ST_H, 'sth')
        e(f"s_lshl_b32 {sT0}, {sRHO}, 14\ns_add_u32 {sT0}, {sT0}, {HB}")
        self.load_frags(sT0, 'b1')
        self.reduce_stats('sth', 230, 231)
        e(f"""v_mul_f32 v190, v231, v231
v_mul_f32 v190, v189, v190
v_add_f32 v190, {sEPS}, v190
v_rsq_f32 v190, v190
v_mul_f32 v228, v231, v190""")
        self.gemm64_main('a1', 'b1')
        self.stamp('w1 gemm')
        k.wait_lg('c1r')
        for q in range(8):
            e(f"v_pk_fma_f32 v[{40+2*q}:{41+2*q}], v[{208+2*q}:{209+2*q}], v[230:231], v[{40+2*q}:{41+2*q}] op_sel_hi:[1,0,1] neg_lo:[1,0,0] neg_hi:[1,0,0]")
        for q in range(8):
            e(f"v_pk_mul_f32 v[{40+2*q}:{41+2*q}], v[{40+2*q}:{41+2*q}], v[228:229] op_sel_hi:[1,0]")
        self.gelu_pairs([40+2*q for q in range(8)], 64)
        self.pack_store_tile(192, HHB, F_HH)
        Lh = k.label('Lhalo'); Lh2 = k.label('Lhalo')
        e(f"""s_and_b32 {sT0}, {sRHO}, 15
s_cmp_eq_u32 {sT0}, 0
s_cbranch_scc0 {Lh2}
s_cmp_eq_u32 {sX}, 0
s_cbranch_scc1 {Lh}
s_lshl_b32 {sT1}, {sX}, 1
s_sub_u32 {sT1}, {sT1}, 1            ; (x-1)*2 + 1
s_branch {Lh}_go
{Lh2}:
s_cmp_eq_u32 {sT0}, 15
s_cbranch_scc0 {Lh}
s_cmp_eq_u32 {sX}, 7
s_cbranch_scc1 {Lh}
s_lshl_b32 {sT1}, {sX}, 1
s_add_u32 {sT1}, {sT1}, 2            ; (x+1)*2 + 0
{Lh}_go:""")
        k.push()
        e(f"""s_lshl_b32 {sT2}, {sT1}, 14
s_lshl_b32 {sT3}, {sJ}, 11
s_add_u32 {sT2}, {sT2}, {sT3}
s_add_u32 {sT2}, {sT2}, {HALO}
buffer_store_dwordx4 v[192:195], v1, {srd(SRD_WS)}, {sT2} offen sc1
buffer_store_dwordx4 v[196:199], v1, {srd(SRD_WS)}, {sT2} offen offset:1024 sc1
s_lshl_b32 {sT3}, {sT1}, 5
s_lshl_b32 {sT4}, {sJ}, 2
s_add_u32 {sT3}, {sT3}, {sT4}
s_add_u32 {sT3}, {sT3}, {F_HALO}""", nocount=True)
        self.flag(sT3, force_sc1=True)
        k.pop()
        e(f"{Lh}:")
        self.tile_flag(F_HH)

    def phase_w2(self):
        e = self.e; k = self.k
        k.wait_vm('w2'); e("s_barrier")
        self.mlp_setup()
        self.dma_w3(0); self.dma_w3(1)
        self.gemm64_pre(0, 'a2')
        e(f"s_lshl_b32 {sT0}, {sRHO}, 4\nv_add_u32 v204, {sT0}, v2")
        e(f"s_lshl_b32 {sT1}, {sX}, 8")
        for q, d in enumerate((1, -1, 2, -2)):
            va = 200 + q
            e(f"""v_add_u32 v205, {-d & 0xffffffff}, v204          ; R
v_lshrrev_b32 v206, 4, v205
v_lshlrev_b32 v206, 14, v206          ; tile*16384
v_and_b32 v207, 15, v205
v_lshl_add_u32 v207, v3, 4, v207      ; lane'
v_lshl_add_u32 v206, v207, 4, v206
v_add_u32 v{va}, {HHB}, v206
v_subrev_u32 v206, {sT1}, v205
v_cmp_lt_u32 vcc, 0xff, v206
s_lshl_b32 {sT2}, {sX}, 1
s_add_u32 {sT2}, {sT2}, {0 if d > 0 else 1}
s_lshl_b32 {sT2}, {sT2}, 14
s_add_u32 {sT2}, {sT2}, {HALO}
v_lshlrev_b32 v207, 4, v207
v_add_u32 v207, {sT2}, v207
v_cndmask_b32 v{va}, v{va}, v207, vcc
v_cmp_lt_u32 vcc, 0x7ff, v205
v_mov_b32 v207, {hex(OOB)}
v_cndmask_b32 v{va}, v{va}, v207, vcc""")
        self.unpack16(232, 40)
        e("v_mul_f32 v229, v230, v231")
        for q in range(8):
            e(f"v_pk_fma_f32 v[{40+2*q}:{41+2*q}], v[{40+2*q}:{41+2*q}], v[230:231], v[228:229] op_sel:[0,1,1] op_sel_hi:[1,1,1] neg_lo:[0,0,1] neg_hi:[0,0,1]")
        e(f"""s_lshl_b32 {sT0}, {sRHO}, 5
s_add_u32 {sT0}, {sT0}, {F_HH}
v_and_b32 v184, 7, v0
v_lshlrev_b32 v184, 2, v184             ; j*4
v_add_u32 v185, {sT0}, v184             ; own
s_and_b32 {sT1}, {sRHO}, 15
s_sub_u32 {sT2}, {sT0}, 32
s_lshl_b32 {sT3}, {sX}, 6
s_add_u32 {sT3}, {sT3}, {F_HALO}        ; F_HALO[(x*2+0)*32]
s_cmp_eq_u32 {sT1}, 0
s_cselect_b32 {sT2}, {sT3}, {sT2}
s_cmp_eq_u32 {sRHO}, 0
s_cselect_b32 {sT2}, {sT0}, {sT2}
s_add_u32 {sT4}, {sT0}, 32
s_add_u32 {sT3}, {sT3}, 32
s_cmp_eq_u32 {sT1}, 15
s_cselect_b32 {sT4}, {sT3}, {sT4}
s_cmp_eq_u32 {sRHO}, 127
s_cselect_b32 {sT4}, {sT0}, {sT4}
v_lshrrev_b32 v186, 3, v0               ; lane>>3
v_bfe_u32 v187, v0, 1, 1
v_add_u32 v206, {sT2}, v184
v_add_u32 v207, {sT4}, v184
v_lshl_or_b32 v186, v186, 1, v187
v_cmp_eq_u32 vcc, 2, v186
v_cndmask_b32 v185, v185, v206, vcc
v_cmp_eq_u32 vcc, 5, v186
v_cndmask_b32 v185, v185, v207, vcc""")
        self.poll('v185', 'v186')
        self.stamp('hh ready')
        e(f"s_mov_b32 {sT0}, 0")
        self.load_frags(sT0, 'b2', lambda t: f'v{200 + t//4}')
        self.gemm64_main('a2', 'b2')
        self.stamp('w2 gemm')
        self.unpack16(232, 208)
        for q in range(8):
            e(f"v_pk_add_f32 v[{208+2*q}:{209+2*q}], v[{208+2*q}:{209+2*q}], v[{40+2*q}:{41+2*q}]")
        for q in range(16):
            e(f"v_accvgpr_write_b32 a{240+q}, v{208+q}")
        self.pack_store_tile(192, X1B, F_X1, ST_X1)
        self.tile_flag(F_X1)

    def mlp_setup(self):
        e = self.e
        e(f"""s_mul_i32 {sF0}, {sJ}, 192
s_mul_i32 {sT0}, {sJ}, 160
s_add_u32 {sT0}, {sT0}, 96
s_cmp_lt_u32 {sJ}, 3
s_cselect_b32 {sF0}, {sF0}, {sT0}
s_cselect_b32 {sFW}, 8, 4
v_lshrrev_b32 v18, 3, v0
v_and_b32 v5, 6, v18
v_and_b32 v6, 7, v0
v_xor_b32 v6, v6, v5                   ; chunk
v_mul_u32_u24 v4, 2752, v18
v_lshl_add_u32 v4, v6, 4, v4
s_lshl_b32 {sT0}, {sF0}, 1
v_add_u32 v4, {sT0}, v4
v_cmp_gt_u32 vcc, {sFW}, v6
v_mov_b32 v5, {hex(OOB)}
v_cndmask_b32 v5, v5, v4, vcc
v_lshlrev_b32 v6, 4, v6
v_lshl_add_u32 v6, v18, 10, v6
s_lshl_b32 {sT0}, {sW}, 8
s_lshl_b32 {sT1}, {sF0}, 10
s_add_u32 {sT0}, {sT0}, {sT1}
v_add_u32 v6, {sT0}, v6""")

    @staticmethod
    def slot(c): return ((c + 2) % 4) * 32768

    def dma_w3(self, c):
        for q in range(3):
            for u in range(2):
                self.e(f"""s_add_u32 m0, {sM0W}, {self.slot(c) + 8192 + q*8192 + u*1024}
s_mul_i32 {sT5}, {sW}, {16*2752}
s_add_u32 {sT5}, {sT5}, {(64*c + 8*u)*2752 + q*128}""")
                self.e(f"buffer_load_dwordx4 v{4 if q < 2 else 5}, {srd(SRD_W3)}, {sT5} offen lds", tag=f'm{c}')

    def dma_x1(self, c):
        for u in range(2):
            self.e(f"""s_add_u32 m0, {sM0W}, {self.slot(c) + u*1024}
s_lshl_b32 {sT5}, {sRHO}, 14
s_add_u32 {sT5}, {sT5}, {X1B + (2*c+u)*1024}""")
            self.e(f"buffer_load_dwordx4 v1, {srd(SRD_WS)}, {sT5} offen sc1 lds", tag=f'm{c}')

    def dma_w4(self, u):
        for h in range(2):
            for un in range(4):
                self.e(f"""s_lshl_b32 {sT4}, {sW}, 15
s_add_u32 m0, {sT4}, {(u%4)*8192 + h*4096 + un*1024}
s_mov_b32 {sT5}, {(32*u + 8*un)*1024 + h*128}""")
                self.e(f"buffer_load_dwordx4 v6, {srd(SRD_W4)}, {sT5} offen lds", tag=f'w4{u}')

    def phase_w3(self):
        e = self.e; k = self.k
        SC = 152*1024; HID = 128*1024
        e("s_barrier")
        self.dma_w3(2); self.dma_w3(3)
        self.poll8(F_X1)
        self.stamp('x1 ready')
        self.load_stats(ST_X1, 'stx')
        for c in range(4): self.dma_x1(c)
        self.reduce_stats('stx', 106, 107)
        e(f"""s_lshl_b32 {sT0}, {sW}, 7
v_lshlrev_b32 v104, 3, v2
v_add_u32 v104, {SC+1024}, v104
v_add_u32 v105, {sT0}, v104""")
        e("ds_write_b64 v105, v[106:107]", tag='s3w')
        self.zero(range(128, 188))
        e(f"s_lshl_b32 {sT0}, {sW}, 5\nv_xor_b32 v190, {sT0}, v14\nv_add_u32 v191, 0x10000, v190\nv_add_u32 v189, 0x10000, v1")
        k.wait_lg('s3w')
        for c in range(8):
            k.wait_vm(f'm{c}')
            e("s_barrier")
            if c == 0:
                for rl in range(4): e(f"ds_read_b64 v[{96+2*rl}:{97+2*rl}], v104 offset:{rl*128}", tag='s3r')
            if c >= 1 and c + 3 < 8:
                self.dma_w3(c+3); self.dma_x1(c+3)
            sl = self.slot(c)
            xb, wbs = ('v1', 'v190') if sl < 65536 else ('v189', 'v191')
            so = sl & 0xffff
            for u in range(2):
                t = 2*c + u
                for rl in range(4):
                    b = 40 + u*16 + rl*4
                    e(f"ds_read_b128 v[{b}:{b+3}], {xb} offset:{so + (rl*2+u)*1024}", tag=f'mx{t}')
                for q in range(3):
                    b = 72 + u*12 + q*4
                    for h in range(2):
                        e(f"ds_read_b64_tr_b16 v[{b+2*h}:{b+2*h+1}], {wbs} offset:{so + 8192 + q*8192 + u*4096 + h*2048}", tag=f'mw{t}')
            for u in range(2):
                t = 2*c + u
                k.wait_lg(f'mw{t}')
                for q in range(3):
                    wb = 72 + u*12 + q*4
                    for rl in range(4):
                        acc = 128 + (q*4+rl)*4; xbb = 40 + u*16 + rl*4
                        e(f"v_mfma_f32_16x16x32_bf16 v[{acc}:{acc+3}], v[{wb}:{wb+3}], v[{xbb}:{xbb+3}], v[{acc}:{acc+3}]")
                    e(f"v_mfma_f32_16x16x32_bf16 v[{176+4*q}:{179+4*q}], v[{wb}:{wb+3}], v[20:23], v[{176+4*q}:{179+4*q}]")
        self.stamp('w3 gemm')
        e("s_barrier")
        for u in range(4): self.dma_w4(u)
        k.wait_lg('s3r')
        e(f"""s_lshr_b32 {sT0}, {sW}, 1
s_lshl_b32 {sT0}, {sT0}, 10
s_and_b32 {sT1}, {sW}, 1
s_lshl_b32 {sT1}, {sT1}, 3
s_add_u32 {sT0}, {sT0}, {sT1}
s_add_u32 {sT0}, {sT0}, {HID}
v_add_u32 v94, {sT0}, v1""")
        for q in range(3):
            for rl in range(4):
                acc = 128 + (q*4+rl)*4; cs = 176 + 4*q; m = 96 + 2*rl
                for p in range(2):
                    e(f"v_pk_fma_f32 v[{acc+2*p}:{acc+2*p+1}], v[{cs+2*p}:{cs+2*p+1}], v[{m}:{m+1}], v[{acc+2*p}:{acc+2*p+1}] op_sel_hi:[1,0,1] neg_lo:[1,0,0] neg_hi:[1,0,0]")
                    e(f"v_pk_mul_f32 v[{acc+2*p}:{acc+2*p+1}], v[{acc+2*p}:{acc+2*p+1}], v[{m}:{m+1}] op_sel:[0,1] op_sel_hi:[1,1]")
            self.gelu_pairs([128 + q*16 + 2*i for i in range(8)], 40)
            for rl in range(4):
                acc = 128 + (q*4+rl)*4
                e(f"v_cvt_pk_bf16_f32 v{72+2*rl}, v{acc}, v{acc+1}\nv_cvt_pk_bf16_f32 v{73+2*rl}, v{acc+2}, v{acc+3}")
                e(f"ds_write_b64 v94, v[{72+2*rl}:{73+2*rl}] offset:{(rl*6 + 2*q)*1024}", tag='hidw')
        k.wait_lg('hidw')
        e("s_barrier")
        self.stamp('gelu done')

    def phase_w4(self):
        e = self.e; k = self.k
        HID = 128*1024
        self.zero(range(128, 256))
        e(f"s_lshl_b32 {sT0}, {sW}, 15")
        for ct in range(4): e(f"v_add_u32 v{120+ct}, {sT0}, v{14+ct}")
        e(f"v_add_u32 v124, {HID}, v1")
        nb = 0
        for u in range(6):
            k.wait_vm(f'w4{u}')
            hb = 40 + (u % 2)*16
            for rl in range(4):
                e(f"ds_read_b128 v[{hb+4*rl}:{hb+4*rl+3}], v124 offset:{(rl*6+u)*1024}", tag=f'h{u}')
            bufs = []
            for h in range(2):
                wb = 72 + (nb % 3)*16; nb += 1; bufs.append(wb)
                for ct in range(4):
                    for ee in range(2):
                        e(f"ds_read_b64_tr_b16 v[{wb+4*ct+2*ee}:{wb+4*ct+2*ee+1}], v{120+ct} offset:{(u%4)*8192 + h*4096 + ee*2048}", tag=f'w{u}_{h}')
            for h in range(2):
                k.wait_lg(f'w{u}_{h}')
                wb = bufs[h]
                for ct in range(4):
                    cti = h*4 + ct
                    for rl in range(4):
                        acc = 128 + cti*16 + rl*4
                        e(f"v_mfma_f32_16x16x32_bf16 v[{acc}:{acc+3}], v[{wb+4*ct}:{wb+4*ct+3}], v[{hb+4*rl}:{hb+4*rl+3}], v[{acc}:{acc+3}]")
            if u + 4 < 6: self.dma_w4(u+4)
        self.stamp('w4 gemm')
        e(f"""s_lshl_b32 {sT0}, {sR}, 3
s_lshl_b32 {sT1}, {sW}, 1
s_add_u32 {sT0}, {sT0}, {sT1}        ; r*8 + 2w
s_lshl_b32 {sT1}, {sT0}, 16          ; *4*16384
s_lshl_b32 {sT2}, {sJ}, 11
s_add_u32 {sT1}, {sT1}, {sT2}
s_add_u32 {sT1}, {sT1}, {PB}""")
        for jj in range(2):
            lines = []
            for rl in range(4):
                for pp in range(2):
                    d = 40 + (rl*2+pp)*4
                    for i in range(2):
                        cti = jj*4 + pp*2 + i
                        acc = 128 + cti*16 + rl*4
                        e(f"v_cvt_pk_bf16_f32 v{d+2*i}, v{acc}, v{acc+1}\nv_cvt_pk_bf16_f32 v{d+2*i+1}, v{acc+2}, v{acc+3}")
            sregs = []
            for rl in range(4):
                e(f"s_add_u32 s{96+rl}, {sT1}, {jj*65536 + rl*16384}")
                for pp in range(2):
                    d = 40 + (rl*2+pp)*4
                    lines.append(f"buffer_store_dwordx4 v[{d}:{d+3}], v1, {srd(SRD_WS)}, s{96+rl} offen offset:{pp*1024}")
            self.pub(lines)
        e(f"""s_lshl_b32 {sT0}, {sT0}, 5
s_lshl_b32 {sT2}, {sJ}, 2
s_add_u32 {sT0}, {sT0}, {sT2}
s_add_u32 {sT0}, {sT0}, {F_P}
s_add_u32 {sT2}, {sT0}, 32
s_waitcnt vmcnt(0)
s_mov_b64 exec, 1""")
        self.pub([f"buffer_store_dword v9, off, {srd(SRD_WS)}, {sT0}", f"buffer_store_dword v9, off, {srd(SRD_WS)}, {sT2}"])
        e("s_mov_b64 exec, -1")

    def phase_final(self):
        e = self.e; k = self.k
        e(f"""s_lshl_b32 {sT0}, {sR}, 3
s_add_u32 {sT0}, {sT0}, {sJ}
s_lshl_b32 {sT1}, {sT0}, 5
s_add_u32 {sT1}, {sT1}, {F_P}
v_and_b32 v184, 7, v0
v_lshlrev_b32 v184, 2, v184
v_add_u32 v184, {sT1}, v184""")
        self.poll('v184', 'v185')
        self.stamp('p ready')
        e(f"""s_lshl_b32 {sT0}, {sT0}, 2
s_add_u32 {sT0}, {sT0}, {sW}
s_lshl_b32 {sT0}, {sT0}, 14
s_add_u32 {sT0}, {sT0}, {PB}""")
        self.load_frags(sT0, 'bp')
        for t in range(16):
            k.wait_vm(f'bp{t}')
            pp = t & 1
            for i in range(2):
                a = 240 + (pp*2+i)*4
                A = 'v[26:29]' if i == 0 else 'v[24:27]'
                e(f"v_mfma_f32_16x16x32_bf16 a[{a}:{a+3}], {A}, v[{64+4*t}:{67+4*t}], a[{a}:{a+3}]")
        for q in range(16): e(f"v_accvgpr_read_b32 v{40+q}, a{240+q}")
        for q in range(8): e(f"v_cvt_pk_bf16_f32 v{56+q}, v{40+2*q}, v{41+2*q}")
        for pp in range(2):
            b = 56 + 4*pp
            e(f"v_permlane16_swap_b32 v{b}, v{b+2}\nv_permlane16_swap_b32 v{b+1}, v{b+3}")
        e(f"""s_lshl_b32 {sT0}, {sRHO}, 14
s_lshl_b32 {sT1}, {sJ}, 7
s_add_u32 {sT0}, {sT0}, {sT1}
v_and_b32 v184, 1, v3
v_lshlrev_b32 v184, 5, v184           ; (g&1)*32 bytes
v_lshrrev_b32 v185, 1, v3
v_lshl_add_u32 v184, v185, 4, v184    ; + (g>>1)*16
v_lshl_add_u32 v184, v2, 10, v184""")
        for pp in range(2):
            b = 56 + 4*pp
            e(f"buffer_store_dwordx4 v[{b}:{b+3}], v184, {srd(SRD_OUT)}, {sT0} offen offset:{pp*64}")

    def epoch_update(self):
        e = self.e
        L = self.k.label('Lep')
        e(f"""s_cmp_lg_u32 s2, 0
s_cbranch_scc1 {L}
s_cmp_lg_u32 {sW}, 0
s_cbranch_scc1 {L}
s_mov_b64 exec, 1
s_mov_b32 {sT0}, {EPOCH}
buffer_store_dword v9, off, {srd(SRD_WS)}, {sT0} sc1
s_mov_b64 exec, -1
{L}:""", nocount=True)

    def finish(self):
        e = self.e
        if self.debug:
            e(f"""s_lshl_b32 {sT0}, s2, 10
s_lshl_b32 {sT1}, {sW}, 8
s_add_u32 {sT0}, {sT0}, {sT1}
s_add_u32 {sT0}, {sT0}, {DBG}
v_writelane_b32 v19, {sTO}, 62
v_writelane_b32 v19, {sFAST}, 63
v_lshlrev_b32 v18, 2, v0
buffer_store_dword v19, v18, {srd(SRD_WS)}, {sT0} offen""")
        e("s_waitcnt vmcnt(0)")
        e("L_end:\ns_endpgm")

    def build(self):
        k = self.k
        order = ['prologue','pass_k','pass_v','kfeat','pass_q','reduce','qfeat','o','wo','w1','w2','w3','w4','final']
        def stop(n): return self.stop_after == n
        self.prologue()
        self.e("s_mov_b32 s94, 1.0\ns_mov_b32 s95, 1.0")
        self.resid_x()
        self.stamp('prologue')
        self.pass_k(); self.stats1(); self.stamp('pass k')
        self.pass_vq('v'); self.stamp('pass v')
        self.check_ids()
        self.kfeat_publish(); self.stamp('kv1 pub')
        self.pass_vq('q'); self.stamp('pass q')
        k.push(); self.reduce1(); k.pop()
        self.stamp('reduce1')
        self.e("s_barrier")
        self.dma_w64(SRD_WO, 0, 'wo')
        self.dma_w64(SRD_W1, 0x10000, 'w1')
        self.qfeat(); self.stamp('qfeat')
        self.final_kv_and_o(); self.stamp('o pub')
        self.phase_wo(); self.epoch_update(); self.stamp('h pub')
        self.phase_w1(); self.stamp('hh pub')
        self.phase_w2(); self.stamp('x1 pub')
        self.phase_w3()
        self.phase_w4(); self.stamp('p pub')
        self.phase_final(); self.stamp('end')
        self.finish()
        body = k.finalize()
        lds = 160*1024
        hdr = open('cdna_kernels/' + NAME[:-7] + '.s.ref').read().split('\n')
        top = [l for l in hdr if l.startswith(';') and '@launch' not in l and 'Override' not in l and 'grid=ceil' not in l]
        txt = '\n'.join(top) + '\n'
        txt += f"; @launch grid=(256,1,1) block=(256,1,1) lds={lds}\n"
        txt += f""".amdgcn_target "amdgcn-amd-amdhsa--gfx950"
.text
.globl {NAME}
.p2align 8
.type {NAME},@function
{NAME}:
{body}
.section .rodata,"a"
.p2align 6
.amdhsa_kernel {NAME}
  .amdhsa_next_free_vgpr 512
  .amdhsa_next_free_sgpr 102
  .amdhsa_accum_offset 256
  .amdhsa_group_segment_fixed_size 0
  .amdhsa_kernarg_size 96
  .amdhsa_user_sgpr_count 2
  .amdhsa_user_sgpr_kernarg_segment_ptr 1
  .amdhsa_system_sgpr_workgroup_id_x 1
  .amdhsa_float_denorm_mode_32 3
.end_amdhsa_kernel
"""
        return txt

if __name__ == '__main__':
    debug = '--nodebug' not in sys.argv
    g = G(debug=debug)
    txt = g.build()
    out = sys.argv[1] if len(sys.argv) > 1 and not sys.argv[1].startswith('--') else 'k.s'
    open(out, 'w').write(txt)
    open('stamps.txt', 'w').write('\n'.join(g.stamp_names))
    print('wrote', out, len(txt), 'bytes', txt.count('\n'), 'lines')
```

```python
import re

TRANS = ('v_exp_f32','v_log_f32','v_rcp_f32','v_rsq_f32','v_sqrt_f32','v_sin_f32','v_cos_f32')

class Ins:
    __slots__ = ('text','kind','tag','nocount','op','wr','rd','cls','passes','srcC','comment')
    def __init__(self, text, kind='i', tag=None, nocount=False):
        self.text = text; self.kind = kind; self.tag = tag; self.nocount = nocount; self.comment = None

REG_RE = re.compile(r'\b([vas])(?:(\d+)|\[(\d+):(\d+)\])')
def regs_of(tok):
    out = []
    for m in REG_RE.finditer(tok):
        t = m.group(1)
        if m.group(2) is not None: out.append((t, int(m.group(2))))
        else: out += [(t, i) for i in range(int(m.group(3)), int(m.group(4))+1)]
    if re.search(r'\bvcc\b', tok): out += [('s','vcc')]
    if re.search(r'\bexec\b', tok): out += [('s','exec')]
    if re.search(r'\bm0\b', tok): out += [('s','m0')]
    return out

def split_ops(s):
    ops = []; depth = 0; cur = ''
    for ch in s:
        if ch == '[': depth += 1
        if ch == ']': depth -= 1
        if ch == ',' and depth == 0: ops.append(cur.strip()); cur = ''
        else: cur += ch
    if cur.strip(): ops.append(cur.strip())
    return ops

def analyze(ins):
    t = ins.text.split(';')[0].strip()
    parts = t.split(None, 1)
    op = parts[0]; rest = parts[1] if len(parts) > 1 else ''
    ins.op = op; ins.wr = []; ins.rd = []; ins.cls = 'other'; ins.passes = 0; ins.srcC = []
    ops = split_ops(rest)
    if op.startswith('v_mfma'):
        ins.cls = 'mfma'
        ins.passes = 8 if '32x32' in op else 4
        ins.wr = regs_of(ops[0]); ins.rd = regs_of(ops[1]) + regs_of(ops[2]) + regs_of(ops[3].split()[0])
        ins.srcC = regs_of(ops[3].split()[0])
    elif op.startswith('v_'):
        base = op.replace('_e32','').replace('_e64','').replace('_dpp','').replace('_sdwa','')
        ins.cls = 'valu'
        if base in TRANS: ins.cls = 'trans'
        mods = ops[-1] if ops else ''
        if 'row_' in t or 'quad_perm' in t or '_dpp' in op or 'wave_' in t: ins.cls = 'dpp'
        if base.startswith('v_permlane'):
            ins.cls = 'permlane'; ins.wr = regs_of(ops[0]) + regs_of(ops[1]); ins.rd = list(ins.wr)
        elif base.startswith('v_cmp'):
            ins.wr = regs_of(ops[0]); ins.rd = sum((regs_of(o.split()[0]) for o in ops[1:]), [])
            if base.startswith('v_cmpx'): ins.wr += [('s','exec')]
        elif base in ('v_readfirstlane_b32','v_readlane_b32'):
            ins.cls = 'readlane'; ins.wr = regs_of(ops[0]); ins.rd = sum((regs_of(o.split()[0]) for o in ops[1:]), [])
        elif base == 'v_writelane_b32':
            ins.cls = 'writelane'; ins.wr = regs_of(ops[0]); ins.rd = sum((regs_of(o.split()[0]) for o in ops[1:]), []) + ins.wr
        elif base in ('v_add_co_u32','v_sub_co_u32','v_addc_co_u32','v_subb_co_u32'):
            ins.wr = regs_of(ops[0]) + regs_of(ops[1]); ins.rd = sum((regs_of(o.split()[0]) for o in ops[2:]), [])
        else:
            ins.wr = regs_of(ops[0]); ins.rd = sum((regs_of(o.split()[0]) for o in ops[1:]), [])
            if base in ('v_fmac_f32','v_dot2c_f32_bf16','v_pk_fmac_f16'): ins.rd += ins.wr
            if base == 'v_cndmask_b32' and len(ops) == 3: ins.rd += [('s','vcc')]
    elif op.startswith('buffer_') or op.startswith('global_'):
        ins.cls = 'vmem'
        islds = re.search(r'\blds\b', t) is not None
        if 'load' in op and not islds:
            ins.wr = regs_of(ops[0]); ins.rd = sum((regs_of(o.split()[0]) for o in ops[1:]), [])
        else:
            ins.rd = sum((regs_of(o.split()[0]) for o in ops), [])
            if islds: ins.rd += [('s','m0')]
            if 'store' in op: ins.cls = 'vstore'
    elif op.startswith('ds_'):
        ins.cls = 'ds'
        if op.startswith('ds_read') or 'permute' in op or 'swizzle' in op:
            ins.wr = regs_of(ops[0]); ins.rd = sum((regs_of(o.split()[0]) for o in ops[1:]), [])
        else:
            ins.rd = sum((regs_of(o.split()[0]) for o in ops), [])
    elif op.startswith('s_'):
        ins.cls = 'salu'
        if op in ('s_waitcnt','s_nop','s_barrier','s_branch','s_endpgm','s_sleep','s_setprio') or op.startswith('s_cbranch'):
            pass
        elif op.startswith('s_cmp') or op.startswith('s_bitcmp'):
            ins.rd = sum((regs_of(o.split()[0]) for o in ops), [])
        elif op in ('s_setpc_b64',):
            ins.rd = regs_of(ops[0])
        else:
            ins.wr = regs_of(ops[0]); ins.rd = sum((regs_of(o.split()[0]) for o in ops[1:]), [])
            if 'saveexec' in op: ins.wr += [('s','exec')]; ins.rd += [('s','exec')]
    return ins

def nstates(ins):
    if ins.op == 's_nop': return int(ins.text.split()[1].split(';')[0]) + 1
    return 1

def need(p, c):
    n = 0
    pw = set(p.wr); cr = set(c.rd); cw = set(c.wr)
    isvalu = lambda i: i.cls in ('valu','trans','dpp','permlane','readlane','writelane')
    vw = set(r for r in pw if r[0] in 'va')
    sw = set(r for r in pw if r[0] == 's')
    if p.cls == 'mfma':
        D = vw
        if c.cls == 'mfma':
            C = set(c.srcC); AB = cr - C if False else set(c.rd[:len(c.rd)-len(c.srcC)])
            if AB & D: n = max(n, {4:8, 8:12}[p.passes])
            if C & D:
                if C == D and c.passes == p.passes: pass
                else: n = max(n, {4:6, 8:10}[p.passes])
            if (cw & D) and not (C & D): n = max(n, {4:8, 8:12}[p.passes])
        elif isvalu(c) or c.cls in ('vmem','vstore','ds'):
            if (cr | cw) & D: n = max(n, {4:8, 8:12}[p.passes])
        if isvalu(c) and (cw & set(p.srcC)): n = max(n, {4:3, 8:7}[p.passes])
    if isvalu(p):
        if c.cls == 'mfma' and (cr & vw): n = max(n, 2)
        if c.cls in ('dpp',) and (cr & vw): n = max(n, 2)
        if c.cls == 'permlane' and (cr & vw): n = max(n, 2)
        if c.cls == 'readlane' and (cr & vw): n = max(n, 1)
        if p.cls == 'trans' and isvalu(c) and c.cls != 'trans' and (cr & vw): n = max(n, 1)
        if p.cls == 'trans' and c.cls == 'trans' and (cr & vw): n = max(n, 1)
        if sw:
            if isvalu(c) and (cr & sw): n = max(n, 2)
            if c.cls in ('readlane','writelane') and (cr & sw): n = max(n, 4)
            if c.cls in ('vmem','vstore') and (cr & sw): n = max(n, 5)
            if ('s','exec') in sw and (isvalu(c) or c.cls == 'mfma'): n = max(n, 5)
            if c.op.startswith('s_cbranch_vcc') and ('s','vcc') in sw: n = max(n, 0)
            if c.cls == 'salu' and (cr & sw): n = max(n, 1)
    if p.cls == 'vstore' and ('x4' in p.op or 'x3' in p.op):
        data = set(r for r in p.rd if r[0] in 'va')
        if (cw & data): n = max(n, 2)
    if p.cls == 'salu' and ('s','m0') in pw and c.cls in ('vmem',) and ('s','m0') in cr: n = max(n, 1)
    if p.cls == 'salu' and ('s','exec') in pw and c.cls == 'mfma': n = max(n, 4)
    return n

class Kern:
    def __init__(self):
        self.L = []
        self.lbl = 0
    def e(self, text, tag=None, nocount=False):
        for line in text.strip().split('\n'):
            line = line.strip()
            if not line or line.startswith(';'): continue
            np_ = line.startswith('~')
            if np_: line = line[1:]
            if line.endswith(':'): self.L.append(Ins(line, 'label_np' if np_ else 'label'))
            else:
                i = Ins(line, 'i', tag, nocount); i.comment = 'np' if np_ else None; self.L.append(i)
    def wait_vm(self, tag): self.L.append(Ins('', 'wvm', tag))
    def wait_lg(self, tag): self.L.append(Ins('', 'wlg', tag))
    def wait_vm_all(self): self.L.append(Ins('s_waitcnt vmcnt(0)', 'i'))
    def wait_lg_all(self): self.L.append(Ins('s_waitcnt lgkmcnt(0)', 'i'))
    def label(self, p='L'):
        self.lbl += 1; return f'{p}_{self.lbl}'
    def push(self): self.L.append(Ins('', 'push'))
    def pop(self): self.L.append(Ins('', 'pop'))
    def raw(self, text): self.L.append(Ins(text, 'raw'))
    def capture(self):
        prev = self.L; self.L = []; return prev
    def end_capture(self, prev):
        got = self.L; self.L = prev; return got
    def extend(self, lst): self.L += lst

    def finalize(self):
        out = []
        vmq = []; lgq = []
        done_vm = set(); done_lg = set()
        stack = []
        hist = []
        def flush_hist(n):
            pass
        def emit(ins):
            analyze(ins)
            reqn = 0; dist = 0
            for p in reversed(hist):
                nd = need(p, ins)
                if nd - dist > reqn: reqn = nd - dist
                dist += nstates(p)
                if dist > 20: break
            while reqn > 0:
                k = min(reqn, 16)
                nop = Ins(f's_nop {k-1}'); analyze(nop); out.append(nop); hist.append(nop); reqn -= k
            out.append(ins); hist.append(ins)
            if len(hist) > 40: del hist[:-30]
        def pad_worst():
                worst = 0; dist = 0
                for p in reversed(hist):
                    w = 0
                    if p.cls == 'mfma': w = {4:8, 8:12}[p.passes]
                    elif p.cls in ('valu','trans','dpp','permlane','readlane','writelane'):
                        w = 5 if any(r[0]=='s' for r in p.wr) else 2
                    elif p.cls == 'vstore': w = 2
                    elif p.cls == 'salu' and (('s','m0') in p.wr): w = 1
                    if w - dist > worst: worst = w - dist
                    dist += nstates(p)
                    if dist > 20: break
                while worst > 0:
                    k = min(worst, 16)
                    nop = Ins(f's_nop {k-1}'); analyze(nop); out.append(nop); hist.append(nop); worst -= k
        for ins in self.L:
            if ins.kind == 'raw':
                out.append(ins); continue
            if ins.kind == 'label_np':
                out.append(ins); continue
            if ins.kind == 'label':
                pad_worst()
                out.append(ins); del hist[:]
                continue
            if ins.kind == 'i' and getattr(ins, 'comment', None) != 'np' and (ins.text.startswith('s_branch') or ins.text.startswith('s_cbranch') or ins.text.startswith('s_swappc') or ins.text.startswith('s_setpc')):
                pad_worst()
            if ins.kind == 'push':
                stack.append((list(vmq), list(lgq), set(done_vm), set(done_lg))); continue
            if ins.kind == 'pop':
                vmq, lgq, done_vm, done_lg = stack.pop(); continue
            if ins.kind == 'wvm':
                if ins.tag in done_vm: continue
                assert ins.tag in vmq, f'wait_vm unknown tag {ins.tag}'
                idx = len(vmq) - 1 - vmq[::-1].index(ins.tag)
                n = len(vmq) - 1 - idx
                w = Ins(f's_waitcnt vmcnt({min(n,63)})'); emit(w)
                keep = min(n, 63)
                for t in vmq[:len(vmq)-keep]: done_vm.add(t)
                vmq = vmq[len(vmq)-keep:] if keep else []
                continue
            if ins.kind == 'wlg':
                if ins.tag in done_lg: continue
                assert ins.tag in lgq, f'wait_lg unknown tag {ins.tag}'
                idx = len(lgq) - 1 - lgq[::-1].index(ins.tag)
                n = len(lgq) - 1 - idx
                w = Ins(f's_waitcnt lgkmcnt({min(n,15)})'); emit(w)
                keep = min(n, 15)
                for t in lgq[:len(lgq)-keep]: done_lg.add(t)
                lgq = lgq[len(lgq)-keep:] if keep else []
                continue
            emit(ins)
            if ins.op == 's_waitcnt':
                m = re.search(r'vmcnt\((\d+)\)', ins.text)
                if m:
                    keep = int(m.group(1))
                    for t in vmq[:len(vmq)-keep] if keep else vmq: done_vm.add(t)
                    vmq = vmq[len(vmq)-keep:] if keep else []
                m = re.search(r'lgkmcnt\((\d+)\)', ins.text)
                if m:
                    keep = int(m.group(1))
                    for t in lgq[:len(lgq)-keep] if keep else lgq: done_lg.add(t)
                    lgq = lgq[len(lgq)-keep:] if keep else []
            elif not ins.nocount:
                if ins.cls in ('vmem','vstore'):
                    tag = ins.tag if ins.tag is not None else object()
                    vmq.append(tag); done_vm.discard(tag)
                elif ins.cls == 'ds' or ins.op.startswith('s_load') or ins.op in ('s_memtime','s_memrealtime'):
                    tag = ins.tag if ins.tag is not None else object()
                    lgq.append(tag); done_lg.discard(tag)
        return self.paginate(out)

    @staticmethod
    def sizes(out):
        import subprocess
        txt = '\n'.join(i.text for i in out if not (i.kind == 'raw' and i.text.startswith('@'))) + '\n'
        r = subprocess.run(['llvm-mc', '-arch=amdgcn', '-mcpu=gfx950', '-show-encoding'], input=txt, capture_output=True, text=True)
        assert r.returncode == 0, r.stderr[:2000]
        sz = [len(m.group(1).split(',')) for m in re.finditer(r'encoding: \[([^\]]*)\]', r.stdout)]
        return sz
    def paginate(self, out):
        if not getattr(self, 'paged', False):
            return '\n'.join(i.text for i in out) + '\n'
        lines = []; size = 0; page = 0; started = False
        szs = iter(self.sizes(out))
        for ins in out:
            if ins.kind == 'raw' and ins.text == '@PAGESTART':
                lines.append('s_branch Lpg_0_n\n.p2align 12\nLpg_0:\ns_setpc_b64 s[100:101]\nLpg_0_n:'); started = True; size = 4; page = 1; continue
            sz = next(szs) if ins.kind not in ('label','label_np','raw') else 0
            if started and size + sz > 4096 - 8 and getattr(ins, 'op', '') not in ('s_nop',) and ins.kind not in ('label','label_np'):
                lines.append(f's_branch Lpg_{page}_n\n.p2align 12\nLpg_{page}:\ns_setpc_b64 s[100:101]\nLpg_{page}_n:'); size = 4; page += 1
            lines.append(ins.text); size += sz
        self.npages = page
        return '\n'.join(lines) + '\n'
```

```python
import sys, struct, os
from asmgen import Kern, Ins

NAME = 'sequential_preLN__linear_kernel_hedgehog__mixer_s_mlp__prompt_kernel'
def f2u(x): return struct.unpack('<I', struct.pack('<f', x))[0]

EPOCH = 0
IDS   = 0x1000
F_KV2 = 0x2000
F_KV1 = 0x4000
F_HALO= 0x6000
FLG   = 0x8000
DBG   = 0x10000
KV1Z  = 0x60000
KV2K  = 0xA0000
KV2Z  = 0xE0000
ST    = 0x100000
HALO  = 0x180000
OB    = 0x200000
HHB   = 0x200000
HB    = 0x400000
X1B   = 0x400000
HIDB  = 0x600000
HIDS  = 44*1024
WS_BYTES = 0x10000000
OOB   = 0x40000000
INC   = 0x9E3779B0

SRD_X, SRD_WQKV, SRD_WPHI, SRD_WO, SRD_W1, SRD_W2, SRD_W3, SRD_W4, SRD_OUT, SRD_WS = [8+4*i for i in range(10)]
def srd(b): return f's[{b}:{b+3}]'
WS = srd(SRD_WS)
sX, sI, sJ, sR, sW, sA, sB, sT, sFAST, sTO, sXCC, sRHO = [f's{i}' for i in range(48, 60)]
sM0W = 's60'; sCNT = 's61'
sT0, sT1, sT2, sT3, sT4, sT5 = 's62','s63','s64','s65','s66','s67'
sMK1, sMK2, sMK3, sMKD = 's[68:69]','s[70:71]','s[72:73]','s[74:75]'
sS0 = 's[76:77]'; sLL = 's[78:79]'
sEPS = 's82'; sINV = 's83'; sTS = 's[84:85]'; sTS0 = 's86'; sF0 = 's87'; sFW = 's88'; sU0 = 's89'
sD = 's3'
sROT = 's89'
c4K, c8K, c12K, c16K = 's4', 's5', 's6', 's7'
CQ = ['0', c4K, c8K, c12K]
MF = 'v_mfma_f32_16x16x32_bf16'

STASH = ['kv1d','kv1z','kv1f','r_poll','r_kv','r_z','kv2d','kv2z','kv2f','k_poll','k_kv','k_z','o_st','o_fl','o_poll',
         'tile','flag','fpoll','st_st','st_ld','b_o','b_h','hh_st','hh_halo','hh_haloflag','hh_poll','halo_ld','hid_st','hid_ld','out_st','pwA','pwB','pwC']
AST = {n: 128+i for i, n in enumerate(STASH)}

class G:
    def __init__(self, debug=True, npages=0, opt=None):
        self.k = Kern(); self.k.paged = True
        self.debug = debug; self.npages = npages
        self.nstamp = 0; self.stamp_names = []
        self.opt = opt or {}
        self.ool = []

    def e(self, t, tag=None, nocount=False): self.k.e(t, tag, nocount)
    def cap(self, fn, *a, **kw):
        prev = self.k.capture(); fn(*a, **kw); return self.k.end_capture(prev)
    def stash(self, n, v): self.e(f"v_accvgpr_write_b32 a{AST[n]}, {v}")
    def fetch(self, n, v): self.e(f"v_accvgpr_read_b32 {v}, a{AST[n]}")

    def weave(self, main, *sides):
        k = self.k
        pos = [0]*len(sides); acc = [0.0]*len(sides)
        for ins in main:
            k.L.append(ins)
            if ins.kind == 'i' and ins.text.startswith('v_mfma'):
                for si, (lst, per) in enumerate(sides):
                    acc[si] += per
                    while acc[si] >= 1 and pos[si] < len(lst):
                        k.L.append(lst[pos[si]]); pos[si] += 1
                        if lst[pos[si]-1].kind == 'i': acc[si] -= 1
        for si, (lst, per) in enumerate(sides): k.L += lst[pos[si]:]

    def mix(self, a, b, ratio):
        k = self.k; pb = 0; cnt = 0.0
        for ins in a:
            k.L.append(ins)
            if ins.kind == 'i':
                cnt += 1
                while cnt >= ratio and pb < len(b):
                    k.L.append(b[pb]); pb += 1
                    if b[pb-1].kind == 'i': cnt -= ratio
        k.L += b[pb:]

    def stamp(self, name):
        if not self.debug: return
        n = self.nstamp; self.nstamp += 1; self.stamp_names.append(name)
        self.e(f"""s_memtime {sTS}
s_waitcnt lgkmcnt(0)
s_sub_u32 s84, s84, {sTS0}
v_writelane_b32 v19, s84, {n}""")

    def poll(self, vaddr, vtmp, off=0):
        k = self.k
        Lp = k.label('Lpoll'); Ld = k.label('Lpd')
        self.e(f"""s_movk_i32 {sCNT}, 1
s_cmp_lg_u32 {sTO}, 0
~s_cbranch_scc1 {Lp}
s_mov_b32 {sCNT}, 0x8000
~{Lp}:
buffer_load_dword {vtmp}, {vaddr}, {WS}, 0 offen offset:{off} sc1""", nocount=True)
        self.e(f"""s_waitcnt vmcnt(0)
v_cmp_ne_u32 vcc, {sT}, {vtmp}
~s_cbranch_vccz {Ld}
s_sub_u32 {sCNT}, {sCNT}, 1
s_cmp_lg_u32 {sCNT}, 0
~s_cbranch_scc1 {Lp}
s_mov_b32 {sTO}, 1
~{Ld}:""")

    def pub(self, lines, force_sc1=False, tag=None):
        k = self.k
        if force_sc1:
            for l in lines: self.e(l + ' sc1', tag=tag)
            return
        Ls = k.label('Lslow'); Ld = k.label('Lpub')
        self.e(f"s_cmp_eq_u32 {sFAST}, 0\n~s_cbranch_scc1 {Ls}")
        for l in lines: self.e(l, tag=tag)
        self.e(f"~s_branch {Ld}\n~{Ls}:")
        for l in lines: self.e(l + ' sc1', nocount=True)
        self.e(f"~{Ld}:")

    def flag(self, vaddr, offs, force_sc1=False, wait_tag=None):
        if wait_tag is None: self.e("s_waitcnt vmcnt(0)")
        else: self.k.wait_vm(wait_tag)
        if not isinstance(offs, list): offs = [offs]
        self.e("s_mov_b64 exec, 1")
        self.pub([f"buffer_store_dword v9, {vaddr}, {WS}, 0 offen offset:{o}" for o in offs], force_sc1)
        self.e("s_mov_b64 exec, -1")

    def allred(self, pairs, op):
        e = self.e
        for A, B in pairs: e(f"v_permlane32_swap_b32 {A}, {B}")
        for A, B in pairs: e(f"{op} {A}, {A}, {B}")
        for A, B in pairs: e(f"v_mov_b32 {B}, {A}")
        for A, B in pairs: e(f"v_permlane16_swap_b32 {A}, {B}")
        for A, B in pairs: e(f"{op} {A}, {A}, {B}")
        for A, B in pairs: e(f"v_mov_b32 {B}, {A}")
        for A, B in pairs: e(f"v_permlane32_swap_b32 {A}, {B}")

    def mf(self, acc, A, B, first=False, ag=False):
        r = 'a' if ag else 'v'
        self.e(f"{MF} {r}[{acc}:{acc+3}], {A}, {B}, " + ("0" if first else f"{r}[{acc}:{acc+3}]"))

    def dma(self, voff, srdb, soff, ldsaddr, tag, sc1=False, wave_lds=None):
        wl = wave_lds or sM0W
        self.e(f"s_add_u32 m0, {wl}, {ldsaddr}")
        if isinstance(soff, tuple): self.e(f"s_add_u32 {sD}, {soff[0]}, {soff[1]}")
        else: self.e(f"s_mov_b32 {sD}, {soff}")
        self.e(f"buffer_load_dwordx4 {voff}, {srd(srdb)}, {sD} offen{' sc1' if sc1 else ''} lds", tag=tag)
    def rot_chunk(self, c):
        self.e(f"s_add_u32 s0, {sROT}, {c}\ns_and_b32 s0, s0, 7\ns_mul_i32 s1, s0, {64*3072}\ns_lshl_b32 s0, s0, 7")
    def dma_x(self, c):
        for u in range(2): self.dma(f'v{4+u}', SRD_X, ('s0', 0), c*8192 + u*1024, f'k{c}')
    def dma_wqkv(self, c, part, ldsbase, tag, rot=True):
        if rot: self.rot_chunk(c)
        for u in range(2): self.dma(f'v{6+u}', SRD_WQKV, ('s1', part*1024), ldsbase + u*1024, tag)
    def dma_k(self, c):
        self.rot_chunk(c); self.dma_x(c); self.dma_wqkv(c, 1, 65536 + c*8192, f'k{c}', rot=False)
    def dma_w64(self, srdb, ldsbase, tag, units):
        units = list(units)
        for u in units:
            if u % 4 == 0 or u == units[0]:
                self.e(f"s_add_u32 s0, {sI}, {u >> 2}\ns_and_b32 s0, s0, 3\ns_lshl_b32 s1, s0, 15\ns_add_u32 s1, s1, s97\ns_lshl_b32 s0, s0, 12\ns_add_u32 s0, s0, s96")
            self.dma('v8', srdb, ('s1', (u & 3)*8192), ldsbase + (u & 3)*1024, tag, wave_lds='s0')

    def touches(self, pages):
        e = self.e; k = self.k
        if not self.npages: return
        pc = k.label('Lpc')
        e(f"s_getpc_b64 s[92:93]\n{pc}:")
        for w in range(4):
            mine = [p for p in pages[w::4] if p < self.npages]
            if not mine: continue
            L = k.label('Ltouch')
            e(f"s_cmp_eq_u32 {sW}, {w}\ns_cbranch_scc0 {L}")
            for p in mine:
                e(f"s_add_u32 s98, s92, Lpg_{p}-{pc}\ns_addc_u32 s99, s93, 0\ns_swappc_b64 s[100:101], s[98:99]")
            e(f"{L}:")

    PTRS = [(SRD_X,0,0x200000),(SRD_WQKV,8,0x180000),(SRD_WS,88,WS_BYTES),(SRD_WPHI,16,0x4000),(SRD_WO,24,0x80000),
            (SRD_W1,40,0x80000),(SRD_W2,48,0x80000),(SRD_W3,56,512*1376*2),(SRD_W4,64,1376*512*2),(SRD_OUT,72,0x200000)]

    def prologue(self):
        e = self.e; k = self.k; o = self.opt
        e(f"s_cmp_ge_u32 s2, 256\ns_cbranch_scc1 L_end")
        e(f"s_load_dwordx4 s[8:11], s[0:1], 0")
        if self.debug: e(f"s_memtime s[86:87]\ns_memrealtime s[90:91]")
        e(f"""
v_lshrrev_b32 v2, 6, v0
v_and_b32 v0, 63, v0
s_and_b32 {sX}, s2, 7
s_lshr_b32 {sT0}, s2, 3
v_readfirstlane_b32 {sW}, v2
s_and_b32 {sJ}, {sT0}, 7
s_lshr_b32 {sI}, {sT0}, 3
s_lshl_b32 {sR}, {sX}, 2
s_add_u32 {sR}, {sR}, {sI}
v_lshrrev_b32 v3, 4, v0
v_lshrrev_b32 v10, 3, v0
v_and_b32 v11, 7, v0
v_lshlrev_b32 v13, 10, v10
v_xor_b32 v14, v11, v3
v_mul_u32_u24 v15, 3072, v10
v_and_b32 v16, 2, v10
v_xor_b32 v16, v11, v16
s_lshl_b32 {sM0W}, {sW}, 11
s_lshl_b32 {sT0}, {sR}, 16
s_lshl_b32 {sT1}, {sW}, 14
s_add_u32 {sT0}, {sT0}, {sT1}
s_mul_i32 {sT2}, {sW}, {16*3072}
s_lshl_b32 {sT1}, {sJ}, 7
s_add_u32 {sT2}, {sT2}, {sT1}
v_add_u32 v13, {sT0}, v13
v_add_u32 v15, {sT2}, v15
v_lshl_add_u32 v4, v14, 4, v13
v_lshl_add_u32 v6, v16, 4, v15
v_xor_b32 v14, 4, v14
v_xor_b32 v16, 4, v16
v_lshl_add_u32 v5, v14, 4, v13
v_lshl_add_u32 v7, v16, 4, v15
v_add_u32 v5, 0x2000, v5
v_add_u32 v7, {8*3072}, v7
s_lshl_b32 {sROT}, {sI}, 1
s_add_u32 {sROT}, {sROT}, {sJ}
s_waitcnt lgkmcnt(0)
s_mov_b32 s12, s10
s_mov_b32 s13, s11
s_mov_b32 s{SRD_X+2}, 0x200000
s_mov_b32 s{SRD_X+3}, 0x20000
s_mov_b32 s{SRD_WQKV+2}, 0x180000
s_mov_b32 s{SRD_WQKV+3}, 0x20000
""")
        if o.get('prstamp'): self.stamp('  pr karg')
        for b,off,sz in self.PTRS[2:]: e(f"s_load_dwordx2 s[{b}:{b+1}], s[0:1], {off}")
        self.D1 = o.get('pk_depth', 4)
        dm = self.cap(lambda: [self.dma_k(c) for c in range(self.D1)])
        def setups():
            if self.npages:
                e(f"""s_getpc_b64 s[92:93]
~L_cpc:
s_lshr_b32 {sT0}, s2, 3
s_lshl_b32 {sT0}, {sT0}, 2
s_add_u32 {sT0}, {sT0}, {sW}
s_lshl_b32 {sT0}, {sT0}, 9
v_and_b32 v18, 3, v0
v_lshlrev_b32 v18, 7, v18
v_add_u32 v18, {sT0}, v18
s_add_u32 s92, s92, Lpg_0-L_cpc
s_addc_u32 s93, s93, 0
v_min_u32 v18, {self.npages*4096 - 128}, v18
global_load_dword v255, v18, s[92:93]""", tag='cpf')
            e(f"""
v_and_b32 v2, 15, v0
s_lshr_b32 {sA}, {sW}, 1
s_and_b32 {sB}, {sW}, 1
v_lshlrev_b32 v1, 4, v0
s_lshl_b32 {sRHO}, {sR}, 2
s_add_u32 {sRHO}, {sRHO}, {sW}
s_mov_b32 {sTO}, 0
s_getreg_b32 {sXCC}, hwreg(HW_REG_XCC_ID, 0, 4)
s_lshl_b32 s96, {sW}, 14
s_lshl_b32 s97, {sW}, 17
s_movk_i32 {c4K}, 0x1000
s_movk_i32 {c8K}, 0x2000
s_movk_i32 {c12K}, 0x3000
s_movk_i32 {c16K}, 0x4000
v_lshrrev_b32 v13, 1, v2
v_xor_b32 v13, v13, v3
v_and_b32 v13, 7, v13
v_lshlrev_b32 v13, 4, v13
v_lshl_add_u32 v13, v2, 7, v13
s_lshl_b32 {sT0}, {sA}, 12
v_add_u32 v10, {sT0}, v13
v_xor_b32 v11, 64, v10
v_lshrrev_b32 v13, 2, v2
v_and_b32 v14, 2, v13
v_and_b32 v15, 1, v3
v_lshl_or_b32 v14, v15, 2, v14
v_bfe_u32 v15, v2, 1, 1
v_xor_b32 v14, v14, v15
v_lshlrev_b32 v14, 4, v14
v_and_b32 v15, 1, v2
v_lshl_add_u32 v14, v15, 3, v14
v_lshl_add_u32 v15, v3, 3, v13
v_lshl_add_u32 v16, v15, 7, v14
v_lshl_add_u32 v15, v3, 2, v13
v_lshl_add_u32 v17, v15, 7, v14
s_lshl_b32 {sT0}, {sB}, 6
v_xor_b32 v12, {sT0}, v16
v_xor_b32 v13, 32, v12
v_add_u32 v34, 0x10000, v12
v_add_u32 v35, 0x10000, v13
v_lshrrev_b32 v30, 2, v2
v_lshl_add_u32 v30, v3, 2, v30
v_lshlrev_b32 v30, 5, v30
v_and_b32 v31, 3, v2
v_lshl_add_u32 v30, v31, 3, v30
v_mov_b32 v14, v17
v_xor_b32 v15, 32, v17
v_xor_b32 v16, 64, v17
v_xor_b32 v17, 0x60, v17
v_mov_b32 v20, 0x3f803f80
v_mov_b32 v21, 0x3f803f80
v_mov_b32 v22, 0x3f803f80
v_mov_b32 v23, 0x3f803f80
""")
        st = self.cap(setups)
        self.mix(dm, st, 1.0*len([x for x in dm if x.kind == 'i'])/max(1, len([x for x in st if x.kind == 'i'])))
        if o.get('prstamp'): self.stamp('  pr setups')
        e("s_waitcnt lgkmcnt(0)")
        for b,off,sz in self.PTRS[2:]: e(f"s_mov_b32 s{b+2}, {hex(sz)}\ns_mov_b32 s{b+3}, 0x20000")
        e(f"s_load_dword {sT}, s[{SRD_WS}:{SRD_WS+1}], {EPOCH}")
        self.touches(list(range(0, 4)))

    def setup_ids(self):
        e = self.e
        L = 1.4426950408889634; c0 = -2.0*L*0.7978845608028654
        e(f"""
s_add_u32 {sT}, {sT}, {hex(INC)}
v_mov_b32 v9, {sT}
s_add_u32 {sT0}, {sT}, {sXCC}
v_mov_b32 v18, {sT0}
s_lshl_b32 {sT1}, {sX}, 7
s_lshl_b32 {sT2}, {sI}, 5
s_add_u32 {sT1}, {sT1}, {sT2}
s_lshl_b32 {sT2}, {sJ}, 2
s_add_u32 {sT1}, {sT1}, {sT2}
s_add_u32 {sT1}, {sT1}, {IDS}
s_cmp_lg_u32 {sW}, 0
s_cselect_b32 {sT1}, {hex(OOB)}, {sT1}
v_mov_b32 v36, {sT1}
v_mov_b32 v37, {hex(OOB)}
v_cmp_eq_u32 vcc, 0, v0
v_cndmask_b32 v36, v37, v36, vcc
buffer_store_dword v18, v36, {WS}, 0 offen sc1
s_mov_b32 s78, {hex(f2u(L))}
s_mov_b32 s79, {hex(f2u(-L))}
s_mov_b32 s80, {hex(f2u(c0))}
s_mov_b32 s81, {hex(f2u(c0*0.044715))}
s_mov_b32 {sEPS}, {hex(f2u(1e-5))}
s_mov_b32 {sINV}, {hex(f2u(1.0/512))}
s_mov_b32 s94, 1.0
s_mov_b32 s95, 1.0
""")

    def setup_b(self):
        e = self.e
        e(f"""
v_and_b32 v36, 3, v2
v_cmp_eq_u32 {sMK1}, 1, v36
v_cmp_eq_u32 {sMK2}, 2, v36
v_cmp_eq_u32 {sMK3}, 3, v36
v_lshrrev_b32 v37, 2, v2
v_cmp_eq_u32 {sMKD}, v37, v3
v_cmp_eq_u32 {sS0}, 0, v2
v_and_b32 v36, 1, v2
v_lshlrev_b32 v36, 4, v36
v_mov_b32 v37, 0x3f80
v_lshlrev_b32 v37, v36, v37
v_cndmask_b32 v37, 0, v37, {sMKD}
v_and_b32 v36, 2, v2
v_cmp_eq_u32 vcc, 0, v36
v_mov_b32 v24, 0
v_mov_b32 v25, 0
v_mov_b32 v28, 0
v_mov_b32 v29, 0
v_cndmask_b32 v26, 0, v37, vcc
v_cndmask_b32 v27, v37, 0, vcc
v_lshrrev_b32 v18, 3, v0
v_and_b32 v36, 6, v18
v_and_b32 v8, 7, v0
v_xor_b32 v8, v8, v36
v_lshlrev_b32 v8, 4, v8
v_lshl_add_u32 v8, v18, 10, v8
s_lshl_b32 {sT0}, {sJ}, 7
v_add_u32 v8, {sT0}, v8
""")

    def setup_addr(self, part):
        e0 = self.e
        if part == 0: R = {'v36':'v36','v37':'v37','v38':'v38','v39':'v39'}
        elif part == 2: R = {'v36':'v232','v37':'v233','v38':'v234','v39':'v235'}
        else: R = {'v36':'v252','v37':'v253','v38':'v254','v39':'v255'}
        def e(t):
            for a, b in R.items(): t = t.replace(a, b)
            e0(t)
        def st(n, v): self.stash(n, R[v])
        e(f"v_and_b32 v38, 7, v0\nv_lshlrev_b32 v38, 2, v38\nv_lshlrev_b32 v39, 4, v3")
        if part == 1: return self.setup_addr_late(e, st)
        if part == 2:
            e(f"""s_mul_i32 {sT2}, {sX}, {16*HIDS}
s_add_u32 {sT2}, {sT2}, {HIDB}
s_lshl_b32 {sT4}, {sX}, 5""")
            return self.setup_addr_red(e, st)
        e(f"""s_lshl_b32 {sT0}, {sJ}, 2
s_lshl_b32 {sT1}, {sB}, 1
s_add_u32 {sT0}, {sT0}, {sT1}
s_lshl_b32 {sT1}, {sI}, 1
s_add_u32 {sT1}, {sT1}, {sA}
s_mul_i32 {sT2}, {sX}, {16*HIDS}
s_add_u32 {sT2}, {sT2}, {HIDB}
s_lshl_b32 {sT3}, {sT0}, 13
s_add_u32 {sT3}, {sT3}, {sT2}
s_lshl_b32 {sT4}, {sT1}, 10
s_add_u32 {sT3}, {sT3}, {sT4}
v_add_u32 v36, {sT3}, v1""")
        st('kv1d', 'v36')
        e(f"""s_lshl_b32 {sT4}, {sX}, 5
s_add_u32 {sT0}, {sT0}, {sT4}
s_lshl_b32 {sT3}, {sT0}, 10
s_lshl_b32 {sT5}, {sT1}, 7
s_add_u32 {sT3}, {sT3}, {sT5}
s_add_u32 {sT3}, {sT3}, {KV1Z}
v_add_u32 v36, {sT3}, v39""")
        st('kv1z', 'v36')
        e(f"""s_lshl_b32 {sT3}, {sT0}, 5
s_lshl_b32 {sT1}, {sT1}, 2
s_add_u32 {sT3}, {sT3}, {sT1}
s_add_u32 {sT3}, {sT3}, {F_KV1}
v_mov_b32 v36, {sT3}""")
        st('kv1f', 'v36')
        if part == 0: return

    def setup_addr_red(self, e, st):
        e(f"""s_lshl_b32 {sT0}, {sJ}, 2
s_add_u32 {sT0}, {sT0}, {sI}
s_add_u32 {sT1}, {sT4}, {sT0}
s_lshl_b32 {sT3}, {sT1}, 5
s_add_u32 {sT3}, {sT3}, {F_KV1}
v_add_u32 v36, {sT3}, v38""")
        st('r_poll', 'v36')
        e(f"""s_lshl_b32 {sT3}, {sT0}, 13
s_add_u32 {sT3}, {sT3}, {sT2}
v_add_u32 v36, {sT3}, v1""")
        st('r_kv', 'v36')
        e(f"""s_lshl_b32 {sT3}, {sT1}, 10
s_add_u32 {sT3}, {sT3}, {KV1Z}
v_add_u32 v36, {sT3}, v39""")
        st('r_z', 'v36')
        e(f"""s_lshl_b32 {sT1}, {sT0}, 3
s_add_u32 {sT1}, {sT1}, {sX}
s_lshl_b32 {sT3}, {sT1}, 10
s_add_u32 {sT3}, {sT3}, {KV2K}
v_add_u32 v36, {sT3}, v1""")
        st('kv2d', 'v36')
        e(f"""s_lshl_b32 {sT3}, {sT1}, 7
s_add_u32 {sT3}, {sT3}, {KV2Z}
v_add_u32 v36, {sT3}, v39""")
        st('kv2z', 'v36')
        e(f"""s_lshl_b32 {sT3}, {sT0}, 7
s_lshl_b32 {sT1}, {sX}, 2
s_add_u32 {sT3}, {sT3}, {sT1}
s_add_u32 {sT3}, {sT3}, {F_KV2}
v_mov_b32 v36, {sT3}""")
        st('kv2f', 'v36')
        e(f"""s_lshl_b32 {sT0}, {sJ}, 2
s_add_u32 {sT0}, {sT0}, {sW}
s_lshl_b32 {sT3}, {sT0}, 7
s_add_u32 {sT3}, {sT3}, {F_KV2}
v_add_u32 v36, {sT3}, v38""")
        st('k_poll', 'v36')
        e(f"""s_lshl_b32 {sT3}, {sT0}, 13
s_add_u32 {sT3}, {sT3}, {KV2K}
v_add_u32 v36, {sT3}, v1""")
        st('k_kv', 'v36')
        e(f"""s_lshl_b32 {sT3}, {sT0}, 10
s_add_u32 {sT3}, {sT3}, {KV2Z}
v_add_u32 v36, {sT3}, v39""")
        st('k_z', 'v36')

    def setup_addr_late(self, e, st):
        e(f"""s_lshl_b32 {sT0}, {sR}, 2
s_lshl_b32 {sT1}, {sA}, 1
s_add_u32 {sT0}, {sT0}, {sT1}
s_lshl_b32 {sT1}, {sJ}, 1
s_add_u32 {sT1}, {sT1}, {sB}
s_lshl_b32 {sT3}, {sT0}, 14
s_lshl_b32 {sT4}, {sT1}, 10
s_add_u32 {sT3}, {sT3}, {sT4}
s_add_u32 {sT3}, {sT3}, {OB}
v_add_u32 v36, {sT3}, v1""")
        st('o_st', 'v36')
        e(f"""s_lshl_b32 {sT3}, {sT0}, 8
s_add_u32 {sT3}, {sT3}, {FLG+128}
s_lshl_b32 {sT4}, {sT1}, 2
s_add_u32 {sT4}, {sT4}, {sT3}
v_mov_b32 v36, {sT4}""")
        st('o_fl', 'v36')
        e(f"v_lshlrev_b32 v36, 2, v2\nv_add_u32 v36, {sT3}, v36")
        st('o_poll', 'v36')
        e(f"""s_lshl_b32 {sT0}, {sRHO}, 14
s_lshl_b32 {sT1}, {sJ}, 11
s_add_u32 {sT3}, {sT0}, {sT1}
s_add_u32 {sT3}, {sT3}, {HB}
v_add_u32 v36, {sT3}, v1""")
        st('tile', 'v36')
        e(f"""s_lshl_b32 {sT2}, {sRHO}, 8
s_add_u32 {sT2}, {sT2}, {FLG}
s_lshl_b32 {sT3}, {sJ}, 2
s_add_u32 {sT3}, {sT3}, {sT2}
v_mov_b32 v36, {sT3}""")
        st('flag', 'v36')
        e(f"v_add_u32 v36, {sT2}, v38")
        st('fpoll', 'v36')
        e(f"""s_lshl_b32 {sT3}, {sRHO}, 12
s_add_u32 {sT3}, {sT3}, {ST}
v_lshlrev_b32 v37, 6, v2
v_add_u32 v37, {sT3}, v37
v_add_u32 v36, v39, v37""")
        st('st_ld', 'v36')
        e(f"s_lshl_b32 {sT3}, {sJ}, 3\nv_add_u32 v36, {sT3}, v37")
        st('st_st', 'v36')
        e(f"s_add_u32 {sT3}, {sT0}, {OB}\nv_add_u32 v36, {sT3}, v1")
        st('b_o', 'v36')
        e(f"s_add_u32 {sT3}, {sT0}, {HB}\nv_add_u32 v36, {sT3}, v1")
        st('b_h', 'v36')
        e(f"""s_mul_i32 {sT3}, {sRHO}, {HIDS}
s_add_u32 {sT3}, {sT3}, {HIDB}
v_add_u32 v36, {sT3}, v1""")
        st('hid_ld', 'v36')
        st('hid_st', 'v36')
        e(f"""s_lshl_b32 {sT0}, {sRHO}, 14
s_lshl_b32 {sT1}, {sJ}, 7
s_add_u32 {sT0}, {sT0}, {sT1}
v_and_b32 v36, 1, v3
v_lshlrev_b32 v36, 5, v36
v_lshrrev_b32 v37, 1, v3
v_lshl_add_u32 v36, v37, 4, v36
v_lshl_add_u32 v36, v2, 10, v36
v_add_u32 v36, {sT0}, v36""")
        st('out_st', 'v36')

    def setup_shift(self):
        e = self.e; st = self.stash
        e(f"""s_lshr_b32 {sT0}, {sJ}, 2
s_add_u32 {sT0}, {sT0}, 1
s_bitcmp1_b32 {sJ}, 1
s_cselect_b32 {sT1}, -1, 1
s_mul_i32 {sT0}, {sT0}, {sT1}
s_lshl_b32 {sT1}, {sRHO}, 4
s_add_u32 {sT1}, {sT1}, {sT0}
v_add_u32 v36, {sT1}, v2
v_lshrrev_b32 v37, 4, v36
v_lshlrev_b32 v37, 14, v37
v_and_b32 v38, 15, v36
v_lshl_add_u32 v38, v3, 4, v38
v_lshlrev_b32 v38, 4, v38
v_add_u32 v37, v37, v38
s_lshl_b32 {sT1}, {sJ}, 11
s_add_u32 {sT2}, {sT1}, {HHB}
v_add_u32 v37, {sT2}, v37
s_lshl_b32 {sT2}, {sX}, 8
v_subrev_u32 v36, {sT2}, v36
v_cmp_lt_u32 vcc, 0xff, v36
v_mov_b32 v36, {hex(OOB)}
v_cndmask_b32 v37, v37, v36, vcc
s_mov_b64 s[68:69], vcc""")
        st('hh_st', 'v37')
        e(f"""s_lshl_b32 {sT2}, {sX}, 1
s_add_u32 {sT3}, {sT2}, 2
s_sub_u32 {sT2}, {sT2}, 1
s_cmp_gt_i32 {sT0}, 0
s_cselect_b32 {sT2}, {sT3}, {sT2}
s_lshl_b32 {sT3}, {sT2}, 14
s_add_u32 {sT3}, {sT3}, {sT1}
s_add_u32 {sT3}, {sT3}, {HALO}
v_add_u32 v36, {sT3}, v38""")
        st('hh_halo', 'v36')
        e(f"""s_lshl_b32 {sT3}, {sT2}, 5
s_lshl_b32 {sT1}, {sJ}, 2
s_add_u32 {sT3}, {sT3}, {sT1}
s_add_u32 {sT3}, {sT3}, {F_HALO}
v_mov_b32 v36, {sT3}
s_cmp_lt_u32 {sT2}, 16
s_cselect_b64 s[68:69], s[68:69], 0""")
        st('hh_haloflag', 'v36')
        e(f"""s_lshl_b32 {sT0}, {sRHO}, 8
s_add_u32 {sT0}, {sT0}, {FLG+32}
v_and_b32 v38, 7, v0
v_lshlrev_b32 v38, 2, v38
v_add_u32 v39, {sT0}, v38
s_and_b32 {sT1}, {sRHO}, 15
s_sub_u32 {sT2}, {sT0}, 256
s_lshl_b32 {sT3}, {sX}, 6
s_add_u32 {sT3}, {sT3}, {F_HALO}
s_cmp_eq_u32 {sT1}, 0
s_cselect_b32 {sT2}, {sT3}, {sT2}
s_cselect_b32 s92, 0x0f0f, 0
s_cmp_eq_u32 {sRHO}, 0
s_cselect_b32 {sT2}, {sT0}, {sT2}
s_add_u32 {sT4}, {sT0}, 256
s_add_u32 {sT3}, {sT3}, 32
s_cmp_eq_u32 {sT1}, 15
s_cselect_b32 {sT4}, {sT3}, {sT4}
s_cselect_b32 s92, 0xf0f0, s92
s_cmp_eq_u32 {sRHO}, 127
s_cselect_b32 {sT4}, {sT0}, {sT4}
v_lshrrev_b32 v36, 3, v0
v_bfe_u32 v37, v0, 1, 1
v_lshl_or_b32 v36, v36, 1, v37
v_add_u32 v37, {sT2}, v38
v_cmp_eq_u32 vcc, 2, v36
v_cndmask_b32 v39, v39, v37, vcc
v_add_u32 v37, {sT4}, v38
v_cmp_eq_u32 vcc, 5, v36
v_cndmask_b32 v39, v39, v37, vcc""")
        st('hh_poll', 'v39')
        e(f"""s_lshl_b32 {sT2}, {sX}, 1
s_cmp_eq_u32 {sT1}, 15
s_cselect_b32 {sT3}, 1, 0
s_add_u32 {sT2}, {sT2}, {sT3}
s_lshl_b32 {sT2}, {sT2}, 14
s_lshl_b32 {sT3}, {sT3}, 12
s_add_u32 {sT2}, {sT2}, {sT3}
s_add_u32 {sT2}, {sT2}, {HALO}
s_cmp_eq_u32 {sRHO}, 0
s_cselect_b32 {sT2}, {hex(OOB)}, {sT2}
s_cmp_eq_u32 {sRHO}, 127
s_cselect_b32 {sT2}, {hex(OOB)}, {sT2}
v_add_u32 v36, {sT2}, v1""")
        st('halo_ld', 'v36')
        e(f"""v_mov_b32 v36, v2
v_sub_u32 v37, 15, v2
s_cmp_eq_u32 {sT1}, 15
s_cselect_b64 s[70:71], -1, 0
v_cndmask_b32 v36, v36, v37, s[70:71]
v_cmp_gt_u32 s[70:71], 1, v36
v_cmp_gt_u32 s[72:73], 2, v36""")

    def prewarm(self):
        e = self.e
        e(f"""s_lshl_b32 {sT0}, {sRHO}, 14
s_lshl_b32 {sT1}, {sJ}, 11
s_add_u32 {sT0}, {sT0}, {sT1}
v_and_b32 v36, 15, v0
v_lshlrev_b32 v36, 7, v36                ; (l&15)*128
s_add_u32 {sT1}, {sT0}, {OB}
v_add_u32 v37, {sT1}, v36                ; lanes 0-15: O
s_add_u32 {sT1}, {sT0}, {HB}
v_add_u32 v38, {sT1}, v36                ; lanes 16-31: H
v_cmp_lt_u32 vcc, 15, v0
v_cndmask_b32 v37, v37, v38, vcc""")
        self.fetch('kv1d', 'v38')
        e(f"""v_and_b32 v39, 7, v0
v_lshlrev_b32 v39, 7, v39
v_readfirstlane_b32 {sT1}, v38
v_bfe_u32 v38, v0, 3, 1
v_lshlrev_b32 v38, 13, v38
v_add_u32 v39, v39, v38
v_add_u32 v39, {sT1}, v39
v_cmp_lt_u32 vcc, 31, v0
v_cndmask_b32 v37, v37, v39, vcc""")
        self.fetch('kv1z', 'v38')
        e(f"""v_and_b32 v39, 1, v0
v_readfirstlane_b32 {sT1}, v38
v_lshlrev_b32 v39, 10, v39
v_add_u32 v39, {sT1}, v39                ; z lines (+0,+1024)
s_lshl_b32 {sT2}, {sRHO}, 12
s_lshl_b32 {sT3}, {sJ}, 7
s_add_u32 {sT2}, {sT2}, {sT3}
s_add_u32 {sT2}, {sT2}, {ST}
v_and_b32 v38, 1, v0
v_lshlrev_b32 v38, 11, v38
v_add_u32 v38, {sT2}, v38
v_cmp_lt_u32 vcc, 55, v0
v_cndmask_b32 v39, v39, v38, vcc
v_cmp_lt_u32 vcc, 47, v0
v_cndmask_b32 v37, v37, v39, vcc
v_accvgpr_write_b32 a{AST['pwA']}, v37
s_mul_i32 {sT1}, {sRHO}, {HIDS}
s_mul_i32 {sT2}, {sJ}, 192
s_mul_i32 {sT3}, {sJ}, 160
s_add_u32 {sT3}, {sT3}, 96
s_cmp_lt_u32 {sJ}, 3
s_cselect_b32 {sF0}, {sT2}, {sT3}
s_cselect_b32 {sFW}, 8, 4
s_mul_i32 {sT2}, {sJ}, 6144
s_add_u32 {sT1}, {sT1}, {sT2}
s_add_u32 {sT1}, {sT1}, {HIDB}
v_min_u32 v38, 47, v0
v_lshlrev_b32 v38, 7, v38
v_add_u32 v38, {sT1}, v38
v_accvgpr_write_b32 a{AST['pwB']}, v38
s_lshl_b32 {sT0}, {sRHO}, 14
s_lshl_b32 {sT1}, {sJ}, 7
s_add_u32 {sT0}, {sT0}, {sT1}
v_lshlrev_b32 v36, 3, v36                ; (l&15)*1024
v_add_u32 v36, {sT0}, v36
v_accvgpr_write_b32 a{AST['pwC']}, v36""")

    def prewarm_issue(self, which, vt):
        self.fetch(which, vt)
        self.e(f"buffer_load_dword v255, {vt}, {srd(SRD_OUT) if which == 'pwC' else WS}, 0 offen", tag='pw')

    def xa(self, ee, t): return f"a[{(ee*16+t)*4}:{(ee*16+t)*4+3}]"
    def wreads(self, c, off, tagp, withx=False):
        buf = 128 + (c % 2)*16
        for u in range(2):
            t = 2*c+u
            if withx:
                for ee in range(2):
                    self.e(f"ds_read_b128 {self.xa(ee,t)}, v{10+u} offset:{c*8192 + ee*2048}", tag=f'{tagp}{c}')
            for ep in range(2):
                wb = buf + (u*2+ep)*4
                for h in range(2):
                    self.e(f"ds_read_b64_tr_b16 v[{wb+2*h}:{wb+2*h+1}], v{34+ep} offset:{off + u*4096 + h*512}", tag=f'{tagp}{c}')
    def mfma_k(self, c):
        buf = 128 + (c % 2)*16
        for u in range(2):
            t = 2*c+u
            for ep in range(2):
                wb = buf + (u*2+ep)*4
                for ee in range(2): self.mf(40 + (ep*2+ee)*4, f"v[{wb}:{wb+3}]", self.xa(ee,t), t == 0)
                self.mf(56+ep*4, f"v[{wb}:{wb+3}]", "v[20:23]", t == 0)
            for ee in range(2):
                self.mf(64+ee*4, "v[20:23]", self.xa(ee,t), t == 0)
                self.mf(72+ee*4, self.xa(ee,t), self.xa(ee,t), t == 0)
    def mfma_vq(self, c, which):
        buf = 128 + (c % 2)*16
        for u in range(2):
            t = 2*c+u
            for ep in range(2):
                wb = buf + (u*2+ep)*4
                for ee in range(2):
                    if which == 'v': self.mf(80 + (ee*2+ep)*4, self.xa(ee,t), f"v[{wb}:{wb+3}]", t == 0)
                    else: self.mf(104 + (ep*2+ee)*4, f"v[{wb}:{wb+3}]", self.xa(ee,t), t == 0)
                if which == 'v': self.mf(96+ep*4, "v[20:23]", f"v[{wb}:{wb+3}]", t == 0)
                else: self.mf(120+ep*4, f"v[{wb}:{wb+3}]", "v[20:23]", t == 0)

    def ids_issue(self):
        self.e(f"""s_lshl_b32 s92, {sX}, 7
s_add_u32 s92, s92, {IDS}
v_and_b32 v250, 31, v0
v_lshlrev_b32 v250, 2, v250
v_add_u32 v250, s92, v250""")
        self.e(f"buffer_load_dword v251, v250, {WS}, 0 offen sc1", tag='ids')
    def ids_check(self):
        e = self.e; k = self.k
        Lp = k.label('Lid'); Ld = k.label('Lidd')
        k.wait_vm('ids')
        e(f"""s_mov_b32 {sCNT}, 0x8000
~{Lp}:
v_subrev_u32 v252, {sT}, v251
v_cmp_lt_u32 vcc, 7, v252
~s_cbranch_vccz {Ld}""")
        k.push()
        e(f"buffer_load_dword v251, v250, {WS}, 0 offen sc1", nocount=True)
        e(f"""s_waitcnt vmcnt(0)
s_sub_u32 {sCNT}, {sCNT}, 1
s_cmp_lg_u32 {sCNT}, 0
~s_cbranch_scc1 {Lp}
s_mov_b32 {sTO}, 1""")
        k.pop()
        e(f"""~{Ld}:
v_cmp_ne_u32 vcc, {sXCC}, v252
s_cmp_eq_u64 vcc, 0
s_cselect_b32 {sFAST}, 1, 0""")

    def pass_k(self):
        e = self.e; k = self.k; D = self.D1
        q = [('k', c) for c in range(D, 8)] + [('v', c) for c in range(6)]
        def issue(item):
            kind, c = item
            if kind == 'k':
                self.dma_k(c)
            else:
                self.dma_wqkv(c, 2, (131072 + c*8192) if c < 4 else (c-4)*8192, f'v{c}')
        sides = {}
        k.wait_vm('k0'); e("s_barrier")
        self.wreads(0, 0, 'kr', withx=True)
        qi = 0
        for c in range(8):
            if c < 7:
                k.wait_vm(f'k{c+1}'); e("s_barrier")
            k.wait_lg(f'kr{c}')
            if self.opt.get('pkstamp') and c in (0, 2, 4, 6): self.stamp(f'  pk c{c}')
            main = self.cap(self.mfma_k, c)
            rd = self.cap(self.wreads, c+1, (c+1)*8192, 'kr', True) if c < 7 else []
            items = []
            while qi < len(q) and len(items) < 4:
                kind, cc = q[qi]
                cost = 4 if kind == 'k' else 2
                if sum(4 if a == 'k' else 2 for a, _ in items) + cost > 4: break
                items.append(q[qi]); qi += 1
            dm = self.cap(lambda: [issue(it) for it in items])
            if c == 3: dm = self.cap(self.ids_issue) + dm
            sd = []
            if c == 0: sd = self.cap(self.setup_ids)
            if c == 1: sd = self.cap(self.setup_b)
            if c == 2: sd = self.cap(self.setup_addr, 0)
            if c in (4, 5):
                pw = self.cap(self.prewarm); sd = pw[:len(pw)//2] if c == 4 else pw[len(pw)//2:]
            if c == 7:
                def wp():
                    e(f"s_lshl_b32 {sT0}, {sJ}, 2\ns_lshl_b32 {sT1}, {sB}, 1\ns_add_u32 {sT0}, {sT0}, {sT1}\ns_lshl_b32 {sT0}, {sT0}, 9\ns_lshl_b32 {sT1}, {sW}, 10")
                    self.dma('v1', SRD_WPHI, (sT0, 0), 5*8192, 'wphi', wave_lds=sT1)
                    e(f"v_add_u32 v30, {sT1}, v30")
                sd = self.cap(wp)
            self.weave(main, (dm, 2), (rd, 1), (sd, 1.5))
        assert qi == len(q), (qi, len(q))

    def stats1(self):
        e = self.e
        ST1 = 4*8192
        for ee in range(2):
            g0 = 72 + ee*4; t = 160 + ee
            e(f"""v_cndmask_b32 v{t}, v{g0}, v{g0+1}, {sMK1}
v_cndmask_b32 v{t}, v{t}, v{g0+2}, {sMK2}
v_cndmask_b32 v{t}, v{t}, v{g0+3}, {sMK3}
v_cndmask_b32 v{t}, 0, v{t}, {sMKD}""")
        self.allred([('v160','v161')], 'v_add_f32')
        for ee in range(2): e(f"v_mul_f32 v{36+ee}, {sINV}, v{64+ee*4}\nv_mul_f32 v{160+ee}, {sINV}, v{160+ee}")
        for ee in range(2): e(f"v_fma_f32 v{160+ee}, -v{36+ee}, v{36+ee}, v{160+ee}")
        for ee in range(2): e(f"v_max_f32 v{160+ee}, 0, v{160+ee}")
        for ee in range(2): e(f"v_add_f32 v{160+ee}, {sEPS}, v{160+ee}")
        for ee in range(2): e(f"v_rsq_f32 v{38+ee}, v{160+ee}")
        e(f"""s_lshl_b32 {sT0}, {sA}, 7
v_lshlrev_b32 v253, 2, v2
v_add_u32 v253, {sT0}, v253
v_lshlrev_b32 v254, 4, v3
v_add_u32 v254, {sT0}, v254""")
        for ee in range(2):
            e(f"ds_write_b32 v253, v{36+ee} offset:{ST1 + ee*64}", tag='st1w')
            e(f"ds_write_b32 v253, v{38+ee} offset:{ST1 + 256 + ee*64}", tag='st1w')

    def features(self, tiles, T):
        e = self.e
        n = len(tiles)
        def each(fn):
            for i, tl in enumerate(tiles): fn(T + 16*i, *tl)
        def sel(r): return f"v[{r&~1}:{(r&~1)+1}]", r & 1
        def s1(t, acc, cs, m, rs, wp, out):
            mp, ms = sel(m)
            for p in range(2):
                e(f"v_pk_fma_f32 v[{t+2*p}:{t+2*p+1}], v[{cs+2*p}:{cs+2*p+1}], {mp}, v[{acc+2*p}:{acc+2*p+1}] op_sel:[0,{ms},0] op_sel_hi:[1,{ms},1] neg_lo:[1,0,0] neg_hi:[1,0,0]")
        def s2(t, acc, cs, m, rs, wp, out):
            rp, rsl = sel(rs)
            for p in range(2):
                e(f"v_pk_mul_f32 v[{t+2*p}:{t+2*p+1}], v[{t+2*p}:{t+2*p+1}], {rp} op_sel:[0,{rsl}] op_sel_hi:[1,{rsl}]")
        each(s1); each(s2)
        each(lambda t,*a: e(f"v_cvt_pk_bf16_f32 v{t+4}, v{t}, v{t+1}\nv_cvt_pk_bf16_f32 v{t+5}, v{t+2}, v{t+3}"))
        each(lambda t,acc,cs,m,rs,wp,out: e(f"v_mfma_f32_16x16x16_bf16 v[{t}:{t+3}], v[{wp}:{wp+1}], v[{t+4}:{t+5}], 0"))
        each(lambda t,*a: e(f"v_max3_f32 v{t+4}, v{t}, v{t+1}, v{t+2}\nv_max3_f32 v{t+5}, -v{t}, -v{t+1}, -v{t+2}"))
        each(lambda t,*a: e(f"v_max_f32 v{t+4}, v{t+4}, v{t+3}\nv_max_f32_e64 v{t+5}, v{t+5}, -v{t+3}"))
        self.allred([(f'v{T+16*i+4}', f'v{T+16*i+5}') for i in range(n)], 'v_max_f32')
        each(lambda t,*a: e(f"v_pk_mul_f32 v[{t+4}:{t+5}], v[{t+4}:{t+5}], {sLL} op_sel_hi:[1,0]"))
        for r in range(4):
            each(lambda t,*a: e(f"v_pk_fma_f32 v[{t+8+2*r}:{t+9+2*r}], v[{t+(r&~1)}:{t+(r&~1)+1}], {sLL}, v[{t+4}:{t+5}] op_sel:[{r&1},0,0] op_sel_hi:[{r&1},1,1] neg_lo:[0,0,1] neg_hi:[0,0,1]"))
        for i8 in range(8): each(lambda t,*a: e(f"v_exp_f32 v{t+8+i8}, v{t+8+i8}"))
        each(lambda t,*a: e(f"v_pk_add_f32 v[{t}:{t+1}], v[{t+8}:{t+9}], v[{t+10}:{t+11}]\nv_pk_add_f32 v[{t+2}:{t+3}], v[{t+12}:{t+13}], v[{t+14}:{t+15}]"))
        each(lambda t,*a: e(f"v_pk_add_f32 v[{t}:{t+1}], v[{t}:{t+1}], v[{t+2}:{t+3}]"))
        self.allred([(f'v{T+16*i}', f'v{T+16*i+1}') for i in range(n)], 'v_add_f32')
        each(lambda t,*a: e(f"v_rcp_f32 v{t}, v{t}\nv_rcp_f32 v{t+1}, v{t+1}"))
        for r in range(4):
            each(lambda t,*a: e(f"v_pk_mul_f32 v[{t+8+2*r}:{t+9+2*r}], v[{t+8+2*r}:{t+9+2*r}], v[{t}:{t+1}]"))
        each(lambda t,acc,cs,m,rs,wp,out: e(f"""v_cvt_pk_bf16_f32 v{out}, v{t+8}, v{t+10}
v_cvt_pk_bf16_f32 v{out+1}, v{t+12}, v{t+14}
v_cvt_pk_bf16_f32 v{out+2}, v{t+9}, v{t+11}
v_cvt_pk_bf16_f32 v{out+3}, v{t+13}, v{t+15}"""))

    def kside(self):
        e = self.e; k = self.k
        self.stats1()
        k.wait_vm('wphi')
        e(f"ds_read_b64_tr_b16 v[32:33], v30 offset:{5*8192+512}", tag='wpr')
        e(f"ds_read_b64_tr_b16 v[30:31], v30 offset:{5*8192}", tag='wpr')
        k.wait_lg('wpr')
        tiles = [(40 + (ep*2+ee)*4, 56 + ep*4, 36+ee, 38+ee, 30+2*ep, 224 + (ep*2+ee)*4) for ep in range(2) for ee in range(2)]
        self.features(tiles, 160)
        for i in range(4):
            for sg in range(2):
                o = 224 + 4*i + 2*sg
                e(f"v_mfma_f32_16x16x16_bf16 v[{160+8*i+4*sg}:{163+8*i+4*sg}], v[{o}:{o+1}], v[26:27], 0")
        for ep in range(2):
            for ee in range(2):
                i = ep*2+ee
                for sg in range(2):
                    d = 192 + 8*ep + 4*sg + 2*ee; s = 160 + 8*i + 4*sg
                    e(f"v_cvt_pk_bf16_f32 v{d}, v{s}, v{s+1}\nv_cvt_pk_bf16_f32 v{d+1}, v{s+2}, v{s+3}")
        self.fetch('kv1d', 'v248'); self.fetch('kv1z', 'v249'); self.fetch('kv1f', 'v250')

    def pass_v(self):
        e = self.e; k = self.k
        side = self.cap(self.kside)
        e("v_add_u32 v34, 0x20000, v12\nv_add_u32 v35, 0x20000, v13")
        k.wait_vm('v1'); e("s_barrier")
        self.wreads(0, 0, 'vr')
        chunk = (len(side) + 7)//8
        for c in range(8):
            if c in (1, 3, 5):
                k.wait_vm(f'v{c+2}'); e("s_barrier")
            k.wait_lg(f'vr{c}')
            if c == 3: e("v_mov_b32 v34, v12\nv_mov_b32 v35, v13")
            main = self.cap(self.mfma_vq, c, 'v')
            if c < 7:
                off = (c+1)*8192 if c+1 < 4 else (c+1-4)*8192
                rd = self.cap(self.wreads, c+1, off, 'vr')
            else: rd = []
            def dm():
                if c == 0:
                    for cc in (6, 7): self.dma_wqkv(cc, 2, (cc-4)*8192, f'v{cc}')
                elif c <= 4:
                    for cc in (2*(c-1), 2*(c-1)+1): self.dma_wqkv(cc, 0, 65536 + cc*8192, f'q{cc}')
                elif c == 5: self.prewarm_issue('pwA', 'v251')
            sd = side[c*chunk:(c+1)*chunk]
            self.weave(main, (rd, 0.7), (self.cap(dm), 1.0), (sd, len(sd)/12.0))

    def kv_publish(self):
        e = self.e; k = self.k
        ST1 = 4*8192
        k.wait_lg('st1w')
        for ee in range(2):
            e(f"ds_read_b128 v[{128+8*ee}:{131+8*ee}], v254 offset:{ST1 + ee*64}", tag='st1r')
            e(f"ds_read_b128 v[{132+8*ee}:{135+8*ee}], v254 offset:{ST1 + 256 + ee*64}", tag='st1r')
        k.wait_lg('st1r')
        T = 160
        tl = [(ee, ep) for ee in range(2) for ep in range(2)]
        for i, (ee, ep) in enumerate(tl):
            M = 128 + 8*ee; acc = 80 + (ee*2+ep)*4; cs = 96 + ep*4; t = T + 4*i
            for p in range(2):
                e(f"v_pk_fma_f32 v[{t+2*p}:{t+2*p+1}], v[{M+2*p}:{M+2*p+1}], v[{cs}:{cs+1}], v[{acc+2*p}:{acc+2*p+1}] op_sel_hi:[1,0,1] neg_lo:[1,0,0] neg_hi:[1,0,0]")
        for i, (ee, ep) in enumerate(tl):
            RS = 132 + 8*ee; t = T + 4*i
            for p in range(2):
                e(f"v_pk_mul_f32 v[{t+2*p}:{t+2*p+1}], v[{t+2*p}:{t+2*p+1}], v[{RS+2*p}:{RS+2*p+1}]")
        for i, (ee, ep) in enumerate(tl):
            t = T + 4*i; d = 208 + 4*ep + 2*ee
            e(f"v_cvt_pk_bf16_f32 v{d}, v{t}, v{t+1}\nv_cvt_pk_bf16_f32 v{d+1}, v{t+2}, v{t+3}")
        for ep in range(2):
            for sg in range(2):
                pa = 192 + 8*ep + 4*sg
                e(f"{MF} v[{40+8*ep+4*sg}:{43+8*ep+4*sg}], v[{pa}:{pa+3}], v[{208+4*ep}:{211+4*ep}], 0")
        for ep in range(2):
            for sg in range(2):
                pa = 192 + 8*ep + 4*sg
                e(f"{MF} v[{56+8*ep+4*sg}:{59+8*ep+4*sg}], v[{pa}:{pa+3}], v[20:23], 0")
        for ep in range(2):
            for q in range(4): e(f"v_cvt_pk_bf16_f32 v{72+8*ep+q}, v{40+8*ep+2*q}, v{41+8*ep+2*q}")
        self.pub([f"buffer_store_dwordx4 v[72:75], v248, {WS}, 0 offen",
                  f"buffer_store_dwordx4 v[80:83], v248, {WS}, {c8K} offen"], tag='kv1s')
        for ep in range(2):
            for q in range(4): e(f"v_cvt_pk_bf16_f32 v{76+8*ep+q}, v{56+8*ep+2*q}, v{57+8*ep+2*q}")
        e(f"s_mov_b64 exec, {sS0}")
        self.pub([f"buffer_store_dwordx4 v[76:79], v249, {WS}, 0 offen",
                  f"buffer_store_dwordx4 v[84:87], v249, {WS}, 0 offen offset:1024"], tag='kv1s')
        e("s_mov_b64 exec, -1")
        e("v_add_u32 v34, 0x10000, v12\nv_add_u32 v35, 0x10000, v13")
        self.flag('v250', [0, 32], wait_tag='kv1s')

    def pass_q(self):
        e = self.e; k = self.k
        k.wait_vm('q7'); e("s_barrier")
        self.wreads(0, 0, 'qr')
        sa = self.cap(self.setup_addr, 2); na = (len(sa) + 4)//5
        for c in range(8):
            k.wait_lg(f'qr{c}')
            main = self.cap(self.mfma_vq, c, 'q')
            rd = self.cap(self.wreads, c+1, (c+1)*8192, 'qr') if c < 7 else []
            dm = self.cap(self.dma_w64, SRD_WO, 0, 'wo', range(2*c, 2*c+2))
            sd = []
            if c == 0:
                def rx():
                    e(f"s_lshl_b32 {sT2}, {sRHO}, 14\ns_lshl_b32 {sT1}, {sJ}, 7\ns_add_u32 {sT2}, {sT2}, {sT1}\nv_lshlrev_b32 v236, 10, v2\nv_lshl_add_u32 v236, v3, 3, v236")
                    for ct in range(4):
                        e(f"buffer_load_dwordx2 v[{240+2*ct}:{241+2*ct}], v236, {srd(SRD_X)}, {sT2} offen offset:{ct*32}", tag='resx')
                    self.prewarm_issue('pwB', 'v251')
                sd = self.cap(rx)
            if c == 1: sd = self.cap(self.prewarm_issue, 'pwC', 'v251')
            if 2 <= c <= 6: sd = sa[(c-2)*na:(c-1)*na]
            if c == 7: sd = self.cap(lambda: (self.fetch('r_poll', 'v248'), self.fetch('r_kv', 'v249'), self.fetch('r_z', 'v250')))
            self.weave(main, (rd, 0.7), (dm, 0.5), (sd, max(0.5, len(sd)/11)))

    def sum8(self, vkv, vz, tagp):
        e = self.e; k = self.k
        for x in range(8):
            e(f"buffer_load_dwordx4 v[{176+4*x}:{179+4*x}], {vkv}, {WS}, {CQ[x>>2]} offen offset:{(x&3)*1024} sc1", tag=f'{tagp}{x}')
        e(f"s_mov_b64 exec, {sS0}")
        for x in range(8):
            e(f"buffer_load_dwordx4 v[{208+4*x}:{211+4*x}], {vz}, {WS}, 0 offen offset:{x*128} sc1", tag=f'{tagp}z')
        e("s_mov_b64 exec, -1")
        for x in range(8):
            k.wait_vm(f'{tagp}{x}')
            self.mf(40, "v[26:29]", f"v[{176+4*x}:{179+4*x}]", x == 0)
            self.mf(44, "v[24:27]", f"v[{176+4*x}:{179+4*x}]", x == 0)
        k.wait_vm(f'{tagp}z')
        for x in range(8):
            self.mf(48, "v[26:29]", f"v[{208+4*x}:{211+4*x}]", x == 0)
            self.mf(52, "v[24:27]", f"v[{208+4*x}:{211+4*x}]", x == 0)
        for q in range(8): e(f"v_cvt_pk_bf16_f32 v{56+q}, v{40+2*q}, v{41+2*q}")

    def reduce1a(self):
        e = self.e; k = self.k
        Lskip = k.label('Lred')
        e(f"s_cmp_lg_u32 {sW}, 0\ns_cbranch_scc1 {Lskip}")
        self.poll('v248', 'v161')
        self.fetch('kv2d', 'v251'); self.fetch('kv2z', 'v252'); self.fetch('kv2f', 'v253')
        self.sum8('v249', 'v250', 'r')
        e(f"""buffer_store_dwordx4 v[56:59], v251, {WS}, 0 offen sc1
s_mov_b64 exec, {sS0}
buffer_store_dwordx4 v[60:63], v252, {WS}, 0 offen sc1
s_mov_b64 exec, -1""", nocount=True)
        e(f"{Lskip}:")
    def reduce1b(self):
        e = self.e; k = self.k
        Lskip = k.label('Lred')
        e(f"s_cmp_lg_u32 {sW}, 0\ns_cbranch_scc1 {Lskip}")
        self.flag('v253', 0, force_sc1=True)
        e("s_barrier")
        e(f"{Lskip}:")

    def qfeat(self):
        tiles = [(104 + (ep*2+ee)*4, 120 + ep*4, 36+ee, 38+ee, 30+2*ep, 128 + 8*ep + 4*ee) for ep in range(2) for ee in range(2)]
        self.features(tiles, 160)

    def final_kv_and_o(self):
        e = self.e; k = self.k
        SC = 152*1024
        self.fetch('k_poll', 'v248'); self.fetch('k_kv', 'v249'); self.fetch('k_z', 'v250')
        self.fetch('o_st', 'v253'); self.fetch('o_fl', 'v254')
        e(f"""s_lshl_b32 {sT0}, {sW}, 11
v_add_u32 v251, {sT0}, v1
v_add_u32 v251, {SC}, v251
s_lshl_b32 {sT0}, {sB}, 12
v_add_u32 v252, {sT0}, v1
v_add_u32 v252, {SC}, v252""")
        self.poll('v248', 'v161')
        self.stamp('kv2 ready')
        self.sum8('v249', 'v250', 'kv')
        for q in range(4): e(f"v_mov_b32_dpp v{60+q}, v{60+q} row_newbcast:0 row_mask:0xf bank_mask:0xf")
        e("ds_write_b128 v251, v[56:59]", tag='kvw')
        e("ds_write_b128 v251, v[60:63] offset:1024", tag='kvw')
        k.wait_lg('kvw')
        e("s_barrier")
        for ep in range(2):
            e(f"ds_read_b128 v[{40+8*ep}:{43+8*ep}], v252 offset:{ep*2048}", tag='kvr')
            e(f"ds_read_b128 v[{44+8*ep}:{47+8*ep}], v252 offset:{ep*2048+1024}", tag='kvr')
        k.wait_lg('kvr')
        tl = [(ee, ep) for ee in range(2) for ep in range(2)]
        for i, (ee, ep) in enumerate(tl):
            pq = 128 + 8*ep + 4*ee; n = 176 + i*8
            e(f"{MF} v[{n}:{n+3}], v[{40+8*ep}:{43+8*ep}], v[{pq}:{pq+3}], 0")
            e(f"{MF} v[{n+4}:{n+7}], v[{44+8*ep}:{47+8*ep}], v[{pq}:{pq+3}], 0")
        for i in range(4): n = 176 + i*8; e(f"v_add_f32 v{n+4}, 0x358637bd, v{n+4}")
        for i in range(4): n = 176 + i*8; e(f"v_rcp_f32 v{n+4}, v{n+4}")
        for i in range(4):
            n = 176 + i*8
            e(f"v_pk_mul_f32 v[{n}:{n+1}], v[{n}:{n+1}], v[{n+4}:{n+5}] op_sel_hi:[1,0]\nv_pk_mul_f32 v[{n+2}:{n+3}], v[{n+2}:{n+3}], v[{n+4}:{n+5}] op_sel_hi:[1,0]")
        for i, (ee, ep) in enumerate(tl):
            n = 176 + i*8
            e(f"v_cvt_pk_bf16_f32 v{72+4*ee+2*ep}, v{n}, v{n+1}\nv_cvt_pk_bf16_f32 v{72+4*ee+2*ep+1}, v{n+2}, v{n+3}")
        self.pub([f"buffer_store_dwordx4 v[72:75], v253, {WS}, 0 offen",
                  f"buffer_store_dwordx4 v[76:79], v253, {WS}, {c16K} offen"], tag='os')
        self.flag('v254', 0, wait_tag='os')

    def phase_regs(self):
        e = self.e
        for ct in range(4): e(f"v_add_u32 v{56+ct}, 0x10000, v{14+ct}")
        self.fetch('tile', 'v60'); self.fetch('flag', 'v61'); self.fetch('fpoll', 'v62'); self.fetch('st_st', 'v63'); self.fetch('st_ld', 'v224')

    def unpack16(self, src, dst):
        for q in range(8):
            self.e(f"v_lshlrev_b32 v{dst+2*q}, 16, v{src+q}\nv_and_b32 v{dst+2*q+1}, 0xffff0000, v{src+q}")

    def a_reads(self, t, basereg, imm, tagp):
        buf = 128 + (t % 3)*16
        for ct in range(4):
            for h in range(2):
                self.e(f"ds_read_b64_tr_b16 v[{buf+4*ct+2*h}:{buf+4*ct+2*h+1}], v{basereg+ct} offset:{imm + h*2048}", tag=f'{tagp}{t}')

    def gemm64_pre(self, base, tagp):
        for t in range(3): self.a_reads(t, base, t*4096, tagp)

    def bload(self, t, btag):
        self.e(f"buffer_load_dwordx4 v[{64+4*t}:{67+4*t}], v225, {WS}, {CQ[t//4]} offen offset:{(t%4)*1024} sc1", tag=f'{btag}{t}')

    def gemm64_main(self, base, tagp, btag, first_zero=False, mid=None, late=(), pre_step=None):
        k = self.k
        late = list(late)
        D = self.opt.get('bdepth', 6)
        for t in range(D): self.bload(t, btag)
        if mid: mid()
        for t in range(16):
            k.wait_lg(f'{tagp}{t}')
            k.wait_vm(f'{btag}{t}')
            if self.opt.get('gstamp') and t in (0, 4, 8, 12): self.stamp(f'  {btag} t{t}')
            if pre_step: pre_step(t)
            buf = 128 + (t % 3)*16
            def mm():
                for ct in range(4):
                    self.mf(40+4*ct, f"v[{buf+4*ct}:{buf+4*ct+3}]", f"v[{64+4*t}:{67+4*t}]", first_zero and t == 0)
            rd = self.cap(self.a_reads, t+3, base, (t+3)*4096, tagp) if t + 3 < 16 else []
            bl = self.cap(self.bload, t+D, btag) if t + D < 16 else []
            if t + D >= 16 and late:
                bl = late[:3]; late = late[3:]
            self.weave(self.cap(mm), (bl, 1), (rd, 2))
        self.k.L += late

    def row_stats(self):
        e = self.e
        e("v_pk_add_f32 v[180:181], v[40:41], v[42:43]\nv_pk_mul_f32 v[182:183], v[40:41], v[40:41]")
        e("v_pk_add_f32 v[184:185], v[44:45], v[46:47]\nv_pk_mul_f32 v[186:187], v[44:45], v[44:45]")
        e("v_pk_fma_f32 v[182:183], v[42:43], v[42:43], v[182:183]\nv_pk_fma_f32 v[186:187], v[46:47], v[46:47], v[186:187]")
        for q in range(4, 8, 2):
            e(f"v_pk_add_f32 v[180:181], v[180:181], v[{40+2*q}:{41+2*q}]\nv_pk_add_f32 v[184:185], v[184:185], v[{42+2*q}:{43+2*q}]")
            e(f"v_pk_fma_f32 v[182:183], v[{40+2*q}:{41+2*q}], v[{40+2*q}:{41+2*q}], v[182:183]\nv_pk_fma_f32 v[186:187], v[{42+2*q}:{43+2*q}], v[{42+2*q}:{43+2*q}], v[186:187]")
        e("v_pk_add_f32 v[180:181], v[180:181], v[184:185]\nv_pk_add_f32 v[182:183], v[182:183], v[186:187]")
        e("v_add_f32 v180, v180, v181\nv_add_f32 v181, v182, v183")
        self.allred([('v180','v181')], 'v_add_f32')

    def pack(self, dst):
        for q in range(8): self.e(f"v_cvt_pk_bf16_f32 v{dst+q}, v{40+2*q}, v{41+2*q}")
    def pub_tile(self, pk, tag):
        self.pub([f"buffer_store_dwordx4 v[{pk}:{pk+3}], v60, {WS}, 0 offen",
                  f"buffer_store_dwordx4 v[{pk+4}:{pk+7}], v60, {WS}, 0 offen offset:1024"], tag=tag)
    def pub_stats(self, off, tag):
        self.e("s_mov_b64 exec, 0xffff")
        self.pub([f"buffer_store_dwordx2 v[180:181], v63, {WS}, 0 offen offset:{off}"], tag=tag)
        self.e("s_mov_b64 exec, -1")
    def load_stats(self, off, tag):
        self.e(f"buffer_load_dwordx4 v[188:191], v224, {WS}, 0 offen offset:{off} sc1", tag=tag)

    def reduce_stats(self, tag, m, rs):
        e = self.e
        self.k.wait_vm(tag)
        e("v_pk_add_f32 v[188:189], v[188:189], v[190:191]")
        self.allred([('v188','v189')], 'v_add_f32')
        e(f"""v_mul_f32 v{m}, {sINV}, v188
v_mul_f32 v189, {sINV}, v189
v_fma_f32 v189, -v{m}, v{m}, v189
v_max_f32 v189, 0, v189
v_add_f32 v190, {sEPS}, v189
v_rsq_f32 v{rs}, v190""")

    def gelu_pairs(self, regs, T):
        e = self.e
        P = list(enumerate(regs))
        for i, y in P: e(f"v_pk_mul_f32 v[{T+2*i}:{T+2*i+1}], v[{y}:{y+1}], v[{y}:{y+1}]")
        for i, y in P: e(f"v_pk_fma_f32 v[{T+2*i}:{T+2*i+1}], v[{T+2*i}:{T+2*i+1}], s[80:81], s[80:81] op_sel:[0,1,0] op_sel_hi:[1,1,0]")
        for i, y in P: e(f"v_pk_mul_f32 v[{T+2*i}:{T+2*i+1}], v[{T+2*i}:{T+2*i+1}], v[{y}:{y+1}]")
        for i, y in P: e(f"v_exp_f32 v{T+2*i}, v{T+2*i}\nv_exp_f32 v{T+2*i+1}, v{T+2*i+1}")
        for i, y in P: e(f"v_pk_add_f32 v[{T+2*i}:{T+2*i+1}], v[{T+2*i}:{T+2*i+1}], s[94:95]")
        for i, y in P: e(f"v_rcp_f32 v{T+2*i}, v{T+2*i}\nv_rcp_f32 v{T+2*i+1}, v{T+2*i+1}")
        for i, y in P: e(f"v_pk_mul_f32 v[{y}:{y+1}], v[{y}:{y+1}], v[{T+2*i}:{T+2*i+1}]")

    def cs1(self):
        e = self.e; k = self.k
        SC1 = 128*1024
        e(f"s_lshl_b32 {sT0}, {sW}, 5\nv_xor_b32 v184, {sT0}, v56")
        def rd(t):
            tt = t % 8
            for h in range(2): e(f"ds_read_b64_tr_b16 v[{64+4*tt+2*h}:{64+4*tt+2*h+1}], v184 offset:{t*4096 + h*2048}", tag=f'c1_{t}')
        for t in range(7): rd(t)
        e(f"""s_lshl_b32 {sT0}, {sW}, 6
v_lshlrev_b32 v185, 4, v3
v_add_u32 v185, {SC1}, v185
v_add_u32 v186, {sT0}, v185""")
        for t in range(16):
            k.wait_lg(f'c1_{t}')
            self.mf(188, f"v[{64+4*(t%8)}:{67+4*(t%8)}]", "v[20:23]", t == 0)
            if t + 7 < 16: rd(t+7)
        e(f"s_mov_b64 exec, {sS0}")
        e("ds_write_b128 v186, v[188:191]", tag='c1w')
        e("s_mov_b64 exec, -1")
        k.wait_lg('c1w')
        e("s_barrier")
        for ct in range(4): e(f"ds_read_b128 v[{208+4*ct}:{211+4*ct}], v185 offset:{ct*64}", tag='c1r')

    def phase_wo(self):
        e = self.e; k = self.k; o = self.opt
        self.phase_regs()
        self.cs1()
        self.gemm64_pre(14, 'ao')
        k.wait_vm('resx')
        self.unpack16(240, 40)
        self.fetch('o_poll', 'v184'); self.fetch('b_o', 'v225')
        self.poll('v184', 'v185')
        self.stamp('o ready')
        self.gemm64_main(14, 'ao', 'bo', late=self.cap(self.dma_w3, 2))
        self.stamp('wo gemm')
        self.pack(232)
        self.pub_tile(232, 'hs')
        self.row_stats()
        self.pub_stats(0, 'hs2')
        self.flag('v61', 0, wait_tag='hs2')

    def phase_w1(self):
        e = self.e; k = self.k; o = self.opt
        e("s_barrier")
        na = o.get('w2_a', 4)
        self.dma_w64(SRD_W2, 0, 'w2', range(na))
        self.gemm64_pre(56, 'a1')
        self.fetch('b_h', 'v225'); self.fetch('hh_st', 'v200'); self.fetch('hh_halo', 'v201'); self.fetch('hh_haloflag', 'v202')
        self.poll('v62', 'v185', 0)
        self.stamp('h ready')
        self.load_stats(0, 'sth')
        def mid():
            self.reduce_stats('sth', 230, 231)
            e(f"""v_mul_f32 v190, v231, v231
v_mul_f32 v190, v189, v190
v_add_f32 v190, {sEPS}, v190
v_rsq_f32 v190, v190
v_mul_f32 v228, v231, v190""")
        w2 = self.cap(self.dma_w64, SRD_W2, 0, 'w2', range(na, 16))
        nl = 3*o.get('w2_b', 6)
        self.gemm64_main(56, 'a1', 'b1', first_zero=True, mid=mid, late=w2[:nl])
        self.stamp('w1 gemm')
        k.wait_lg('c1r')
        def epi():
            for q in range(8):
                e(f"v_pk_fma_f32 v[{40+2*q}:{41+2*q}], v[{208+2*q}:{209+2*q}], v[230:231], v[{40+2*q}:{41+2*q}] op_sel_hi:[1,0,1] neg_lo:[1,0,0] neg_hi:[1,0,0]")
            for q in range(8):
                e(f"v_pk_mul_f32 v[{40+2*q}:{41+2*q}], v[{40+2*q}:{41+2*q}], v[228:229] op_sel_hi:[1,0]")
            self.gelu_pairs([40+2*q for q in range(8)], 64)
            self.pack(192)
        e("s_barrier")
        self.mix(self.cap(epi), w2[nl:] + self.cap(self.dma_w3, 0), 2.2)
        self.pub([f"buffer_store_dwordx4 v[192:195], v200, {WS}, 0 offen",
                  f"buffer_store_dwordx4 v[196:199], v200, {WS}, 0 offen offset:1024"], tag='hhs')
        Lh = k.label('Lhalo')
        e(f"s_cmp_eq_u64 s[68:69], 0\n~s_cbranch_scc1 {Lh}")
        k.push()
        e(f"""s_mov_b64 exec, s[68:69]
buffer_store_dwordx4 v[192:195], v201, {WS}, 0 offen sc1
buffer_store_dwordx4 v[196:199], v201, {WS}, 0 offen offset:1024 sc1
s_mov_b64 exec, -1""", nocount=True)
        self.flag('v202', 0, force_sc1=True)
        k.pop()
        e(f"~{Lh}:")
        self.flag('v61', 32, wait_tag='hhs')

    def phase_w2(self):
        e = self.e; k = self.k; o = self.opt
        e("s_barrier")
        self.gemm64_pre(14, 'a2')
        self.unpack16(232, 40)
        e("v_mul_f32 v229, v230, v231")
        for q in range(8):
            e(f"v_pk_fma_f32 v[{40+2*q}:{41+2*q}], v[{40+2*q}:{41+2*q}], v[230:231], v[228:229] op_sel:[0,1,1] op_sel_hi:[1,1,1] neg_lo:[0,0,1] neg_hi:[0,0,1]")
        self.fetch('b_o', 'v225'); self.fetch('hh_poll', 'v185'); self.fetch('halo_ld', 'v187')
        self.poll('v185', 'v186')
        self.stamp('hh ready')
        Le = k.label('Ledge')
        e(f"s_cmp_eq_u32 s92, 0\n~s_cbranch_scc1 {Le}")
        k.push()
        for idx in range(8):
            e(f"buffer_load_dwordx4 v[{192+4*idx}:{195+4*idx}], v187, {WS}, {'0' if idx < 4 else c8K} offen offset:{(idx&3)*1024} sc1", nocount=True)
        e("s_waitcnt vmcnt(0)")
        k.pop()
        e(f"~{Le}:")
        def merge(t):
            L = k.label('Lmg')
            idx = (t & 3) + 4*(t >> 3); m = 's[70:71]' if t < 8 else 's[72:73]'
            e(f"s_bitcmp1_b32 s92, {t}\n~s_cbranch_scc1 {L}\n~{L}_r:")
            ool = [f"{L}:"] + [f"v_cndmask_b32 v{64+4*t+q}, v{64+4*t+q}, v{192+4*idx+q}, {m}" for q in range(4)] + ["s_nop 1", f"s_branch {L}_r"]
            self.ool.append('\n'.join(ool))
        self.gemm64_main(14, 'a2', 'b2', pre_step=merge, late=self.cap(self.dma_w3, 1))
        self.stamp('w2 gemm')
        e("s_barrier")
        self.pack(192)
        self.pub_tile(192, 'x1s')
        self.mix(self.cap(self.row_stats), self.cap(self.dma_w3, 3), 2.5)
        self.pub_stats(2048, 'x1s2')
        self.flag('v61', 64, wait_tag='x1s2')
        def hx():
            self.unpack16(232, 208)
            for q in range(8):
                e(f"v_pk_add_f32 v[{208+2*q}:{209+2*q}], v[{208+2*q}:{209+2*q}], v[{40+2*q}:{41+2*q}]")
            for q in range(16): e(f"v_accvgpr_write_b32 a{240+q}, v{208+q}")
        self.mix(self.cap(hx), self.cap(self.dma_w3, 4), 2)

    def mlp_setup(self):
        e = self.e
        e(f"""v_lshrrev_b32 v18, 3, v0
v_and_b32 v5, 6, v18
v_and_b32 v6, 7, v0
v_xor_b32 v6, v6, v5
v_mul_u32_u24 v4, 2752, v18
v_lshl_add_u32 v4, v6, 4, v4
s_lshl_b32 {sT0}, {sF0}, 1
s_mul_i32 {sT1}, {sW}, {16*2752}
s_add_u32 {sT0}, {sT0}, {sT1}
v_add_u32 v4, {sT0}, v4
v_cmp_gt_u32 vcc, {sFW}, v6
v_mov_b32 v5, {hex(OOB)}
v_cndmask_b32 v5, v5, v4, vcc
s_lshl_b32 {sT0}, {sW}, 13
v_add_u32 v6, {sT0}, v8
s_lshl_b32 s98, {sW}, 10
s_lshl_b32 s99, {sRHO}, 14
s_mul_i32 {sROT}, {sI}, 11""")

    W3A = [65536, 65536+24576, 131072, 16384, 40960, 65536, 65536+24576, 131072]
    X1A = [114688, 122880, 0, 8192, 114688, 122880, 0, 8192]
    def dma_w3(self, c):
        self.e(f"s_lshl_b32 s0, {sI}, 1\ns_add_u32 s0, s0, {c}\ns_and_b32 s0, s0, 7\ns_mul_i32 s1, s0, {64*2752}")
        for q in range(3):
            for u in range(2):
                self.dma(f'v{4 if q < 2 else 5}', SRD_W3, ('s1', 8*u*2752 + q*128), self.W3A[c] + q*8192 + u*1024, f'm{c}')
    def dma_x1(self, c):
        self.e(f"s_lshl_b32 s0, {sI}, 1\ns_add_u32 s0, s0, {c}\ns_and_b32 s0, s0, 7\ns_lshl_b32 s0, s0, 11\ns_add_u32 s0, s0, s99")
        for u in range(2):
            self.dma('v1', SRD_WS, ('s0', X1B + u*1024), self.X1A[c] + u*1024, f'm{c}', sc1=True)
    def dma_w4(self, p, slot):
        self.e(f"s_add_u32 s0, {sROT}, {p}\ns_sub_u32 s1, s0, 43\ns_cmp_lt_u32 s0, 43\ns_cselect_b32 s0, s0, s1\ns_lshl_b32 s0, s0, 15")
        self.dma('v6', SRD_W4, ('s0', 0), slot*4096, f'w4_{p}', wave_lds='s98')

    def w3_reads(self, c):
        def base(addr, regs): return regs[addr >> 16], addr & 0xffff
        par = c % 2
        for u in range(2):
            for rl in range(4):
                b = 40 + par*32 + u*16 + rl*4
                r, o = base(self.X1A[c] + (rl*2+u)*1024, ('v1', 'v110'))
                self.e(f"ds_read_b128 v[{b}:{b+3}], {r} offset:{o}", tag=f'mr{c}')
            for q in range(3):
                b = 192 + par*24 + u*12 + q*4
                for h in range(2):
                    r, o = base(self.W3A[c] + q*8192 + u*4096 + h*2048, ('v108', 'v109', 'v111'))
                    self.e(f"ds_read_b64_tr_b16 v[{b+2*h}:{b+2*h+1}], {r} offset:{o}", tag=f'mr{c}')
    def w3_mfma(self, c):
        par = c % 2
        for u in range(2):
            for q in range(3):
                wb = 192 + par*24 + u*12 + q*4
                for rl in range(4):
                    acc = 128 + (q*4+rl)*4; xbb = 40 + par*32 + u*16 + rl*4
                    self.mf(acc, f"v[{wb}:{wb+3}]", f"v[{xbb}:{xbb+3}]", c == 0 and u == 0)
                self.mf(176+4*q, f"v[{wb}:{wb+3}]", "v[20:23]", c == 0 and u == 0)

    def phase_w3(self):
        e = self.e; k = self.k; o = self.opt
        SC = 152*1024; XCH = 120*1024
        e("v_mov_b32 v112, v62\nv_mov_b32 v113, v61")
        e(f"s_lshl_b32 {sT0}, {sW}, 5\nv_xor_b32 v108, {sT0}, v14\nv_add_u32 v109, 0x10000, v108\nv_add_u32 v110, 0x10000, v1\nv_add_u32 v111, 0x20000, v108")
        e(f"""s_lshl_b32 {sT0}, {sW}, 7
v_lshlrev_b32 v104, 3, v2
v_add_u32 v104, {SC+1024}, v104
v_add_u32 v105, {sT0}, v104""")
        self.poll('v112', 'v185', 64)
        self.stamp('x1 ready')
        self.load_stats(2048, 'stx')
        for c in range(2): self.dma_x1(c)
        self.reduce_stats('stx', 106, 107)
        e("ds_write_b64 v105, v[106:107]", tag='s3w')
        k.wait_lg('s3w')
        k.wait_vm('m0'); e("s_barrier")
        for rl in range(4): e(f"ds_read_b64 v[{240+2*rl}:{241+2*rl}], v104 offset:{rl*128}", tag='s3r')
        self.w3_reads(0)
        for c in range(8):
            if c < 7:
                k.wait_vm(f'm{c+1}'); e("s_barrier")
            k.wait_lg(f'mr{c}')
            main = self.cap(self.w3_mfma, c)
            rd = self.cap(self.w3_reads, c+1) if c < 7 else []
            def dmf():
                if c == 0: self.dma_x1(2); self.dma_x1(3)
                if 1 <= c <= 3: self.dma_x1(c+3); self.dma_w3(c+4)
                if c == 4: self.dma_x1(7)
            self.weave(main, (rd, 0.8), (self.cap(dmf), 0.9))
        self.stamp('w3 gemm')
        e("s_barrier")
        k.wait_lg('s3r')
        e(f"""s_lshr_b32 {sT0}, {sW}, 1
s_lshl_b32 {sT0}, {sT0}, 10
s_and_b32 {sT1}, {sW}, 1
s_lshl_b32 {sT1}, {sT1}, 3
s_add_u32 {sT0}, {sT0}, {sT1}
s_add_u32 {sT0}, {sT0}, {XCH}
v_add_u32 v104, {sT0}, v1
s_mul_i32 {sT0}, {sW}, 6144
s_add_u32 {sT0}, {sT0}, {XCH}
v_add_u32 v105, {sT0}, v1
s_lshr_b32 {sT0}, {sF0}, 5
s_add_u32 {sT0}, {sT0}, 43
s_sub_u32 {sT0}, {sT0}, {sROT}""")
        for uu in range(6):
            e(f"s_add_u32 s{8+uu}, {sT0}, {uu}\ns_sub_u32 {sT1}, s{8+uu}, 43\ns_cmp_lt_u32 s{8+uu}, 43\ns_cselect_b32 s{8+uu}, s{8+uu}, {sT1}\ns_lshl_b32 s{8+uu}, s{8+uu}, 10")
        e(f"s_cmp_eq_u32 {sFW}, 8\ns_cselect_b32 s13, s13, {hex(OOB)}")
        self.fetch('hid_st', 'v106')
        def epi():
            for q in range(3):
                for rl in range(4):
                    acc = 128 + (q*4+rl)*4; cs = 176 + 4*q; m = 240 + 2*rl
                    for p in range(2):
                        e(f"v_pk_fma_f32 v[{acc+2*p}:{acc+2*p+1}], v[{cs+2*p}:{cs+2*p+1}], v[{m}:{m+1}], v[{acc+2*p}:{acc+2*p+1}] op_sel_hi:[1,0,1] neg_lo:[1,0,0] neg_hi:[1,0,0]")
                for rl in range(4):
                    acc = 128 + (q*4+rl)*4; m = 240 + 2*rl
                    for p in range(2):
                        e(f"v_pk_mul_f32 v[{acc+2*p}:{acc+2*p+1}], v[{acc+2*p}:{acc+2*p+1}], v[{m}:{m+1}] op_sel:[0,1] op_sel_hi:[1,1]")
                self.gelu_pairs([128 + q*16 + 2*i for i in range(8)], 40)
                for rl in range(4):
                    acc = 128 + (q*4+rl)*4
                    e(f"v_cvt_pk_bf16_f32 v{72+8*q+2*rl}, v{acc}, v{acc+1}\nv_cvt_pk_bf16_f32 v{73+8*q+2*rl}, v{acc+2}, v{acc+3}")
                for rl in range(4):
                    e(f"ds_write_b64 v104, v[{72+8*q+2*rl}:{73+8*q+2*rl}] offset:{(rl*6 + 2*q)*1024}", tag='hidw')
        n1 = o.get('w4_n1', 20)
        self.mix(self.cap(epi), self.cap(lambda: [self.dma_w4(u, u) for u in range(n1)]), 4)
        k.wait_lg('hidw')
        e("s_barrier")
        self.stamp('gelu done')
        for uu in range(6): e(f"ds_read_b128 v[{40+4*uu}:{43+4*uu}], v105 offset:{uu*1024}", tag='hidr')
        k.wait_lg('hidr')
        lines = [f"buffer_store_dwordx4 v[{40+4*uu}:{43+4*uu}], v106, {WS}, s{8+uu} offen" for uu in range(6)]
        self.pub(lines, tag='hids')
        self.flag('v113', 96, wait_tag='hids')
        for u in range(n1, 30): self.dma_w4(u, u)
        e("s_barrier")
        for u in range(30, 36): self.dma_w4(u, u)

    def phase_w4(self):
        e = self.e; k = self.k
        for ct in range(4):
            e(f"v_mov_b32 v{176+ct}, v{14+ct}\nv_add_u32 v{180+ct}, 0x10000, v{14+ct}\nv_add_u32 v{184+ct}, 0x20000, v{14+ct}")
        self.fetch('hid_ld', 'v225'); self.fetch('out_st', 'v224')
        self.poll('v112', 'v189', 96)
        self.stamp('hid ready')
        e("s_barrier")
        NK = 43
        def slot(t): return t if t < 36 else t - 36
        def ard(t):
            ad = slot(t)*4096
            self.a_reads(t, 176 + 4*(ad >> 16), ad & 0xffff, 'a4')
        def bld(t):
            if t % 4 == 0: e(f"s_mov_b32 {sT5}, {t*1024}")
            b = 64 + 4*(t % 16)
            e(f"buffer_load_dwordx4 v[{b}:{b+3}], v225, {WS}, {sT5} offen offset:{(t%4)*1024} sc1", tag=f'b4{t}')
        D = self.opt.get('bdepth4', 6)
        for t in range(D): bld(t)
        for t in range(3): ard(t)
        for t in range(NK):
            if t == 8: e("s_barrier")
            if t == 31:
                k.wait_vm('w4_42'); e("s_barrier")
            k.wait_lg(f'a4{t}')
            k.wait_vm(f'b4{t}')
            buf = 128 + (t % 3)*16; b = 64 + 4*(t % 16)
            def mm():
                for ct in range(4):
                    self.mf(240+4*ct, f"v[{buf+4*ct}:{buf+4*ct+3}]", f"v[{b}:{b+3}]", ag=True)
            def side():
                if t + 3 < NK: ard(t+3)
            def side2():
                if t + D < NK: bld(t+D)
                if 8 <= t < 15: self.dma_w4(36 + t - 8, t - 8)
            self.weave(self.cap(mm), (self.cap(side2), 1), (self.cap(side), 2))
        self.stamp('w4 gemm')
        for q in range(16): e(f"v_accvgpr_read_b32 v{40+q}, a{240+q}")
        for q in range(8): e(f"v_cvt_pk_bf16_f32 v{56+q}, v{40+2*q}, v{41+2*q}")
        for pp in range(2):
            b = 56 + 4*pp
            e(f"v_permlane16_swap_b32 v{b}, v{b+2}\nv_permlane16_swap_b32 v{b+1}, v{b+3}")
        for pp in range(2):
            b = 56 + 4*pp
            e(f"buffer_store_dwordx4 v[{b}:{b+3}], v224, {srd(SRD_OUT)}, 0 offen offset:{pp*64}")

    def epoch_update(self):
        e = self.e
        e(f"""s_or_b32 {sT0}, s2, {sW}
s_cmp_eq_u32 {sT0}, 0
s_cselect_b32 {sT0}, {EPOCH}, {hex(OOB)}
s_mov_b64 exec, 1
buffer_store_dword v9, off, {WS}, {sT0} sc1
s_mov_b64 exec, -1""")

    def finish(self):
        e = self.e
        if self.debug:
            e(f"""s_lshl_b32 {sT0}, s2, 10
s_lshl_b32 {sT1}, {sW}, 8
s_add_u32 {sT0}, {sT0}, {sT1}
s_add_u32 {sT0}, {sT0}, {DBG}
s_memrealtime s[84:85]
s_waitcnt lgkmcnt(0)
s_sub_u32 s84, s84, s90
v_writelane_b32 v19, s84, 61
v_writelane_b32 v19, s90, 60
v_writelane_b32 v19, {sTO}, 62
v_writelane_b32 v19, {sFAST}, 63
v_lshlrev_b32 v18, 2, v0
buffer_store_dword v19, v18, {WS}, {sT0} offen""")
        e("s_waitcnt vmcnt(0)")
        e("L_end:\ns_endpgm")
        for blk in self.ool: e(blk)

    def build(self):
        k = self.k; e = self.e
        self.prologue()
        self.stamp('prologue')
        k.raw('@PAGESTART')
        self.pass_k(); self.ids_check(); self.stamp('pass k')
        self.pass_v(); self.stamp('pass v')
        self.kv_publish(); self.stamp('kv1 pub')
        self.pass_q(); self.stamp('pass q')
        e("s_barrier")
        k.push(); self.reduce1a(); k.pop()
        self.stamp('reduce1')
        qf = self.cap(self.qfeat)
        cut = int(len(qf)*self.opt.get('qcut', 70)/100)
        k.L += qf[:cut]
        k.push(); self.reduce1b(); k.pop()
        k.L += qf[cut:]
        self.touches(list(range(4, 16)))
        self.setup_addr(1)
        self.mlp_setup()
        e(f"s_cmp_eq_u32 {sW}, 0\ns_cbranch_scc1 L_qd\ns_barrier")
        k.push()
        e(f"s_sub_u32 {sT0}, {sW}, 1\ns_mul_i32 {sT0}, {sT0}, 22\ns_lshl_b32 {sT1}, {sI}, 4\ns_add_u32 {sT0}, {sT0}, {sT1}")
        for n in range(22):
            e(f"s_add_u32 s0, {sT0}, {n}\ns_and_b32 s0, s0, 63\ns_lshl_b32 s1, s0, 13\ns_lshl_b32 s0, s0, 10")
            self.dma('v8', SRD_W1, ('s1', 0), 0x10000, 'w1', wave_lds='s0')
        k.pop()
        e("L_qd:")
        self.setup_shift()
        self.stamp('qfeat')
        self.final_kv_and_o(); self.stamp('o pub')
        self.phase_wo(); self.epoch_update(); self.stamp('h pub')
        self.phase_w1(); self.stamp('hh pub')
        self.phase_w2(); self.stamp('x1 pub')
        self.phase_w3(); self.stamp('hid pub')
        self.phase_w4(); self.stamp('end')
        self.finish()
        body = k.finalize()
        lds = 160*1024
        hdr = open('cdna_kernels/' + NAME[:-7] + '.s.ref').read().split('\n')
        top = [l for l in hdr if l.startswith(';') and '@launch' not in l and 'Override' not in l and 'grid=ceil' not in l]
        txt = '\n'.join(top) + '\n'
        txt += f"; @launch grid=(256,1,1) block=(256,1,1) lds={lds}\n"
        txt += f""".amdgcn_target "amdgcn-amd-amdhsa--gfx950"
.text
.globl {NAME}
.p2align 8
.type {NAME},@function
{NAME}:
{body}
.section .rodata,"a"
.p2align 6
.amdhsa_kernel {NAME}
  .amdhsa_next_free_vgpr 512
  .amdhsa_next_free_sgpr 102
  .amdhsa_accum_offset 256
  .amdhsa_group_segment_fixed_size 0
  .amdhsa_kernarg_size 96
  .amdhsa_user_sgpr_count 2
  .amdhsa_user_sgpr_kernarg_segment_ptr 1
  .amdhsa_system_sgpr_workgroup_id_x 1
  .amdhsa_float_denorm_mode_32 3
.end_amdhsa_kernel
"""
        return txt

def generate(debug=True, opt=None):
    g = G(debug=debug, npages=0, opt=opt); g.build(); n = g.k.npages
    n2 = n if not (opt or {}).get('notouch') else 0
    g = G(debug=debug, npages=n2, opt=opt); txt = g.build()
    if g.k.npages != n:
        n = g.k.npages
        g = G(debug=debug, npages=n, opt=opt); txt = g.build()
    return txt, g

if __name__ == '__main__':
    debug = '--nodebug' not in sys.argv
    opt = {}
    for a in sys.argv[1:]:
        if '=' in a and not a.startswith('/'): kk, v = a.split('='); opt[kk.lstrip('-')] = int(v)
    txt, g = generate(debug, opt)
    out = sys.argv[1] if len(sys.argv) > 1 and not sys.argv[1].startswith('--') and '=' not in sys.argv[1] else 'k4.s'
    open(out, 'w').write(txt)
    open('stamps.txt', 'w').write('\n'.join(g.stamp_names))
    print('wrote', out, len(txt), 'bytes', txt.count('\n'), 'lines; pages', g.k.npages)
```

```python
import re

TRANS = ('v_exp_f32','v_log_f32','v_rcp_f32','v_rsq_f32','v_sqrt_f32','v_sin_f32','v_cos_f32')

class Ins:
    __slots__ = ('text','kind','tag','nocount','op','wr','rd','cls','passes','srcC','comment')
    def __init__(self, text, kind='i', tag=None, nocount=False):
        self.text = text; self.kind = kind; self.tag = tag; self.nocount = nocount; self.comment = None

REG_RE = re.compile(r'\b([vas])(?:(\d+)|\[(\d+):(\d+)\])')
def regs_of(tok):
    out = []
    for m in REG_RE.finditer(tok):
        t = m.group(1)
        if m.group(2) is not None: out.append((t, int(m.group(2))))
        else: out += [(t, i) for i in range(int(m.group(3)), int(m.group(4))+1)]
    if re.search(r'\bvcc\b', tok): out += [('s','vcc')]
    if re.search(r'\bexec\b', tok): out += [('s','exec')]
    if re.search(r'\bm0\b', tok): out += [('s','m0')]
    return out

def split_ops(s):
    ops = []; depth = 0; cur = ''
    for ch in s:
        if ch == '[': depth += 1
        if ch == ']': depth -= 1
        if ch == ',' and depth == 0: ops.append(cur.strip()); cur = ''
        else: cur += ch
    if cur.strip(): ops.append(cur.strip())
    return ops

def analyze(ins):
    t = ins.text.split(';')[0].strip()
    parts = t.split(None, 1)
    op = parts[0]; rest = parts[1] if len(parts) > 1 else ''
    ins.op = op; ins.wr = []; ins.rd = []; ins.cls = 'other'; ins.passes = 0; ins.srcC = []
    ops = split_ops(rest)
    if op.startswith('v_mfma'):
        ins.cls = 'mfma'
        ins.passes = 8 if '32x32' in op else 4
        ins.wr = regs_of(ops[0]); ins.rd = regs_of(ops[1]) + regs_of(ops[2]) + regs_of(ops[3].split()[0])
        ins.srcC = regs_of(ops[3].split()[0])
    elif op.startswith('v_'):
        base = op.replace('_e32','').replace('_e64','').replace('_dpp','').replace('_sdwa','')
        ins.cls = 'valu'
        if base in TRANS: ins.cls = 'trans'
        mods = ops[-1] if ops else ''
        if 'row_' in t or 'quad_perm' in t or '_dpp' in op or 'wave_' in t: ins.cls = 'dpp'
        if base.startswith('v_permlane'):
            ins.cls = 'permlane'; ins.wr = regs_of(ops[0]) + regs_of(ops[1]); ins.rd = list(ins.wr)
        elif base.startswith('v_cmp'):
            ins.wr = regs_of(ops[0]); ins.rd = sum((regs_of(o.split()[0]) for o in ops[1:]), [])
            if base.startswith('v_cmpx'): ins.wr += [('s','exec')]
        elif base in ('v_readfirstlane_b32','v_readlane_b32'):
            ins.cls = 'readlane'; ins.wr = regs_of(ops[0]); ins.rd = sum((regs_of(o.split()[0]) for o in ops[1:]), [])
        elif base == 'v_writelane_b32':
            ins.cls = 'writelane'; ins.wr = regs_of(ops[0]); ins.rd = sum((regs_of(o.split()[0]) for o in ops[1:]), []) + ins.wr
        elif base in ('v_add_co_u32','v_sub_co_u32','v_addc_co_u32','v_subb_co_u32'):
            ins.wr = regs_of(ops[0]) + regs_of(ops[1]); ins.rd = sum((regs_of(o.split()[0]) for o in ops[2:]), [])
        else:
            ins.wr = regs_of(ops[0]); ins.rd = sum((regs_of(o.split()[0]) for o in ops[1:]), [])
            if base in ('v_fmac_f32','v_dot2c_f32_bf16','v_pk_fmac_f16'): ins.rd += ins.wr
            if base == 'v_cndmask_b32' and len(ops) == 3: ins.rd += [('s','vcc')]
    elif op.startswith('buffer_') or op.startswith('global_'):
        ins.cls = 'vmem'
        islds = re.search(r'\blds\b', t) is not None
        if 'load' in op and not islds:
            ins.wr = regs_of(ops[0]); ins.rd = sum((regs_of(o.split()[0]) for o in ops[1:]), [])
        else:
            ins.rd = sum((regs_of(o.split()[0]) for o in ops), [])
            if islds: ins.rd += [('s','m0')]
            if 'store' in op: ins.cls = 'vstore'
    elif op.startswith('ds_'):
        ins.cls = 'ds'
        if op.startswith('ds_read') or 'permute' in op or 'swizzle' in op:
            ins.wr = regs_of(ops[0]); ins.rd = sum((regs_of(o.split()[0]) for o in ops[1:]), [])
        else:
            ins.rd = sum((regs_of(o.split()[0]) for o in ops), [])
    elif op.startswith('s_'):
        ins.cls = 'salu'
        if op in ('s_waitcnt','s_nop','s_barrier','s_branch','s_endpgm','s_sleep','s_setprio') or op.startswith('s_cbranch'):
            pass
        elif op.startswith('s_cmp') or op.startswith('s_bitcmp'):
            ins.rd = sum((regs_of(o.split()[0]) for o in ops), [])
        elif op in ('s_setpc_b64',):
            ins.rd = regs_of(ops[0])
        else:
            ins.wr = regs_of(ops[0]); ins.rd = sum((regs_of(o.split()[0]) for o in ops[1:]), [])
            if 'saveexec' in op: ins.wr += [('s','exec')]; ins.rd += [('s','exec')]
    return ins

def nstates(ins):
    if ins.op == 's_nop': return int(ins.text.split()[1].split(';')[0]) + 1
    return 1

def need(p, c):
    n = 0
    pw = set(p.wr); cr = set(c.rd); cw = set(c.wr)
    isvalu = lambda i: i.cls in ('valu','trans','dpp','permlane','readlane','writelane')
    vw = set(r for r in pw if r[0] in 'va')
    sw = set(r for r in pw if r[0] == 's')
    if p.cls == 'mfma':
        D = vw
        if c.cls == 'mfma':
            C = set(c.srcC); AB = cr - C if False else set(c.rd[:len(c.rd)-len(c.srcC)])
            if AB & D: n = max(n, {4:8, 8:12}[p.passes])
            if C & D:
                if C == D and c.passes == p.passes: pass
                else: n = max(n, {4:6, 8:10}[p.passes])
            if (cw & D) and not (C & D): n = max(n, {4:8, 8:12}[p.passes])
        elif isvalu(c) or c.cls in ('vmem','vstore','ds'):
            if (cr | cw) & D: n = max(n, {4:8, 8:12}[p.passes])
        if isvalu(c) and (cw & set(p.srcC)): n = max(n, {4:3, 8:7}[p.passes])
    if isvalu(p):
        if c.cls == 'mfma' and (cr & vw): n = max(n, 2)
        if c.cls in ('dpp',) and (cr & vw): n = max(n, 2)
        if c.cls == 'permlane' and (cr & vw): n = max(n, 2)
        if c.cls == 'readlane' and (cr & vw): n = max(n, 1)
        if p.cls == 'trans' and isvalu(c) and c.cls != 'trans' and (cr & vw): n = max(n, 1)
        if p.cls == 'trans' and c.cls == 'trans' and (cr & vw): n = max(n, 1)
        if sw:
            if isvalu(c) and (cr & sw): n = max(n, 2)
            if c.cls in ('readlane','writelane') and (cr & sw): n = max(n, 4)
            if c.cls in ('vmem','vstore') and (cr & sw): n = max(n, 5)
            if ('s','exec') in sw and (isvalu(c) or c.cls == 'mfma'): n = max(n, 5)
            if c.op.startswith('s_cbranch_vcc') and ('s','vcc') in sw: n = max(n, 0)
            if c.cls == 'salu' and (cr & sw): n = max(n, 1)
    if p.cls == 'vstore' and ('x4' in p.op or 'x3' in p.op):
        data = set(r for r in p.rd if r[0] in 'va')
        if (cw & data): n = max(n, 2)
    if p.cls == 'salu' and ('s','m0') in pw and c.cls in ('vmem',) and ('s','m0') in cr: n = max(n, 1)
    if p.cls == 'salu' and ('s','exec') in pw and c.cls == 'mfma': n = max(n, 4)
    return n

class Kern:
    def __init__(self):
        self.L = []
        self.lbl = 0
    def e(self, text, tag=None, nocount=False):
        for line in text.strip().split('\n'):
            line = line.strip()
            if not line or line.startswith(';'): continue
            np_ = line.startswith('~')
            if np_: line = line[1:]
            if line.endswith(':'): self.L.append(Ins(line, 'label_np' if np_ else 'label'))
            else:
                i = Ins(line, 'i', tag, nocount); i.comment = 'np' if np_ else None; self.L.append(i)
    def wait_vm(self, tag): self.L.append(Ins('', 'wvm', tag))
    def wait_lg(self, tag): self.L.append(Ins('', 'wlg', tag))
    def wait_vm_all(self): self.L.append(Ins('s_waitcnt vmcnt(0)', 'i'))
    def wait_lg_all(self): self.L.append(Ins('s_waitcnt lgkmcnt(0)', 'i'))
    def label(self, p='L'):
        self.lbl += 1; return f'{p}_{self.lbl}'
    def push(self): self.L.append(Ins('', 'push'))
    def pop(self): self.L.append(Ins('', 'pop'))
    def raw(self, text): self.L.append(Ins(text, 'raw'))
    def capture(self):
        prev = self.L; self.L = []; return prev
    def end_capture(self, prev):
        got = self.L; self.L = prev; return got
    def extend(self, lst): self.L += lst

    def finalize(self):
        out = []
        vmq = []; lgq = []
        done_vm = set(); done_lg = set()
        stack = []
        hist = []
        def flush_hist(n):
            pass
        def emit(ins):
            analyze(ins)
            if ins.op == 's_waitcnt' and out and out[-1].kind == 'i' and out[-1].text.startswith('s_waitcnt'):
                a, b = out[-1].text, ins.text
                def g(t, n):
                    m = re.search(n + r'\((\d+)\)', t); return int(m.group(1)) if m else None
                parts = []
                for n in ('vmcnt', 'lgkmcnt'):
                    vals = [v for v in (g(a, n), g(b, n)) if v is not None]
                    if vals: parts.append(f'{n}({min(vals)})')
                out[-1].text = 's_waitcnt ' + ' '.join(parts)
                return
            reqn = 0; dist = 0
            for p in reversed(hist):
                nd = need(p, ins)
                if nd - dist > reqn: reqn = nd - dist
                dist += nstates(p)
                if dist > 20: break
            while reqn > 0:
                k = min(reqn, 16)
                nop = Ins(f's_nop {k-1}'); analyze(nop); out.append(nop); hist.append(nop); reqn -= k
            out.append(ins); hist.append(ins)
            if len(hist) > 40: del hist[:-30]
        def pad_worst():
                worst = 0; dist = 0
                for p in reversed(hist):
                    w = 0
                    if p.cls == 'mfma': w = {4:8, 8:12}[p.passes]
                    elif p.cls in ('valu','trans','dpp','permlane','readlane','writelane'):
                        w = 5 if any(r[0]=='s' for r in p.wr) else 2
                    elif p.cls == 'vstore': w = 2
                    elif p.cls == 'salu' and (('s','m0') in p.wr): w = 1
                    if w - dist > worst: worst = w - dist
                    dist += nstates(p)
                    if dist > 20: break
                while worst > 0:
                    k = min(worst, 16)
                    nop = Ins(f's_nop {k-1}'); analyze(nop); out.append(nop); hist.append(nop); worst -= k
        for ins in self.L:
            if ins.kind == 'raw':
                out.append(ins); continue
            if ins.kind == 'label_np':
                out.append(ins); continue
            if ins.kind == 'label':
                pad_worst()
                out.append(ins); del hist[:]
                continue
            if ins.kind == 'i' and getattr(ins, 'comment', None) != 'np' and (ins.text.startswith('s_branch') or ins.text.startswith('s_cbranch') or ins.text.startswith('s_swappc') or ins.text.startswith('s_setpc')):
                pad_worst()
            if ins.kind == 'push':
                stack.append((list(vmq), list(lgq), set(done_vm), set(done_lg))); continue
            if ins.kind == 'pop':
                vmq, lgq, done_vm, done_lg = stack.pop(); continue
            if ins.kind == 'wvm':
                if ins.tag in done_vm: continue
                assert ins.tag in vmq, f'wait_vm unknown tag {ins.tag}'
                idx = len(vmq) - 1 - vmq[::-1].index(ins.tag)
                n = len(vmq) - 1 - idx
                w = Ins(f's_waitcnt vmcnt({min(n,63)})'); emit(w)
                keep = min(n, 63)
                for t in vmq[:len(vmq)-keep]: done_vm.add(t)
                vmq = vmq[len(vmq)-keep:] if keep else []
                continue
            if ins.kind == 'wlg':
                if ins.tag in done_lg: continue
                assert ins.tag in lgq, f'wait_lg unknown tag {ins.tag}'
                idx = len(lgq) - 1 - lgq[::-1].index(ins.tag)
                n = len(lgq) - 1 - idx
                w = Ins(f's_waitcnt lgkmcnt({min(n,15)})'); emit(w)
                keep = min(n, 15)
                for t in lgq[:len(lgq)-keep]: done_lg.add(t)
                lgq = lgq[len(lgq)-keep:] if keep else []
                continue
            emit(ins)
            if ins.op == 's_waitcnt':
                m = re.search(r'vmcnt\((\d+)\)', ins.text)
                if m:
                    keep = int(m.group(1))
                    for t in vmq[:len(vmq)-keep] if keep else vmq: done_vm.add(t)
                    vmq = vmq[len(vmq)-keep:] if keep else []
                m = re.search(r'lgkmcnt\((\d+)\)', ins.text)
                if m:
                    keep = int(m.group(1))
                    for t in lgq[:len(lgq)-keep] if keep else lgq: done_lg.add(t)
                    lgq = lgq[len(lgq)-keep:] if keep else []
            elif not ins.nocount:
                if ins.cls in ('vmem','vstore'):
                    tag = ins.tag if ins.tag is not None else object()
                    vmq.append(tag); done_vm.discard(tag)
                elif ins.cls == 'ds' or ins.op.startswith('s_load') or ins.op in ('s_memtime','s_memrealtime'):
                    tag = ins.tag if ins.tag is not None else object()
                    lgq.append(tag); done_lg.discard(tag)
        return self.paginate(out)

    @staticmethod
    def sizes(out):
        import subprocess
        txt = '\n'.join(i.text for i in out if not (i.kind == 'raw' and i.text.startswith('@'))) + '\n'
        r = subprocess.run(['llvm-mc', '-arch=amdgcn', '-mcpu=gfx950', '-show-encoding'], input=txt, capture_output=True, text=True)
        assert r.returncode == 0, r.stderr[:2000]
        sz = [len(m.group(1).split(',')) for m in re.finditer(r'encoding: \[([^\]]*)\]', r.stdout)]
        return sz
    def paginate(self, out):
        if not getattr(self, 'paged', False):
            return '\n'.join(i.text for i in out) + '\n'
        lines = []; size = 0; page = 0; started = False
        szs = iter(self.sizes(out))
        for ins in out:
            if ins.kind == 'raw' and ins.text == '@PAGESTART':
                lines.append('s_branch Lpg_0_n\n.p2align 12\nLpg_0:\ns_setpc_b64 s[100:101]\nLpg_0_n:'); started = True; size = 4; page = 1; continue
            sz = next(szs) if ins.kind not in ('label','label_np','raw') else 0
            if started and size + sz > 4096 - 8 and getattr(ins, 'op', '') not in ('s_nop',) and ins.kind not in ('label','label_np'):
                lines.append(f's_branch Lpg_{page}_n\n.p2align 12\nLpg_{page}:\ns_setpc_b64 s[100:101]\nLpg_{page}_n:'); size = 4; page += 1
            lines.append(ins.text); size += sz
        self.npages = page
        return '\n'.join(lines) + '\n'
```

```python
import sys, struct, os
from asmgen import Kern, Ins

NAME = 'sequential_preLN__linear_kernel_hedgehog__mixer_s_mlp__prompt_kernel'
def f2u(x): return struct.unpack('<I', struct.pack('<f', x))[0]

EPOCH = 0
IDS   = 0x1000
F_KV2 = 0x2000
F_KV1 = 0x4000
F_HALO= 0x6000
FLG   = 0x8000
DBG   = 0x10000
KV1Z  = 0x60000
KV2K  = 0xA0000
KV2Z  = 0xE0000
ST    = 0x100000
HALO  = 0x180000
OB    = 0x200000
HHB   = 0x200000
HB    = 0x400000
X1B   = 0x400000
HIDB  = 0x600000
HIDS  = 44*1024
WS_BYTES = 0x10000000
OOB   = 0x40000000
INC   = 0x9E3779B0

SRD_X, SRD_WQKV, SRD_WPHI, SRD_WO, SRD_W1, SRD_W2, SRD_W3, SRD_W4, SRD_OUT, SRD_WS = [8+4*i for i in range(10)]
def srd(b): return f's[{b}:{b+3}]'
WS = srd(SRD_WS)
sX, sI, sJ, sR, sW, sA, sB, sT, sFAST, sTO, sXCC, sRHO = [f's{i}' for i in range(48, 60)]
sM0W = 's60'; sCNT = 's61'
sT0, sT1, sT2, sT3, sT4, sT5 = 's62','s63','s64','s65','s66','s67'
sMK1, sMK2, sMK3, sMKD = 's[68:69]','s[70:71]','s[72:73]','s[74:75]'
sS0 = 's[76:77]'; sLL = 's[78:79]'
sEPS = 's82'; sINV = 's83'; sTS = 's[84:85]'; sTS0 = 's86'; sF0 = 's87'; sFW = 's88'; sU0 = 's89'
sD = 's3'
sROT = 's89'
c4K, c8K, c12K, c16K = 's4', 's5', 's6', 's7'
CQ = ['0', c4K, c8K, c12K]
MF = 'v_mfma_f32_16x16x32_bf16'

STASH = ['kv1d','kv1z','kv1f','r_poll','r_kv','r_z','kv2d','kv2z','kv2f','k_poll','k_kv','k_z','o_st','o_fl','o_poll',
         'tile','flag','fpoll','st_st','st_ld','b_o','b_h','hh_st','hh_halo','hh_haloflag','hh_poll','hh_ld0','hh_ld1','hh_ld2','hh_ld3','hid_st','hid_ld','out_st','pwA','pwB','pwC']
AST = {n: 128+i for i, n in enumerate(STASH)}

class G:
    def __init__(self, debug=True, npages=0, opt=None):
        self.k = Kern(); self.k.paged = True
        self.debug = debug; self.npages = npages
        self.nstamp = 0; self.stamp_names = []
        self.opt = opt or {}
        self.ool = []

    def e(self, t, tag=None, nocount=False): self.k.e(t, tag, nocount)
    def cap(self, fn, *a, **kw):
        prev = self.k.capture(); fn(*a, **kw); return self.k.end_capture(prev)
    def stash(self, n, v): self.e(f"v_accvgpr_write_b32 a{AST[n]}, {v}")
    def fetch(self, n, v): self.e(f"v_accvgpr_read_b32 {v}, a{AST[n]}")

    def weave(self, main, *sides):
        k = self.k
        pos = [0]*len(sides); acc = [0.0]*len(sides)
        for ins in main:
            k.L.append(ins)
            if ins.kind == 'i' and ins.text.startswith('v_mfma'):
                for si, (lst, per) in enumerate(sides):
                    acc[si] += per
                    while acc[si] >= 1 and pos[si] < len(lst):
                        k.L.append(lst[pos[si]]); pos[si] += 1
                        if lst[pos[si]-1].kind == 'i': acc[si] -= 1
        for si, (lst, per) in enumerate(sides): k.L += lst[pos[si]:]

    def mix(self, a, b, ratio):
        k = self.k; pb = 0; cnt = 0.0
        for ins in a:
            k.L.append(ins)
            if ins.kind == 'i':
                cnt += 1
                while cnt >= ratio and pb < len(b):
                    k.L.append(b[pb]); pb += 1
                    if b[pb-1].kind == 'i': cnt -= ratio
        k.L += b[pb:]

    def stamp(self, name):
        if not self.debug: return
        n = self.nstamp; self.nstamp += 1; self.stamp_names.append(name)
        self.e(f"""s_memtime {sTS}
s_waitcnt lgkmcnt(0)
s_sub_u32 s84, s84, {sTS0}
v_writelane_b32 v19, s84, {n}""")

    def poll(self, vaddr, vtmp, off=0):
        k = self.k
        Lp = k.label('Lpoll'); Ld = k.label('Lpd')
        self.e(f"""s_movk_i32 {sCNT}, 1
s_cmp_lg_u32 {sTO}, 0
~s_cbranch_scc1 {Lp}
s_mov_b32 {sCNT}, 0x8000
~{Lp}:
buffer_load_dword {vtmp}, {vaddr}, {WS}, 0 offen offset:{off} sc1""", nocount=True)
        self.e(f"""s_waitcnt vmcnt(0)
v_cmp_ne_u32 vcc, {sT}, {vtmp}
~s_cbranch_vccz {Ld}
s_sub_u32 {sCNT}, {sCNT}, 1
s_cmp_lg_u32 {sCNT}, 0
~s_cbranch_scc1 {Lp}
s_mov_b32 {sTO}, 1
~{Ld}:""")

    def pub(self, lines, force_sc1=False, tag=None):
        k = self.k
        if force_sc1:
            for l in lines: self.e(l + ' sc1', tag=tag)
            return
        Ls = k.label('Lslow'); Ld = k.label('Lpub')
        self.e(f"s_cmp_eq_u32 {sFAST}, 0\n~s_cbranch_scc1 {Ls}")
        for l in lines: self.e(l, tag=tag)
        self.e(f"~s_branch {Ld}\n~{Ls}:")
        for l in lines: self.e(l + ' sc1', nocount=True)
        self.e(f"~{Ld}:")

    def flag(self, vaddr, offs, force_sc1=False, wait_tag=None):
        if wait_tag is None: self.e("s_waitcnt vmcnt(0)")
        else: self.k.wait_vm(wait_tag)
        if not isinstance(offs, list): offs = [offs]
        self.e("s_mov_b64 exec, 1")
        self.pub([f"buffer_store_dword v9, {vaddr}, {WS}, 0 offen offset:{o}" for o in offs], force_sc1)
        self.e("s_mov_b64 exec, -1")

    def allred(self, pairs, op):
        e = self.e
        for A, B in pairs: e(f"v_permlane32_swap_b32 {A}, {B}")
        for A, B in pairs: e(f"{op} {A}, {A}, {B}")
        for A, B in pairs: e(f"v_mov_b32 {B}, {A}")
        for A, B in pairs: e(f"v_permlane16_swap_b32 {A}, {B}")
        for A, B in pairs: e(f"{op} {A}, {A}, {B}")
        for A, B in pairs: e(f"v_mov_b32 {B}, {A}")
        for A, B in pairs: e(f"v_permlane32_swap_b32 {A}, {B}")

    def mf(self, acc, A, B, first=False, ag=False):
        r = 'a' if ag else 'v'
        self.e(f"{MF} {r}[{acc}:{acc+3}], {A}, {B}, " + ("0" if first else f"{r}[{acc}:{acc+3}]"))

    def dmag(self, srdb, soff, m0, loads, tag, sc1=False):
        self.e(f"s_add_u32 m0, {m0[0]}, {m0[1]}")
        if isinstance(soff, tuple):
            self.e(f"s_add_u32 {sD}, {soff[0]}, {soff[1]}"); so = sD
        else: so = soff
        for v, imm in loads:
            self.e(f"buffer_load_dwordx4 {v}, {srd(srdb)}, {so} offen offset:{imm}{' sc1' if sc1 else ''} lds", tag=tag)
    def rot_chunk(self, c):
        self.e(f"s_add_u32 s0, {sROT}, {c}\ns_and_b32 s0, s0, 7\ns_mul_i32 s1, s0, {64*3072}\ns_lshl_b32 s0, s0, 7")
    def dma_wqkv(self, c, part, ldsbase, tag, rot=True):
        if rot: self.rot_chunk(c)
        self.dmag(SRD_WQKV, ('s1', part*1024) if part else 's1', (sM0W, ldsbase), [('v6', 0), ('v7', 1024)], tag)
    def dma_k(self, c):
        self.rot_chunk(c)
        self.dmag(SRD_X, 's0', (sM0W, c*8192), [('v4', 0), ('v5', 1024)], f'k{c}')
        self.dma_wqkv(c, 1, 65536 + c*8192, f'k{c}', rot=False)
    W4V = [('v8', 0), ('v10', 1024), ('v11', 2048), ('v255', 3072)]
    def dma_w64(self, srdb, ldsbase, tag, groups):
        for g in groups:
            self.e(f"s_add_u32 s0, {sI}, {g}\ns_and_b32 s0, s0, 3\ns_lshl_b32 s1, s0, 15\ns_add_u32 s1, s1, s97\ns_lshl_b32 s0, s0, 12\ns_add_u32 s0, s0, s96")
            self.dmag(srdb, 's1', ('s0', ldsbase), self.W4V, tag)

    def touches(self, pages):
        e = self.e; k = self.k
        if not self.npages: return
        pc = k.label('Lpc')
        e(f"s_getpc_b64 s[92:93]\n{pc}:")
        for w in range(4):
            mine = [p for p in pages[w::4] if p < self.npages]
            if not mine: continue
            L = k.label('Ltouch')
            e(f"s_cmp_eq_u32 {sW}, {w}\ns_cbranch_scc0 {L}")
            for p in mine:
                e(f"s_add_u32 s98, s92, Lpg_{p}-{pc}\ns_addc_u32 s99, s93, 0\ns_swappc_b64 s[100:101], s[98:99]")
            e(f"{L}:")

    PTRS = [(SRD_X,0,0x200000),(SRD_WQKV,8,0x180000),(SRD_WS,88,WS_BYTES),(SRD_WPHI,16,0x4000),(SRD_WO,24,0x80000),
            (SRD_W1,40,0x80000),(SRD_W2,48,0x80000),(SRD_W3,56,512*1376*2),(SRD_W4,64,1376*512*2),(SRD_OUT,72,0x200000)]

    def prologue(self):
        e = self.e; k = self.k; o = self.opt
        e(f"s_cmp_ge_u32 s2, 256\ns_cbranch_scc1 L_end")
        e(f"s_load_dwordx4 s[8:11], s[0:1], 0")
        if self.debug: e(f"s_memtime s[86:87]\ns_memrealtime s[90:91]")
        e(f"""
v_lshrrev_b32 v2, 6, v0
v_and_b32 v0, 63, v0
s_and_b32 {sX}, s2, 7
s_lshr_b32 {sT0}, s2, 3
v_readfirstlane_b32 {sW}, v2
s_and_b32 {sJ}, {sT0}, 7
s_lshr_b32 {sI}, {sT0}, 3
s_lshl_b32 {sR}, {sX}, 2
s_add_u32 {sR}, {sR}, {sI}
v_lshrrev_b32 v3, 4, v0
v_lshrrev_b32 v10, 3, v0
v_and_b32 v11, 7, v0
v_lshlrev_b32 v13, 10, v10
v_xor_b32 v14, v11, v3
v_mul_u32_u24 v15, 3072, v10
v_and_b32 v16, 2, v10
v_xor_b32 v16, v11, v16
s_lshl_b32 {sM0W}, {sW}, 11
s_lshl_b32 {sT0}, {sR}, 16
s_lshl_b32 {sT1}, {sW}, 14
s_add_u32 {sT0}, {sT0}, {sT1}
s_mul_i32 {sT2}, {sW}, {16*3072}
s_lshl_b32 {sT1}, {sJ}, 7
s_add_u32 {sT2}, {sT2}, {sT1}
v_add_u32 v13, {sT0}, v13
v_add_u32 v15, {sT2}, v15
v_lshl_add_u32 v4, v14, 4, v13
v_lshl_add_u32 v6, v16, 4, v15
v_xor_b32 v14, 4, v14
v_xor_b32 v16, 4, v16
v_lshl_add_u32 v5, v14, 4, v13
v_lshl_add_u32 v7, v16, 4, v15
v_add_u32 v5, 0x1c00, v5
v_add_u32 v7, {8*3072-1024}, v7
s_lshl_b32 {sROT}, {sI}, 1
s_add_u32 {sROT}, {sROT}, {sJ}
s_waitcnt lgkmcnt(0)
s_mov_b32 s12, s10
s_mov_b32 s13, s11
s_mov_b32 s{SRD_X+2}, 0x200000
s_mov_b32 s{SRD_X+3}, 0x20000
s_mov_b32 s{SRD_WQKV+2}, 0x180000
s_mov_b32 s{SRD_WQKV+3}, 0x20000
""")
        if o.get('prstamp'): self.stamp('  pr karg')
        for b,off,sz in self.PTRS[2:]: e(f"s_load_dwordx2 s[{b}:{b+1}], s[0:1], {off}")
        self.D1 = o.get('pk_depth', 4)
        dm = self.cap(lambda: [self.dma_k(c) for c in range(self.D1)])
        def setups():
            if self.npages:
                e(f"""s_getpc_b64 s[92:93]
~L_cpc:
s_lshr_b32 {sT0}, s2, 3
s_lshl_b32 {sT0}, {sT0}, 2
s_add_u32 {sT0}, {sT0}, {sW}
s_lshl_b32 {sT0}, {sT0}, 9
v_and_b32 v18, 3, v0
v_lshlrev_b32 v18, 7, v18
v_add_u32 v18, {sT0}, v18
s_add_u32 s92, s92, Lpg_0-L_cpc
s_addc_u32 s93, s93, 0
v_min_u32 v18, {self.npages*4096 - 128}, v18
global_load_dword a200, v18, s[92:93]""", tag='cpf')
            e(f"""
v_and_b32 v2, 15, v0
s_lshr_b32 {sA}, {sW}, 1
s_and_b32 {sB}, {sW}, 1
v_lshlrev_b32 v1, 4, v0
s_lshl_b32 {sRHO}, {sR}, 2
s_add_u32 {sRHO}, {sRHO}, {sW}
s_mov_b32 {sTO}, 0
s_getreg_b32 {sXCC}, hwreg(HW_REG_XCC_ID, 0, 4)
s_lshl_b32 s96, {sW}, 14
s_lshl_b32 s97, {sW}, 17
s_movk_i32 {c4K}, 0x1000
s_movk_i32 {c8K}, 0x2000
s_movk_i32 {c12K}, 0x3000
s_movk_i32 {c16K}, 0x4000
v_lshrrev_b32 v13, 1, v2
v_xor_b32 v13, v13, v3
v_and_b32 v13, 7, v13
v_lshlrev_b32 v13, 4, v13
v_lshl_add_u32 v13, v2, 7, v13
s_lshl_b32 {sT0}, {sA}, 12
v_add_u32 v10, {sT0}, v13
v_xor_b32 v11, 64, v10
v_lshrrev_b32 v13, 2, v2
v_and_b32 v14, 2, v13
v_and_b32 v15, 1, v3
v_lshl_or_b32 v14, v15, 2, v14
v_bfe_u32 v15, v2, 1, 1
v_xor_b32 v14, v14, v15
v_lshlrev_b32 v14, 4, v14
v_and_b32 v15, 1, v2
v_lshl_add_u32 v14, v15, 3, v14
v_lshl_add_u32 v15, v3, 3, v13
v_lshl_add_u32 v16, v15, 7, v14
v_lshl_add_u32 v15, v3, 2, v13
v_lshl_add_u32 v17, v15, 7, v14
s_lshl_b32 {sT0}, {sB}, 6
v_xor_b32 v12, {sT0}, v16
v_xor_b32 v13, 32, v12
v_add_u32 v34, 0x10000, v12
v_add_u32 v35, 0x10000, v13
v_lshrrev_b32 v30, 2, v2
v_lshl_add_u32 v30, v3, 2, v30
v_lshlrev_b32 v30, 5, v30
v_and_b32 v31, 3, v2
v_lshl_add_u32 v30, v31, 3, v30
v_mov_b32 v14, v17
v_xor_b32 v15, 32, v17
v_xor_b32 v16, 64, v17
v_xor_b32 v17, 0x60, v17
v_mov_b32 v20, 0x3f803f80
v_mov_b32 v21, 0x3f803f80
v_mov_b32 v22, 0x3f803f80
v_mov_b32 v23, 0x3f803f80
""")
        st = self.cap(setups)
        self.mix(dm, st, 1.0*len([x for x in dm if x.kind == 'i'])/max(1, len([x for x in st if x.kind == 'i'])))
        if o.get('prstamp'): self.stamp('  pr setups')
        e("s_waitcnt lgkmcnt(0)")
        for b,off,sz in self.PTRS[2:]: e(f"s_mov_b32 s{b+2}, {hex(sz)}\ns_mov_b32 s{b+3}, 0x20000")
        e(f"s_load_dword {sT}, s[{SRD_WS}:{SRD_WS+1}], {EPOCH}")
        self.touches(list(range(0, 4)))

    def setup_ids(self):
        e = self.e
        L = 1.4426950408889634; c0 = -2.0*L*0.7978845608028654
        e(f"""
s_add_u32 {sT}, {sT}, {hex(INC)}
v_mov_b32 v9, {sT}
s_add_u32 {sT0}, {sT}, {sXCC}
v_mov_b32 v18, {sT0}
s_lshl_b32 {sT1}, {sX}, 7
s_lshl_b32 {sT2}, {sI}, 5
s_add_u32 {sT1}, {sT1}, {sT2}
s_lshl_b32 {sT2}, {sJ}, 2
s_add_u32 {sT1}, {sT1}, {sT2}
s_add_u32 {sT1}, {sT1}, {IDS}
s_cmp_lg_u32 {sW}, 0
s_cselect_b32 {sT1}, {hex(OOB)}, {sT1}
v_mov_b32 v36, {sT1}
v_mov_b32 v37, {hex(OOB)}
v_cmp_eq_u32 vcc, 0, v0
v_cndmask_b32 v36, v37, v36, vcc
buffer_store_dword v18, v36, {WS}, 0 offen sc1
s_mov_b32 s78, {hex(f2u(L))}
s_mov_b32 s79, {hex(f2u(-L))}
s_mov_b32 s80, {hex(f2u(c0))}
s_mov_b32 s81, {hex(f2u(c0*0.044715))}
s_mov_b32 {sEPS}, {hex(f2u(1e-5))}
s_mov_b32 {sINV}, {hex(f2u(1.0/512))}
s_mov_b32 s94, 1.0
s_mov_b32 s95, 1.0
""")

    def setup_b(self):
        e = self.e
        e(f"""
v_and_b32 v36, 3, v2
v_cmp_eq_u32 {sMK1}, 1, v36
v_cmp_eq_u32 {sMK2}, 2, v36
v_cmp_eq_u32 {sMK3}, 3, v36
v_lshrrev_b32 v37, 2, v2
v_cmp_eq_u32 {sMKD}, v37, v3
v_cmp_eq_u32 {sS0}, 0, v2
v_and_b32 v36, 1, v2
v_lshlrev_b32 v36, 4, v36
v_mov_b32 v37, 0x3f80
v_lshlrev_b32 v37, v36, v37
v_cndmask_b32 v37, 0, v37, {sMKD}
v_and_b32 v36, 2, v2
v_cmp_eq_u32 vcc, 0, v36
v_mov_b32 v24, 0
v_mov_b32 v25, 0
v_mov_b32 v28, 0
v_mov_b32 v29, 0
v_cndmask_b32 v26, 0, v37, vcc
v_cndmask_b32 v27, v37, 0, vcc
v_lshrrev_b32 v18, 3, v0
v_and_b32 v36, 6, v18
v_and_b32 v8, 7, v0
v_xor_b32 v8, v8, v36
v_lshlrev_b32 v8, 4, v8
v_lshl_add_u32 v8, v18, 10, v8
s_lshl_b32 {sT0}, {sJ}, 7
v_add_u32 v8, {sT0}, v8
""")

    def setup_addr(self, part):
        e0 = self.e
        if part == 0: R = {'v36':'v36','v37':'v37','v38':'v38','v39':'v39'}
        elif part == 2: R = {'v36':'v232','v37':'v233','v38':'v234','v39':'v235'}
        else: R = {'v36':'v248','v37':'v249','v38':'v250','v39':'v251'}
        def e(t):
            for a, b in R.items(): t = t.replace(a, b)
            e0(t)
        def st(n, v): self.stash(n, R[v])
        e(f"v_and_b32 v38, 7, v0\nv_lshlrev_b32 v38, 2, v38\nv_lshlrev_b32 v39, 4, v3")
        if part == 1: return self.setup_addr_late(e, st)
        if part == 2:
            e(f"""s_mul_i32 {sT2}, {sX}, {16*HIDS}
s_add_u32 {sT2}, {sT2}, {HIDB}
s_lshl_b32 {sT4}, {sX}, 5""")
            return self.setup_addr_red(e, st)
        e(f"""s_lshl_b32 {sT0}, {sJ}, 2
s_lshl_b32 {sT1}, {sB}, 1
s_add_u32 {sT0}, {sT0}, {sT1}
s_lshl_b32 {sT1}, {sI}, 1
s_add_u32 {sT1}, {sT1}, {sA}
s_mul_i32 {sT2}, {sX}, {16*HIDS}
s_add_u32 {sT2}, {sT2}, {HIDB}
s_lshl_b32 {sT3}, {sT0}, 13
s_add_u32 {sT3}, {sT3}, {sT2}
s_lshl_b32 {sT4}, {sT1}, 10
s_add_u32 {sT3}, {sT3}, {sT4}
v_add_u32 v36, {sT3}, v1""")
        st('kv1d', 'v36')
        e(f"""s_lshl_b32 {sT4}, {sX}, 5
s_add_u32 {sT0}, {sT0}, {sT4}
s_lshl_b32 {sT3}, {sT0}, 10
s_lshl_b32 {sT5}, {sT1}, 7
s_add_u32 {sT3}, {sT3}, {sT5}
s_add_u32 {sT3}, {sT3}, {KV1Z}
v_add_u32 v36, {sT3}, v39""")
        st('kv1z', 'v36')
        e(f"""s_lshl_b32 {sT3}, {sT0}, 5
s_lshl_b32 {sT1}, {sT1}, 2
s_add_u32 {sT3}, {sT3}, {sT1}
s_add_u32 {sT3}, {sT3}, {F_KV1}
v_mov_b32 v36, {sT3}""")
        st('kv1f', 'v36')
        if part == 0: return

    def setup_addr_red(self, e, st):
        e(f"""s_lshl_b32 {sT0}, {sJ}, 2
s_add_u32 {sT0}, {sT0}, {sI}
s_add_u32 {sT1}, {sT4}, {sT0}
s_lshl_b32 {sT3}, {sT1}, 5
s_add_u32 {sT3}, {sT3}, {F_KV1}
v_add_u32 v36, {sT3}, v38""")
        st('r_poll', 'v36')
        e(f"""s_lshl_b32 {sT3}, {sT0}, 13
s_add_u32 {sT3}, {sT3}, {sT2}
v_add_u32 v36, {sT3}, v1""")
        st('r_kv', 'v36')
        e(f"""s_lshl_b32 {sT3}, {sT1}, 10
s_add_u32 {sT3}, {sT3}, {KV1Z}
v_add_u32 v36, {sT3}, v39""")
        st('r_z', 'v36')
        e(f"""s_lshl_b32 {sT1}, {sT0}, 3
s_add_u32 {sT1}, {sT1}, {sX}
s_lshl_b32 {sT3}, {sT1}, 10
s_add_u32 {sT3}, {sT3}, {KV2K}
v_add_u32 v36, {sT3}, v1""")
        st('kv2d', 'v36')
        e(f"""s_lshl_b32 {sT3}, {sT1}, 7
s_add_u32 {sT3}, {sT3}, {KV2Z}
v_add_u32 v36, {sT3}, v39""")
        st('kv2z', 'v36')
        e(f"""s_lshl_b32 {sT3}, {sT0}, 7
s_lshl_b32 {sT1}, {sX}, 2
s_add_u32 {sT3}, {sT3}, {sT1}
s_add_u32 {sT3}, {sT3}, {F_KV2}
v_mov_b32 v36, {sT3}""")
        st('kv2f', 'v36')
        e(f"""s_lshl_b32 {sT0}, {sJ}, 2
s_add_u32 {sT0}, {sT0}, {sW}
s_lshl_b32 {sT3}, {sT0}, 7
s_add_u32 {sT3}, {sT3}, {F_KV2}
v_add_u32 v36, {sT3}, v38""")
        st('k_poll', 'v36')
        e(f"""s_lshl_b32 {sT3}, {sT0}, 13
s_add_u32 {sT3}, {sT3}, {KV2K}
v_add_u32 v36, {sT3}, v1""")
        st('k_kv', 'v36')
        e(f"""s_lshl_b32 {sT3}, {sT0}, 10
s_add_u32 {sT3}, {sT3}, {KV2Z}
v_add_u32 v36, {sT3}, v39""")
        st('k_z', 'v36')

    def setup_addr_late(self, e, st):
        e(f"""s_lshl_b32 {sT0}, {sR}, 2
s_lshl_b32 {sT1}, {sA}, 1
s_add_u32 {sT0}, {sT0}, {sT1}
s_lshl_b32 {sT1}, {sJ}, 1
s_add_u32 {sT1}, {sT1}, {sB}
s_lshl_b32 {sT3}, {sT0}, 14
s_lshl_b32 {sT4}, {sT1}, 10
s_add_u32 {sT3}, {sT3}, {sT4}
s_add_u32 {sT3}, {sT3}, {OB}
v_add_u32 v36, {sT3}, v1""")
        st('o_st', 'v36')
        e(f"""s_lshl_b32 {sT3}, {sT0}, 8
s_add_u32 {sT3}, {sT3}, {FLG+128}
s_lshl_b32 {sT4}, {sT1}, 2
s_add_u32 {sT4}, {sT4}, {sT3}
v_mov_b32 v36, {sT4}""")
        st('o_fl', 'v36')
        e(f"v_lshlrev_b32 v36, 2, v2\nv_add_u32 v36, {sT3}, v36")
        st('o_poll', 'v36')
        e(f"""s_lshl_b32 {sT0}, {sRHO}, 14
s_lshl_b32 {sT1}, {sJ}, 11
s_add_u32 {sT3}, {sT0}, {sT1}
s_add_u32 {sT3}, {sT3}, {HB}
v_add_u32 v36, {sT3}, v1""")
        st('tile', 'v36')
        e(f"""s_lshl_b32 {sT2}, {sRHO}, 8
s_add_u32 {sT2}, {sT2}, {FLG}
s_lshl_b32 {sT3}, {sJ}, 2
s_add_u32 {sT3}, {sT3}, {sT2}
v_mov_b32 v36, {sT3}""")
        st('flag', 'v36')
        e(f"v_add_u32 v36, {sT2}, v38")
        st('fpoll', 'v36')
        e(f"""s_lshl_b32 {sT3}, {sRHO}, 12
s_add_u32 {sT3}, {sT3}, {ST}
v_lshlrev_b32 v37, 6, v2
v_add_u32 v37, {sT3}, v37
v_add_u32 v36, v39, v37""")
        st('st_ld', 'v36')
        e(f"s_lshl_b32 {sT3}, {sJ}, 3\nv_add_u32 v36, {sT3}, v37")
        st('st_st', 'v36')
        e(f"s_add_u32 {sT3}, {sT0}, {OB}\nv_add_u32 v36, {sT3}, v1")
        st('b_o', 'v36')
        e(f"s_add_u32 {sT3}, {sT0}, {HB}\nv_add_u32 v36, {sT3}, v1")
        st('b_h', 'v36')
        e(f"""s_mul_i32 {sT3}, {sRHO}, {HIDS}
s_add_u32 {sT3}, {sT3}, {HIDB}
v_add_u32 v36, {sT3}, v1""")
        st('hid_ld', 'v36')
        st('hid_st', 'v36')
        e(f"""s_lshl_b32 {sT0}, {sRHO}, 14
s_lshl_b32 {sT1}, {sJ}, 7
s_add_u32 {sT0}, {sT0}, {sT1}
v_and_b32 v36, 1, v3
v_lshlrev_b32 v36, 5, v36
v_lshrrev_b32 v37, 1, v3
v_lshl_add_u32 v36, v37, 4, v36
v_lshl_add_u32 v36, v2, 10, v36
v_add_u32 v36, {sT0}, v36""")
        st('out_st', 'v36')

    def setup_shift(self):
        e = self.e; st = self.stash
        e(f"""s_lshr_b32 {sT0}, {sJ}, 2
s_add_u32 {sT0}, {sT0}, 1
s_bitcmp1_b32 {sJ}, 1
s_cselect_b32 {sT1}, -1, 1
s_mul_i32 {sT0}, {sT0}, {sT1}
s_lshl_b32 {sT1}, {sRHO}, 4
s_add_u32 {sT1}, {sT1}, {sT0}
v_add_u32 v36, {sT1}, v2
v_lshrrev_b32 v37, 4, v36
v_lshlrev_b32 v37, 14, v37
v_and_b32 v38, 15, v36
v_lshl_add_u32 v38, v3, 4, v38
v_lshlrev_b32 v38, 4, v38
v_add_u32 v37, v37, v38
s_lshl_b32 {sT1}, {sJ}, 11
s_add_u32 {sT2}, {sT1}, {HHB}
v_add_u32 v37, {sT2}, v37
s_lshl_b32 {sT2}, {sX}, 8
v_subrev_u32 v36, {sT2}, v36
v_cmp_lt_u32 vcc, 0xff, v36
v_mov_b32 v36, {hex(OOB)}
v_cndmask_b32 v37, v37, v36, vcc
s_mov_b64 s[68:69], vcc""")
        st('hh_st', 'v37')
        e(f"""s_lshl_b32 {sT2}, {sX}, 1
s_add_u32 {sT3}, {sT2}, 2
s_sub_u32 {sT2}, {sT2}, 1
s_cmp_gt_i32 {sT0}, 0
s_cselect_b32 {sT2}, {sT3}, {sT2}
s_lshl_b32 {sT3}, {sT2}, 14
s_add_u32 {sT3}, {sT3}, {sT1}
s_add_u32 {sT3}, {sT3}, {HALO}
v_add_u32 v36, {sT3}, v38""")
        st('hh_halo', 'v36')
        e(f"""s_lshl_b32 {sT3}, {sT2}, 5
s_lshl_b32 {sT1}, {sJ}, 2
s_add_u32 {sT3}, {sT3}, {sT1}
s_add_u32 {sT3}, {sT3}, {F_HALO}
v_mov_b32 v36, {sT3}
s_cmp_lt_u32 {sT2}, 16
s_cselect_b64 s[68:69], s[68:69], 0""")
        st('hh_haloflag', 'v36')
        e(f"""s_lshl_b32 {sT0}, {sRHO}, 8
s_add_u32 {sT0}, {sT0}, {FLG+32}
v_and_b32 v38, 7, v0
v_lshlrev_b32 v38, 2, v38
v_add_u32 v39, {sT0}, v38
s_and_b32 {sT1}, {sRHO}, 15
s_sub_u32 {sT2}, {sT0}, 256
s_lshl_b32 {sT3}, {sX}, 6
s_add_u32 {sT3}, {sT3}, {F_HALO}
s_cmp_eq_u32 {sT1}, 0
s_cselect_b32 {sT2}, {sT3}, {sT2}
s_cselect_b32 s92, 0x0f0f, 0
s_cmp_eq_u32 {sRHO}, 0
s_cselect_b32 {sT2}, {sT0}, {sT2}
s_add_u32 {sT4}, {sT0}, 256
s_add_u32 {sT3}, {sT3}, 32
s_cmp_eq_u32 {sT1}, 15
s_cselect_b32 {sT4}, {sT3}, {sT4}
s_cselect_b32 s92, 0xf0f0, s92
s_cmp_eq_u32 {sRHO}, 127
s_cselect_b32 {sT4}, {sT0}, {sT4}
v_lshrrev_b32 v36, 3, v0
v_bfe_u32 v37, v0, 1, 1
v_lshl_or_b32 v36, v36, 1, v37
v_add_u32 v37, {sT2}, v38
v_cmp_eq_u32 vcc, 2, v36
v_cndmask_b32 v39, v39, v37, vcc
v_add_u32 v37, {sT4}, v38
v_cmp_eq_u32 vcc, 5, v36
v_cndmask_b32 v39, v39, v37, vcc""")
        st('hh_poll', 'v39')
        e(f"""s_lshl_b32 {sT2}, {sX}, 15
s_add_u32 {sT2}, {sT2}, {HALO}          ; HALO[x*2+0]
s_add_u32 {sT3}, {sT2}, 16384           ; HALO[x*2+1]
s_cmp_eq_u32 {sRHO}, 0
s_cselect_b32 {sT2}, {hex(OOB)}, {sT2}
s_cmp_eq_u32 {sRHO}, 127
s_cselect_b32 {sT3}, {hex(OOB)}, {sT3}
s_lshl_b32 {sT0}, {sRHO}, 14
s_add_u32 {sT0}, {sT0}, {OB}
v_add_u32 v36, {sT0}, v1
v_add_u32 v37, {sT2}, v1
v_add_u32 v38, {sT3}, v1
s_cmp_eq_u32 {sT1}, 0
s_cselect_b32 {sT4}, 1, 0
s_cmp_eq_u32 {sT1}, 15
s_cselect_b32 {sT5}, 1, 0""")
        for q, (mag, lo) in enumerate(((1, True), (1, False), (2, True), (2, False))):
            if lo:
                e(f"s_mul_i32 {sT0}, {sT4}, {mag}\nv_cmp_gt_u32 vcc, {sT0}, v2\nv_cndmask_b32 v39, v36, v37, vcc")
            else:
                e(f"s_mul_i32 {sT0}, {sT5}, {mag}\ns_sub_u32 {sT0}, 15, {sT0}\nv_cmp_lt_u32 vcc, {sT0}, v2\nv_cndmask_b32 v39, v36, v38, vcc")
            st(f'hh_ld{q}', 'v39')

    def prewarm(self):
        e = self.e
        e(f"""s_lshl_b32 {sT0}, {sRHO}, 14
s_lshl_b32 {sT1}, {sJ}, 11
s_add_u32 {sT0}, {sT0}, {sT1}
v_and_b32 v36, 15, v0
v_lshlrev_b32 v36, 7, v36                ; (l&15)*128
s_add_u32 {sT1}, {sT0}, {OB}
v_add_u32 v37, {sT1}, v36                ; lanes 0-15: O
s_add_u32 {sT1}, {sT0}, {HB}
v_add_u32 v38, {sT1}, v36                ; lanes 16-31: H
v_cmp_lt_u32 vcc, 15, v0
v_cndmask_b32 v37, v37, v38, vcc""")
        self.fetch('kv1d', 'v38')
        e(f"""v_and_b32 v39, 7, v0
v_lshlrev_b32 v39, 7, v39
v_readfirstlane_b32 {sT1}, v38
v_bfe_u32 v38, v0, 3, 1
v_lshlrev_b32 v38, 13, v38
v_add_u32 v39, v39, v38
v_add_u32 v39, {sT1}, v39
v_cmp_lt_u32 vcc, 31, v0
v_cndmask_b32 v37, v37, v39, vcc""")
        self.fetch('kv1z', 'v38')
        e(f"""v_and_b32 v39, 1, v0
v_readfirstlane_b32 {sT1}, v38
v_lshlrev_b32 v39, 10, v39
v_add_u32 v39, {sT1}, v39                ; z lines (+0,+1024)
s_lshl_b32 {sT2}, {sRHO}, 12
s_lshl_b32 {sT3}, {sJ}, 7
s_add_u32 {sT2}, {sT2}, {sT3}
s_add_u32 {sT2}, {sT2}, {ST}
v_and_b32 v38, 1, v0
v_lshlrev_b32 v38, 11, v38
v_add_u32 v38, {sT2}, v38
v_cmp_lt_u32 vcc, 55, v0
v_cndmask_b32 v39, v39, v38, vcc
v_cmp_lt_u32 vcc, 47, v0
v_cndmask_b32 v37, v37, v39, vcc
v_accvgpr_write_b32 a{AST['pwA']}, v37
s_mul_i32 {sT1}, {sRHO}, {HIDS}
s_mul_i32 {sT2}, {sJ}, 192
s_mul_i32 {sT3}, {sJ}, 160
s_add_u32 {sT3}, {sT3}, 96
s_cmp_lt_u32 {sJ}, 3
s_cselect_b32 {sF0}, {sT2}, {sT3}
s_cselect_b32 {sFW}, 8, 4
s_mul_i32 {sT2}, {sJ}, 6144
s_add_u32 {sT1}, {sT1}, {sT2}
s_add_u32 {sT1}, {sT1}, {HIDB}
v_min_u32 v38, 47, v0
v_lshlrev_b32 v38, 7, v38
v_add_u32 v38, {sT1}, v38
v_accvgpr_write_b32 a{AST['pwB']}, v38
s_lshl_b32 {sT0}, {sRHO}, 14
s_lshl_b32 {sT1}, {sJ}, 7
s_add_u32 {sT0}, {sT0}, {sT1}
v_lshlrev_b32 v36, 3, v36                ; (l&15)*1024
v_add_u32 v36, {sT0}, v36
v_accvgpr_write_b32 a{AST['pwC']}, v36""")

    def prewarm_issue(self, which, vt):
        self.fetch(which, vt)
        self.e(f"buffer_load_dword a200, {vt}, {WS}, 0 offen", tag='pw')

    def xa(self, ee, t): return f"a[{(ee*16+t)*4}:{(ee*16+t)*4+3}]"
    def wreads(self, c, off, tagp, withx=False):
        buf = 128 + (c % 2)*16
        for u in range(2):
            t = 2*c+u
            if withx:
                for ee in range(2):
                    self.e(f"ds_read_b128 {self.xa(ee,t)}, v{10+u} offset:{c*8192 + ee*2048}", tag=f'{tagp}{c}')
            for ep in range(2):
                wb = buf + (u*2+ep)*4
                for h in range(2):
                    self.e(f"ds_read_b64_tr_b16 v[{wb+2*h}:{wb+2*h+1}], v{34+ep} offset:{off + u*4096 + h*512}", tag=f'{tagp}{c}')
    def mfma_k(self, c):
        buf = 128 + (c % 2)*16
        for u in range(2):
            t = 2*c+u
            for ep in range(2):
                wb = buf + (u*2+ep)*4
                for ee in range(2): self.mf(40 + (ep*2+ee)*4, f"v[{wb}:{wb+3}]", self.xa(ee,t), t == 0)
                self.mf(56+ep*4, f"v[{wb}:{wb+3}]", "v[20:23]", t == 0)
            for ee in range(2):
                self.mf(64+ee*4, "v[20:23]", self.xa(ee,t), t == 0)
                self.mf(72+ee*4, self.xa(ee,t), self.xa(ee,t), t == 0)
    def mfma_vq(self, c, which):
        buf = 128 + (c % 2)*16
        for u in range(2):
            t = 2*c+u
            for ep in range(2):
                wb = buf + (u*2+ep)*4
                for ee in range(2):
                    if which == 'v': self.mf(80 + (ee*2+ep)*4, self.xa(ee,t), f"v[{wb}:{wb+3}]", t == 0)
                    else: self.mf(104 + (ep*2+ee)*4, f"v[{wb}:{wb+3}]", self.xa(ee,t), t == 0)
                if which == 'v': self.mf(96+ep*4, "v[20:23]", f"v[{wb}:{wb+3}]", t == 0)
                else: self.mf(120+ep*4, f"v[{wb}:{wb+3}]", "v[20:23]", t == 0)

    def ids_issue(self):
        self.e(f"""s_lshl_b32 s92, {sX}, 7
s_add_u32 s92, s92, {IDS}
v_and_b32 v250, 31, v0
v_lshlrev_b32 v250, 2, v250
v_add_u32 v250, s92, v250""")
        self.e(f"buffer_load_dword v251, v250, {WS}, 0 offen sc1", tag='ids')
    def ids_check(self):
        e = self.e; k = self.k
        Lp = k.label('Lid'); Ld = k.label('Lidd')
        k.wait_vm('ids')
        e(f"""s_mov_b32 {sCNT}, 0x8000
~{Lp}:
v_subrev_u32 v252, {sT}, v251
v_cmp_lt_u32 vcc, 7, v252
~s_cbranch_vccz {Ld}""")
        k.push()
        e(f"buffer_load_dword v251, v250, {WS}, 0 offen sc1", nocount=True)
        e(f"""s_waitcnt vmcnt(0)
s_sub_u32 {sCNT}, {sCNT}, 1
s_cmp_lg_u32 {sCNT}, 0
~s_cbranch_scc1 {Lp}
s_mov_b32 {sTO}, 1""")
        k.pop()
        e(f"""~{Ld}:
v_cmp_ne_u32 vcc, {sXCC}, v252
s_cmp_eq_u64 vcc, 0
s_cselect_b32 {sFAST}, 1, 0""")

    def pass_k(self):
        e = self.e; k = self.k; D = self.D1
        q = [('k', c) for c in range(D, 8)] + [('v', c) for c in range(6)]
        def issue(item):
            kind, c = item
            if kind == 'k':
                self.dma_k(c)
            else:
                self.dma_wqkv(c, 2, (131072 + c*8192) if c < 4 else (c-4)*8192, f'v{c}')
        sides = {}
        k.wait_vm('k0'); e("s_barrier")
        self.wreads(0, 0, 'kr', withx=True)
        qi = 0
        for c in range(8):
            if c < 7:
                k.wait_vm(f'k{c+1}'); e("s_barrier")
            k.wait_lg(f'kr{c}')
            if self.opt.get('pkstamp') and c in (0, 2, 4, 6): self.stamp(f'  pk c{c}')
            main = self.cap(self.mfma_k, c)
            rd = self.cap(self.wreads, c+1, (c+1)*8192, 'kr', True) if c < 7 else []
            items = []
            while qi < len(q) and len(items) < 4:
                kind, cc = q[qi]
                cost = 4 if kind == 'k' else 2
                if sum(4 if a == 'k' else 2 for a, _ in items) + cost > 4: break
                items.append(q[qi]); qi += 1
            dm = self.cap(lambda: [issue(it) for it in items])
            if c == 3: dm = self.cap(self.ids_issue) + dm
            sd = []
            if c == 0: sd = self.cap(self.setup_ids)
            if c == 1: sd = self.cap(self.setup_b)
            if c == 2: sd = self.cap(self.setup_addr, 0)
            if c in (4, 5):
                pw = self.cap(self.prewarm); sd = pw[:len(pw)//2] if c == 4 else pw[len(pw)//2:]
            if c == 7:
                def wp():
                    e(f"s_lshl_b32 {sT0}, {sJ}, 2\ns_lshl_b32 {sT1}, {sB}, 1\ns_add_u32 {sT0}, {sT0}, {sT1}\ns_lshl_b32 {sT0}, {sT0}, 9\ns_lshl_b32 {sT1}, {sW}, 10")
                    self.dmag(SRD_WPHI, sT0, (sT1, 5*8192), [('v1', 0)], 'wphi')
                    e(f"v_add_u32 v30, {sT1}, v30")
                sd = self.cap(wp)
            self.weave(main, (dm, 2), (rd, 1), (sd, 1.5))
        assert qi == len(q), (qi, len(q))

    def stats1(self):
        e = self.e
        ST1 = 4*8192
        for ee in range(2):
            g0 = 72 + ee*4; t = 160 + ee
            e(f"""v_cndmask_b32 v{t}, v{g0}, v{g0+1}, {sMK1}
v_cndmask_b32 v{t}, v{t}, v{g0+2}, {sMK2}
v_cndmask_b32 v{t}, v{t}, v{g0+3}, {sMK3}
v_cndmask_b32 v{t}, 0, v{t}, {sMKD}""")
        self.allred([('v160','v161')], 'v_add_f32')
        for ee in range(2): e(f"v_mul_f32 v{36+ee}, {sINV}, v{64+ee*4}\nv_mul_f32 v{160+ee}, {sINV}, v{160+ee}")
        for ee in range(2): e(f"v_fma_f32 v{160+ee}, -v{36+ee}, v{36+ee}, v{160+ee}")
        for ee in range(2): e(f"v_max_f32 v{160+ee}, 0, v{160+ee}")
        for ee in range(2): e(f"v_add_f32 v{160+ee}, {sEPS}, v{160+ee}")
        for ee in range(2): e(f"v_rsq_f32 v{38+ee}, v{160+ee}")
        e(f"""s_lshl_b32 {sT0}, {sA}, 7
v_lshlrev_b32 v253, 2, v2
v_add_u32 v253, {sT0}, v253
v_lshlrev_b32 v254, 4, v3
v_add_u32 v254, {sT0}, v254""")
        for ee in range(2):
            e(f"ds_write_b32 v253, v{36+ee} offset:{ST1 + ee*64}", tag='st1w')
            e(f"ds_write_b32 v253, v{38+ee} offset:{ST1 + 256 + ee*64}", tag='st1w')

    def features(self, tiles, T):
        e = self.e
        n = len(tiles)
        def each(fn):
            for i, tl in enumerate(tiles): fn(T + 16*i, *tl)
        def sel(r): return f"v[{r&~1}:{(r&~1)+1}]", r & 1
        def s1(t, acc, cs, m, rs, wp, out):
            mp, ms = sel(m)
            for p in range(2):
                e(f"v_pk_fma_f32 v[{t+2*p}:{t+2*p+1}], v[{cs+2*p}:{cs+2*p+1}], {mp}, v[{acc+2*p}:{acc+2*p+1}] op_sel:[0,{ms},0] op_sel_hi:[1,{ms},1] neg_lo:[1,0,0] neg_hi:[1,0,0]")
        def s2(t, acc, cs, m, rs, wp, out):
            rp, rsl = sel(rs)
            for p in range(2):
                e(f"v_pk_mul_f32 v[{t+2*p}:{t+2*p+1}], v[{t+2*p}:{t+2*p+1}], {rp} op_sel:[0,{rsl}] op_sel_hi:[1,{rsl}]")
        each(s1); each(s2)
        each(lambda t,*a: e(f"v_cvt_pk_bf16_f32 v{t+4}, v{t}, v{t+1}\nv_cvt_pk_bf16_f32 v{t+5}, v{t+2}, v{t+3}"))
        each(lambda t,acc,cs,m,rs,wp,out: e(f"v_mfma_f32_16x16x16_bf16 v[{t}:{t+3}], v[{wp}:{wp+1}], v[{t+4}:{t+5}], 0"))
        each(lambda t,*a: e(f"v_max3_f32 v{t+4}, v{t}, v{t+1}, v{t+2}\nv_max3_f32 v{t+5}, -v{t}, -v{t+1}, -v{t+2}"))
        each(lambda t,*a: e(f"v_max_f32 v{t+4}, v{t+4}, v{t+3}\nv_max_f32_e64 v{t+5}, v{t+5}, -v{t+3}"))
        self.allred([(f'v{T+16*i+4}', f'v{T+16*i+5}') for i in range(n)], 'v_max_f32')
        each(lambda t,*a: e(f"v_pk_mul_f32 v[{t+4}:{t+5}], v[{t+4}:{t+5}], {sLL} op_sel_hi:[1,0]"))
        for r in range(4):
            each(lambda t,*a: e(f"v_pk_fma_f32 v[{t+8+2*r}:{t+9+2*r}], v[{t+(r&~1)}:{t+(r&~1)+1}], {sLL}, v[{t+4}:{t+5}] op_sel:[{r&1},0,0] op_sel_hi:[{r&1},1,1] neg_lo:[0,0,1] neg_hi:[0,0,1]"))
        for i8 in range(8): each(lambda t,*a: e(f"v_exp_f32 v{t+8+i8}, v{t+8+i8}"))
        each(lambda t,*a: e(f"v_pk_add_f32 v[{t}:{t+1}], v[{t+8}:{t+9}], v[{t+10}:{t+11}]\nv_pk_add_f32 v[{t+2}:{t+3}], v[{t+12}:{t+13}], v[{t+14}:{t+15}]"))
        each(lambda t,*a: e(f"v_pk_add_f32 v[{t}:{t+1}], v[{t}:{t+1}], v[{t+2}:{t+3}]"))
        self.allred([(f'v{T+16*i}', f'v{T+16*i+1}') for i in range(n)], 'v_add_f32')
        each(lambda t,*a: e(f"v_rcp_f32 v{t}, v{t}\nv_rcp_f32 v{t+1}, v{t+1}"))
        for r in range(4):
            each(lambda t,*a: e(f"v_pk_mul_f32 v[{t+8+2*r}:{t+9+2*r}], v[{t+8+2*r}:{t+9+2*r}], v[{t}:{t+1}]"))
        each(lambda t,acc,cs,m,rs,wp,out: e(f"""v_cvt_pk_bf16_f32 v{out}, v{t+8}, v{t+10}
v_cvt_pk_bf16_f32 v{out+1}, v{t+12}, v{t+14}
v_cvt_pk_bf16_f32 v{out+2}, v{t+9}, v{t+11}
v_cvt_pk_bf16_f32 v{out+3}, v{t+13}, v{t+15}"""))

    def kside(self):
        e = self.e; k = self.k
        self.stats1()
        k.wait_vm('wphi')
        e(f"ds_read_b64_tr_b16 v[32:33], v30 offset:{5*8192+512}", tag='wpr')
        e(f"ds_read_b64_tr_b16 v[30:31], v30 offset:{5*8192}", tag='wpr')
        k.wait_lg('wpr')
        tiles = [(40 + (ep*2+ee)*4, 56 + ep*4, 36+ee, 38+ee, 30+2*ep, 224 + (ep*2+ee)*4) for ep in range(2) for ee in range(2)]
        self.features(tiles, 160)
        for i in range(4):
            for sg in range(2):
                o = 224 + 4*i + 2*sg
                e(f"v_mfma_f32_16x16x16_bf16 v[{160+8*i+4*sg}:{163+8*i+4*sg}], v[{o}:{o+1}], v[26:27], 0")
        for ep in range(2):
            for ee in range(2):
                i = ep*2+ee
                for sg in range(2):
                    d = 192 + 8*ep + 4*sg + 2*ee; s = 160 + 8*i + 4*sg
                    e(f"v_cvt_pk_bf16_f32 v{d}, v{s}, v{s+1}\nv_cvt_pk_bf16_f32 v{d+1}, v{s+2}, v{s+3}")
        self.fetch('kv1d', 'v248'); self.fetch('kv1z', 'v249'); self.fetch('kv1f', 'v250')

    def pass_v(self):
        e = self.e; k = self.k
        side = self.cap(self.kside)
        e("v_add_u32 v34, 0x20000, v12\nv_add_u32 v35, 0x20000, v13")
        k.wait_vm('v1'); e("s_barrier")
        self.wreads(0, 0, 'vr')
        chunk = (len(side) + 7)//8
        q0 = 4
        for c in range(8):
            if c in (1, 3, 5):
                k.wait_vm(f'v{c+2}'); e("s_barrier")
            k.wait_lg(f'vr{c}')
            if c == 3: e("v_mov_b32 v34, v12\nv_mov_b32 v35, v13")
            main = self.cap(self.mfma_vq, c, 'v')
            if c < 7:
                off = (c+1)*8192 if c+1 < 4 else (c+1-4)*8192
                rd = self.cap(self.wreads, c+1, off, 'vr')
            else: rd = []
            def dm():
                if c == 0:
                    for cc in (6, 7): self.dma_wqkv(cc, 2, (cc-4)*8192, f'v{cc}')
                    self.prewarm_issue('pwA', 'v251')
                elif c >= q0:
                    for cc in (2*(c-q0), 2*(c-q0)+1): self.dma_wqkv(cc, 0, 65536 + cc*8192, f'q{cc}')
            sd = side[c*chunk:(c+1)*chunk]
            self.weave(main, (rd, 0.7), (self.cap(dm), 1.0), (sd, len(sd)/12.0))

    def kv_publish(self):
        e = self.e; k = self.k
        ST1 = 4*8192
        k.wait_lg('st1w')
        for ee in range(2):
            e(f"ds_read_b128 v[{128+8*ee}:{131+8*ee}], v254 offset:{ST1 + ee*64}", tag='st1r')
            e(f"ds_read_b128 v[{132+8*ee}:{135+8*ee}], v254 offset:{ST1 + 256 + ee*64}", tag='st1r')
        k.wait_lg('st1r')
        T = 160
        tl = [(ee, ep) for ee in range(2) for ep in range(2)]
        for i, (ee, ep) in enumerate(tl):
            M = 128 + 8*ee; acc = 80 + (ee*2+ep)*4; cs = 96 + ep*4; t = T + 4*i
            for p in range(2):
                e(f"v_pk_fma_f32 v[{t+2*p}:{t+2*p+1}], v[{M+2*p}:{M+2*p+1}], v[{cs}:{cs+1}], v[{acc+2*p}:{acc+2*p+1}] op_sel_hi:[1,0,1] neg_lo:[1,0,0] neg_hi:[1,0,0]")
        for i, (ee, ep) in enumerate(tl):
            RS = 132 + 8*ee; t = T + 4*i
            for p in range(2):
                e(f"v_pk_mul_f32 v[{t+2*p}:{t+2*p+1}], v[{t+2*p}:{t+2*p+1}], v[{RS+2*p}:{RS+2*p+1}]")
        for i, (ee, ep) in enumerate(tl):
            t = T + 4*i; d = 208 + 4*ep + 2*ee
            e(f"v_cvt_pk_bf16_f32 v{d}, v{t}, v{t+1}\nv_cvt_pk_bf16_f32 v{d+1}, v{t+2}, v{t+3}")
        for ep in range(2):
            for sg in range(2):
                pa = 192 + 8*ep + 4*sg
                e(f"{MF} v[{40+8*ep+4*sg}:{43+8*ep+4*sg}], v[{pa}:{pa+3}], v[{208+4*ep}:{211+4*ep}], 0")
        for ep in range(2):
            for sg in range(2):
                pa = 192 + 8*ep + 4*sg
                e(f"{MF} v[{56+8*ep+4*sg}:{59+8*ep+4*sg}], v[{pa}:{pa+3}], v[20:23], 0")
        for ep in range(2):
            for q in range(4): e(f"v_cvt_pk_bf16_f32 v{72+8*ep+q}, v{40+8*ep+2*q}, v{41+8*ep+2*q}")
        self.pub([f"buffer_store_dwordx4 v[72:75], v248, {WS}, 0 offen",
                  f"buffer_store_dwordx4 v[80:83], v248, {WS}, {c8K} offen"], tag='kv1s')
        for ep in range(2):
            for q in range(4): e(f"v_cvt_pk_bf16_f32 v{76+8*ep+q}, v{56+8*ep+2*q}, v{57+8*ep+2*q}")
        e(f"s_mov_b64 exec, {sS0}")
        self.pub([f"buffer_store_dwordx4 v[76:79], v249, {WS}, 0 offen",
                  f"buffer_store_dwordx4 v[84:87], v249, {WS}, 0 offen offset:1024"], tag='kv1s')
        e("s_mov_b64 exec, -1")
        e("v_add_u32 v34, 0x10000, v12\nv_add_u32 v35, 0x10000, v13")
        self.flag('v250', [0, 32], wait_tag='kv1s')

    def pass_q(self):
        e = self.e; k = self.k
        e("v_add_u32 v10, 7168, v8\nv_add_u32 v11, 14336, v8\nv_add_u32 v255, 21504, v8")
        k.wait_vm('q7'); e("s_barrier")
        self.wreads(0, 0, 'qr')
        sa = self.cap(self.setup_addr, 2); na = (len(sa) + 4)//5
        for c in range(8):
            k.wait_lg(f'qr{c}')
            main = self.cap(self.mfma_vq, c, 'q')
            rd = self.cap(self.wreads, c+1, (c+1)*8192, 'qr') if c < 7 else []
            dm = self.cap(self.dma_w64, SRD_WO, 0, 'wo', [c//2]) if c % 2 == 0 else []
            sd = []
            if c == 0:
                def rx():
                    e(f"s_lshl_b32 {sT2}, {sRHO}, 14\ns_lshl_b32 {sT1}, {sJ}, 7\ns_add_u32 {sT2}, {sT2}, {sT1}\nv_lshlrev_b32 v236, 10, v2\nv_lshl_add_u32 v236, v3, 3, v236")
                    for ct in range(4):
                        e(f"buffer_load_dwordx2 v[{240+2*ct}:{241+2*ct}], v236, {srd(SRD_X)}, {sT2} offen offset:{ct*32}", tag='resx')
                sd = self.cap(rx)
            if 2 <= c <= 6: sd = sa[(c-2)*na:(c-1)*na]
            if c == 7: sd = self.cap(lambda: (self.fetch('r_poll', 'v248'), self.fetch('r_kv', 'v249'), self.fetch('r_z', 'v250')))
            self.weave(main, (rd, 0.7), (dm, 1.0), (sd, max(0.5, len(sd)/11)))

    def sum8(self, vkv, vz, tagp):
        e = self.e; k = self.k
        for x in range(8):
            e(f"buffer_load_dwordx4 v[{176+4*x}:{179+4*x}], {vkv}, {WS}, {CQ[x>>2]} offen offset:{(x&3)*1024} sc1", tag=f'{tagp}{x}')
        e(f"s_mov_b64 exec, {sS0}")
        for x in range(8):
            e(f"buffer_load_dwordx4 v[{208+4*x}:{211+4*x}], {vz}, {WS}, 0 offen offset:{x*128} sc1", tag=f'{tagp}z')
        e("s_mov_b64 exec, -1")
        for x in range(8):
            k.wait_vm(f'{tagp}{x}')
            self.mf(40, "v[26:29]", f"v[{176+4*x}:{179+4*x}]", x == 0)
            self.mf(44, "v[24:27]", f"v[{176+4*x}:{179+4*x}]", x == 0)
        k.wait_vm(f'{tagp}z')
        for x in range(8):
            self.mf(48, "v[26:29]", f"v[{208+4*x}:{211+4*x}]", x == 0)
            self.mf(52, "v[24:27]", f"v[{208+4*x}:{211+4*x}]", x == 0)
        for q in range(8): e(f"v_cvt_pk_bf16_f32 v{56+q}, v{40+2*q}, v{41+2*q}")

    def reduce1a(self):
        e = self.e; k = self.k
        Lskip = k.label('Lred')
        e(f"s_cmp_lg_u32 {sW}, 0\ns_cbranch_scc1 {Lskip}")
        self.poll('v248', 'v161')
        self.fetch('kv2d', 'v251'); self.fetch('kv2z', 'v252'); self.fetch('kv2f', 'v253')
        self.sum8('v249', 'v250', 'r')
        e(f"""buffer_store_dwordx4 v[56:59], v251, {WS}, 0 offen sc1
s_mov_b64 exec, {sS0}
buffer_store_dwordx4 v[60:63], v252, {WS}, 0 offen sc1
s_mov_b64 exec, -1""", nocount=True)
        e(f"{Lskip}:")
    def reduce1b(self):
        e = self.e; k = self.k
        Lskip = k.label('Lred')
        e(f"s_cmp_lg_u32 {sW}, 0\ns_cbranch_scc1 {Lskip}")
        self.flag('v253', 0, force_sc1=True)
        e("s_barrier")
        e(f"{Lskip}:")

    def qfeat(self):
        tiles = [(104 + (ep*2+ee)*4, 120 + ep*4, 36+ee, 38+ee, 30+2*ep, 128 + 8*ep + 4*ee) for ep in range(2) for ee in range(2)]
        self.features(tiles, 160)

    def final_kv_and_o(self):
        e = self.e; k = self.k
        SC = 152*1024
        self.fetch('k_poll', 'v248'); self.fetch('k_kv', 'v249'); self.fetch('k_z', 'v250')
        self.fetch('o_st', 'v253'); self.fetch('o_fl', 'v254')
        e(f"""s_lshl_b32 {sT0}, {sW}, 11
v_add_u32 v251, {sT0}, v1
v_add_u32 v251, {SC}, v251
s_lshl_b32 {sT0}, {sB}, 12
v_add_u32 v252, {sT0}, v1
v_add_u32 v252, {SC}, v252""")
        self.poll('v248', 'v161')
        self.stamp('kv2 ready')
        self.sum8('v249', 'v250', 'kv')
        for q in range(4): e(f"v_mov_b32_dpp v{60+q}, v{60+q} row_newbcast:0 row_mask:0xf bank_mask:0xf")
        e("ds_write_b128 v251, v[56:59]", tag='kvw')
        e("ds_write_b128 v251, v[60:63] offset:1024", tag='kvw')
        k.wait_lg('kvw')
        e("s_barrier")
        for ep in range(2):
            e(f"ds_read_b128 v[{40+8*ep}:{43+8*ep}], v252 offset:{ep*2048}", tag='kvr')
            e(f"ds_read_b128 v[{44+8*ep}:{47+8*ep}], v252 offset:{ep*2048+1024}", tag='kvr')
        k.wait_lg('kvr')
        tl = [(ee, ep) for ee in range(2) for ep in range(2)]
        for i, (ee, ep) in enumerate(tl):
            pq = 128 + 8*ep + 4*ee; n = 176 + i*8
            e(f"{MF} v[{n}:{n+3}], v[{40+8*ep}:{43+8*ep}], v[{pq}:{pq+3}], 0")
            e(f"{MF} v[{n+4}:{n+7}], v[{44+8*ep}:{47+8*ep}], v[{pq}:{pq+3}], 0")
        for i in range(4): n = 176 + i*8; e(f"v_add_f32 v{n+4}, 0x358637bd, v{n+4}")
        for i in range(4): n = 176 + i*8; e(f"v_rcp_f32 v{n+4}, v{n+4}")
        for i in range(4):
            n = 176 + i*8
            e(f"v_pk_mul_f32 v[{n}:{n+1}], v[{n}:{n+1}], v[{n+4}:{n+5}] op_sel_hi:[1,0]\nv_pk_mul_f32 v[{n+2}:{n+3}], v[{n+2}:{n+3}], v[{n+4}:{n+5}] op_sel_hi:[1,0]")
        for i, (ee, ep) in enumerate(tl):
            n = 176 + i*8
            e(f"v_cvt_pk_bf16_f32 v{72+4*ee+2*ep}, v{n}, v{n+1}\nv_cvt_pk_bf16_f32 v{72+4*ee+2*ep+1}, v{n+2}, v{n+3}")
        self.pub([f"buffer_store_dwordx4 v[72:75], v253, {WS}, 0 offen",
                  f"buffer_store_dwordx4 v[76:79], v253, {WS}, {c16K} offen"], tag='os')
        self.flag('v254', 0, wait_tag='os')

    def phase_regs(self):
        e = self.e
        for ct in range(4): e(f"v_add_u32 v{56+ct}, 0x10000, v{14+ct}")
        self.fetch('tile', 'v60'); self.fetch('flag', 'v61'); self.fetch('fpoll', 'v62'); self.fetch('st_st', 'v63'); self.fetch('st_ld', 'v224')

    def unpack16(self, src, dst):
        for q in range(8):
            self.e(f"v_lshlrev_b32 v{dst+2*q}, 16, v{src+q}\nv_and_b32 v{dst+2*q+1}, 0xffff0000, v{src+q}")

    def a_reads(self, t, basereg, imm, tagp):
        buf = 128 + (t % 3)*16
        for ct in range(4):
            for h in range(2):
                self.e(f"ds_read_b64_tr_b16 v[{buf+4*ct+2*h}:{buf+4*ct+2*h+1}], v{basereg+ct} offset:{imm + h*2048}", tag=f'{tagp}{t}')

    def gemm64_pre(self, base, tagp):
        for t in range(3): self.a_reads(t, base, t*4096, tagp)

    def bload(self, t, btag, vaddr=None):
        va = 'v225' if vaddr is None else vaddr(t)
        self.e(f"buffer_load_dwordx4 v[{64+4*t}:{67+4*t}], {va}, {WS}, {CQ[t//4]} offen offset:{(t%4)*1024} sc1", tag=f'{btag}{t}')

    def gemm64_main(self, base, tagp, btag, first_zero=False, mid=None, late=(), pre_step=None, vaddr=None):
        k = self.k
        late = list(late)
        D = self.opt.get('bdepth', 6)
        for t in range(D): self.bload(t, btag, vaddr)
        if mid: mid()
        for t in range(16):
            k.wait_lg(f'{tagp}{t}')
            k.wait_vm(f'{btag}{t}')
            if self.opt.get('gstamp') and t in (0, 4, 8, 12): self.stamp(f'  {btag} t{t}')
            if pre_step: pre_step(t)
            buf = 128 + (t % 3)*16
            def mm():
                for ct in range(4):
                    self.mf(40+4*ct, f"v[{buf+4*ct}:{buf+4*ct+3}]", f"v[{64+4*t}:{67+4*t}]", first_zero and t == 0)
            rd = self.cap(self.a_reads, t+3, base, (t+3)*4096, tagp) if t + 3 < 16 else []
            bl = self.cap(self.bload, t+D, btag, vaddr) if t + D < 16 else []
            if t + D >= 16 and late:
                bl = late[:3]; late = late[3:]
            self.weave(self.cap(mm), (bl, 1), (rd, 2))
        self.k.L += late

    def row_stats(self):
        e = self.e
        e("v_pk_add_f32 v[180:181], v[40:41], v[42:43]\nv_pk_mul_f32 v[182:183], v[40:41], v[40:41]")
        e("v_pk_add_f32 v[184:185], v[44:45], v[46:47]\nv_pk_mul_f32 v[186:187], v[44:45], v[44:45]")
        e("v_pk_fma_f32 v[182:183], v[42:43], v[42:43], v[182:183]\nv_pk_fma_f32 v[186:187], v[46:47], v[46:47], v[186:187]")
        for q in range(4, 8, 2):
            e(f"v_pk_add_f32 v[180:181], v[180:181], v[{40+2*q}:{41+2*q}]\nv_pk_add_f32 v[184:185], v[184:185], v[{42+2*q}:{43+2*q}]")
            e(f"v_pk_fma_f32 v[182:183], v[{40+2*q}:{41+2*q}], v[{40+2*q}:{41+2*q}], v[182:183]\nv_pk_fma_f32 v[186:187], v[{42+2*q}:{43+2*q}], v[{42+2*q}:{43+2*q}], v[186:187]")
        e("v_pk_add_f32 v[180:181], v[180:181], v[184:185]\nv_pk_add_f32 v[182:183], v[182:183], v[186:187]")
        e("v_add_f32 v180, v180, v181\nv_add_f32 v181, v182, v183")
        self.allred([('v180','v181')], 'v_add_f32')

    def pack(self, dst):
        for q in range(8): self.e(f"v_cvt_pk_bf16_f32 v{dst+q}, v{40+2*q}, v{41+2*q}")
    def pub_tile(self, pk, tag):
        self.pub([f"buffer_store_dwordx4 v[{pk}:{pk+3}], v60, {WS}, 0 offen",
                  f"buffer_store_dwordx4 v[{pk+4}:{pk+7}], v60, {WS}, 0 offen offset:1024"], tag=tag)
    def pub_stats(self, off, tag):
        self.e("s_mov_b64 exec, 0xffff")
        self.pub([f"buffer_store_dwordx2 v[180:181], v63, {WS}, 0 offen offset:{off}"], tag=tag)
        self.e("s_mov_b64 exec, -1")
    def load_stats(self, off, tag):
        self.e(f"buffer_load_dwordx4 v[188:191], v224, {WS}, 0 offen offset:{off} sc1", tag=tag)

    def reduce_stats(self, tag, m, rs):
        e = self.e
        self.k.wait_vm(tag)
        e("v_pk_add_f32 v[188:189], v[188:189], v[190:191]")
        self.allred([('v188','v189')], 'v_add_f32')
        e(f"""v_mul_f32 v{m}, {sINV}, v188
v_mul_f32 v189, {sINV}, v189
v_fma_f32 v189, -v{m}, v{m}, v189
v_max_f32 v189, 0, v189
v_add_f32 v190, {sEPS}, v189
v_rsq_f32 v{rs}, v190""")

    def gelu_pairs(self, regs, T):
        e = self.e
        P = list(enumerate(regs))
        for i, y in P: e(f"v_pk_mul_f32 v[{T+2*i}:{T+2*i+1}], v[{y}:{y+1}], v[{y}:{y+1}]")
        for i, y in P: e(f"v_pk_fma_f32 v[{T+2*i}:{T+2*i+1}], v[{T+2*i}:{T+2*i+1}], s[80:81], s[80:81] op_sel:[0,1,0] op_sel_hi:[1,1,0]")
        for i, y in P: e(f"v_pk_mul_f32 v[{T+2*i}:{T+2*i+1}], v[{T+2*i}:{T+2*i+1}], v[{y}:{y+1}]")
        for i, y in P: e(f"v_exp_f32 v{T+2*i}, v{T+2*i}\nv_exp_f32 v{T+2*i+1}, v{T+2*i+1}")
        for i, y in P: e(f"v_pk_add_f32 v[{T+2*i}:{T+2*i+1}], v[{T+2*i}:{T+2*i+1}], s[94:95]")
        for i, y in P: e(f"v_rcp_f32 v{T+2*i}, v{T+2*i}\nv_rcp_f32 v{T+2*i+1}, v{T+2*i+1}")
        for i, y in P: e(f"v_pk_mul_f32 v[{y}:{y+1}], v[{y}:{y+1}], v[{T+2*i}:{T+2*i+1}]")

    def cs1(self):
        e = self.e; k = self.k
        SC1 = 128*1024
        e(f"s_lshl_b32 {sT0}, {sW}, 5\nv_xor_b32 v184, {sT0}, v56")
        def rd(t):
            tt = t % 8
            for h in range(2): e(f"ds_read_b64_tr_b16 v[{64+4*tt+2*h}:{64+4*tt+2*h+1}], v184 offset:{t*4096 + h*2048}", tag=f'c1_{t}')
        for t in range(7): rd(t)
        e(f"""s_lshl_b32 {sT0}, {sW}, 6
v_lshlrev_b32 v185, 4, v3
v_add_u32 v185, {SC1}, v185
v_add_u32 v186, {sT0}, v185""")
        for t in range(16):
            k.wait_lg(f'c1_{t}')
            self.mf(188, f"v[{64+4*(t%8)}:{67+4*(t%8)}]", "v[20:23]", t == 0)
            if t + 7 < 16: rd(t+7)
        e(f"s_mov_b64 exec, {sS0}")
        e("ds_write_b128 v186, v[188:191]", tag='c1w')
        e("s_mov_b64 exec, -1")
        k.wait_lg('c1w')
        e("s_barrier")
        for ct in range(4): e(f"ds_read_b128 v[{208+4*ct}:{211+4*ct}], v185 offset:{ct*64}", tag='c1r')

    def phase_wo(self):
        e = self.e; k = self.k; o = self.opt
        self.phase_regs()
        self.cs1()
        self.gemm64_pre(14, 'ao')
        k.wait_vm('resx')
        self.unpack16(240, 40)
        self.fetch('o_poll', 'v184'); self.fetch('b_o', 'v225')
        self.poll('v184', 'v185')
        self.stamp('o ready')
        self.gemm64_main(14, 'ao', 'bo', late=self.cap(self.dma_w3, 2))
        self.stamp('wo gemm')
        self.pack(232)
        self.pub_tile(232, 'hs')
        self.row_stats()
        self.pub_stats(0, 'hs2')
        self.flag('v61', 0, wait_tag='hs2')

    def phase_w1(self):
        e = self.e; k = self.k; o = self.opt
        e("s_barrier")
        self.dma_w64(SRD_W2, 0, 'w2', [0])
        self.gemm64_pre(56, 'a1')
        self.fetch('b_h', 'v225'); self.fetch('hh_st', 'v200'); self.fetch('hh_halo', 'v201'); self.fetch('hh_haloflag', 'v202')
        self.poll('v62', 'v185', 0)
        self.stamp('h ready')
        self.load_stats(0, 'sth')
        def mid():
            self.reduce_stats('sth', 230, 231)
            e(f"""v_mul_f32 v190, v231, v231
v_mul_f32 v190, v189, v190
v_add_f32 v190, {sEPS}, v190
v_rsq_f32 v190, v190
v_mul_f32 v228, v231, v190""")
        w2 = self.cap(self.dma_w64, SRD_W2, 0, 'w2', [1, 2, 3])
        nl = 22
        self.gemm64_main(56, 'a1', 'b1', first_zero=True, mid=mid, late=w2[:nl])
        self.stamp('w1 gemm')
        k.wait_lg('c1r')
        def epi():
            for q in range(8):
                e(f"v_pk_fma_f32 v[{40+2*q}:{41+2*q}], v[{208+2*q}:{209+2*q}], v[230:231], v[{40+2*q}:{41+2*q}] op_sel_hi:[1,0,1] neg_lo:[1,0,0] neg_hi:[1,0,0]")
            for q in range(8):
                e(f"v_pk_mul_f32 v[{40+2*q}:{41+2*q}], v[{40+2*q}:{41+2*q}], v[228:229] op_sel_hi:[1,0]")
            self.gelu_pairs([40+2*q for q in range(8)], 64)
            self.pack(192)
        e("s_barrier")
        self.mix(self.cap(epi), w2[nl:] + self.cap(self.dma_w3, 0), 2.2)
        self.pub([f"buffer_store_dwordx4 v[192:195], v200, {WS}, 0 offen",
                  f"buffer_store_dwordx4 v[196:199], v200, {WS}, 0 offen offset:1024"], tag='hhs')
        Lh = k.label('Lhalo')
        e(f"s_cmp_eq_u64 s[68:69], 0\n~s_cbranch_scc1 {Lh}")
        k.push()
        e(f"""s_mov_b64 exec, s[68:69]
buffer_store_dwordx4 v[192:195], v201, {WS}, 0 offen sc1
buffer_store_dwordx4 v[196:199], v201, {WS}, 0 offen offset:1024 sc1
s_mov_b64 exec, -1""", nocount=True)
        self.flag('v202', 0, force_sc1=True)
        k.pop()
        e(f"~{Lh}:")
        self.flag('v61', 32, wait_tag='hhs')

    def phase_w2(self):
        e = self.e; k = self.k; o = self.opt
        e("s_barrier")
        self.gemm64_pre(14, 'a2')
        self.unpack16(232, 40)
        e("v_mul_f32 v229, v230, v231")
        for q in range(8):
            e(f"v_pk_fma_f32 v[{40+2*q}:{41+2*q}], v[{40+2*q}:{41+2*q}], v[230:231], v[228:229] op_sel:[0,1,1] op_sel_hi:[1,1,1] neg_lo:[0,0,1] neg_hi:[0,0,1]")
        self.fetch('hh_poll', 'v185')
        for q in range(4): self.fetch(f'hh_ld{q}', f'v{244+q}')
        self.poll('v185', 'v186')
        self.stamp('hh ready')
        self.gemm64_main(14, 'a2', 'b2', late=self.cap(self.dma_w3, 1), vaddr=lambda t: f'v{244 + t//4}')
        self.stamp('w2 gemm')
        e("s_barrier")
        self.pack(192)
        self.pub_tile(192, 'x1s')
        self.row_stats()
        self.pub_stats(2048, 'x1s2')
        self.flag('v61', 64, wait_tag='x1s2')
        def hx():
            self.unpack16(232, 208)
            for q in range(8):
                e(f"v_pk_add_f32 v[{208+2*q}:{209+2*q}], v[{208+2*q}:{209+2*q}], v[{40+2*q}:{41+2*q}]")
            for q in range(16): e(f"v_accvgpr_write_b32 a{240+q}, v{208+q}")
        self.mix(self.cap(hx), self.cap(lambda: (self.dma_w3(3), self.dma_w3(4))), 1.3)

    def mlp_setup(self):
        e = self.e
        e(f"""v_lshrrev_b32 v18, 3, v0
v_and_b32 v5, 6, v18
v_and_b32 v6, 7, v0
v_xor_b32 v6, v6, v5
v_mul_u32_u24 v4, 2752, v18
v_lshl_add_u32 v4, v6, 4, v4
s_lshl_b32 {sT0}, {sF0}, 1
s_mul_i32 {sT1}, {sW}, {16*2752}
s_add_u32 {sT0}, {sT0}, {sT1}
v_add_u32 v4, {sT0}, v4
v_add_u32 v7, {8*2752-1024}, v4
v_cmp_gt_u32 vcc, {sFW}, v6
v_mov_b32 v12, {hex(OOB)}
v_cndmask_b32 v5, v12, v4, vcc
v_cndmask_b32 v12, v12, v7, vcc
s_lshl_b32 s98, {sW}, 12
s_lshl_b32 s99, {sRHO}, 14
s_add_u32 s99, s99, {X1B}
s_mul_i32 s19, {sI}, 11
s_add_u32 {sROT}, s19, {sW}""")

    W3A = [65536, 65536+24576, 131072, 16384, 40960, 65536, 65536+24576, 131072]
    X1A = [114688, 122880, 0, 8192, 114688, 122880, 0, 8192]
    def dma_w3(self, c):
        self.e(f"s_lshl_b32 s0, {sI}, 1\ns_add_u32 s0, s0, {c}\ns_and_b32 s0, s0, 7\ns_mul_i32 s1, s0, {64*2752}")
        for q in range(3):
            self.dmag(SRD_W3, ('s1', q*128) if q else 's1', (sM0W, self.W3A[c] + q*8192), [('v4', 0), ('v7', 1024)] if q < 2 else [('v5', 0), ('v12', 1024)], f'm{c}')
    def dma_x1(self, c):
        self.e(f"s_lshl_b32 s0, {sI}, 1\ns_add_u32 s0, s0, {c}\ns_and_b32 s0, s0, 7\ns_lshl_b32 s0, s0, 11\ns_add_u32 s0, s0, s99")
        self.dmag(SRD_WS, 's0', (sM0W, self.X1A[c]), [('v1', 0), ('v1', 1024)], f'm{c}', sc1=True)
    def dma_w4(self, n, slot0):
        self.e(f"s_add_u32 s0, {sROT}, {4*n}\ns_sub_u32 s1, s0, 43\ns_cmp_lt_u32 s0, 43\ns_cselect_b32 s0, s0, s1\ns_lshl_b32 s0, s0, 15")
        if n == 10: self.e(f"s_cmp_eq_u32 {sW}, 3\ns_cselect_b32 s0, {hex(OOB)}, s0")
        self.dmag(SRD_W4, 's0', ('s98', slot0*4096), self.W4V, f'w4_{n}')

    def w3_reads(self, c):
        def base(addr, regs): return regs[addr >> 16], addr & 0xffff
        par = c % 2
        for u in range(2):
            for rl in range(4):
                b = 40 + par*32 + u*16 + rl*4
                r, o = base(self.X1A[c] + (rl*2+u)*1024, ('v1', 'v110'))
                self.e(f"ds_read_b128 v[{b}:{b+3}], {r} offset:{o}", tag=f'mr{c}')
            for q in range(3):
                b = 192 + par*24 + u*12 + q*4
                for h in range(2):
                    r, o = base(self.W3A[c] + q*8192 + u*4096 + h*2048, ('v108', 'v109', 'v111'))
                    self.e(f"ds_read_b64_tr_b16 v[{b+2*h}:{b+2*h+1}], {r} offset:{o}", tag=f'mr{c}')
    def w3_mfma(self, c):
        par = c % 2
        for u in range(2):
            for q in range(3):
                wb = 192 + par*24 + u*12 + q*4
                for rl in range(4):
                    acc = 128 + (q*4+rl)*4; xbb = 40 + par*32 + u*16 + rl*4
                    self.mf(acc, f"v[{wb}:{wb+3}]", f"v[{xbb}:{xbb+3}]", c == 0 and u == 0)
                self.mf(176+4*q, f"v[{wb}:{wb+3}]", "v[20:23]", c == 0 and u == 0)

    def phase_w3(self):
        e = self.e; k = self.k; o = self.opt
        SC = 152*1024; XCH = 128*1024
        e("v_mov_b32 v112, v62\nv_mov_b32 v113, v61")
        e(f"s_lshl_b32 {sT0}, {sW}, 5\nv_xor_b32 v108, {sT0}, v14\nv_add_u32 v109, 0x10000, v108\nv_add_u32 v110, 0x10000, v1\nv_add_u32 v111, 0x20000, v108")
        e(f"""s_lshl_b32 {sT0}, {sW}, 7
v_lshlrev_b32 v104, 3, v2
v_add_u32 v104, {SC+1024}, v104
v_add_u32 v105, {sT0}, v104""")
        self.poll('v112', 'v185', 64)
        self.stamp('x1 ready')
        self.load_stats(2048, 'stx')
        for c in range(2): self.dma_x1(c)
        self.reduce_stats('stx', 106, 107)
        e("ds_write_b64 v105, v[106:107]", tag='s3w')
        k.wait_lg('s3w')
        k.wait_vm('m0'); e("s_barrier")
        for rl in range(4): e(f"ds_read_b64 v[{240+2*rl}:{241+2*rl}], v104 offset:{rl*128}", tag='s3r')
        self.w3_reads(0)
        for c in range(8):
            if c < 7:
                k.wait_vm(f'm{c+1}'); e("s_barrier")
            k.wait_lg(f'mr{c}')
            main = self.cap(self.w3_mfma, c)
            rd = self.cap(self.w3_reads, c+1) if c < 7 else []
            def dmf():
                if c == 0: self.dma_x1(2); self.dma_x1(3)
                if 1 <= c <= 3: self.dma_x1(c+3); self.dma_w3(c+4)
                if c == 4: self.dma_x1(7)
                if c == 5: self.prewarm_issue('pwB', 'v114')
            self.weave(main, (rd, 0.8), (self.cap(dmf), 0.9))
        self.stamp('w3 gemm')
        e("s_barrier")
        k.wait_lg('s3r')
        e(f"""s_lshr_b32 {sT0}, {sW}, 1
s_lshl_b32 {sT0}, {sT0}, 10
s_and_b32 {sT1}, {sW}, 1
s_lshl_b32 {sT1}, {sT1}, 3
s_add_u32 {sT0}, {sT0}, {sT1}
s_add_u32 {sT0}, {sT0}, {XCH}
v_add_u32 v104, {sT0}, v1
s_mul_i32 {sT0}, {sW}, 6144
s_add_u32 {sT0}, {sT0}, {XCH}
v_add_u32 v105, {sT0}, v1
s_lshr_b32 {sT0}, {sF0}, 5
s_add_u32 {sT0}, {sT0}, 43
s_sub_u32 {sT0}, {sT0}, s19""")
        for uu in range(6):
            e(f"s_add_u32 s{8+uu}, {sT0}, {uu}\ns_sub_u32 {sT1}, s{8+uu}, 43\ns_cmp_lt_u32 s{8+uu}, 43\ns_cselect_b32 s{8+uu}, s{8+uu}, {sT1}\ns_lshl_b32 s{8+uu}, s{8+uu}, 10")
        e(f"s_cmp_eq_u32 {sFW}, 8\ns_cselect_b32 s13, s13, {hex(OOB)}")
        self.fetch('hid_st', 'v106')
        def epi():
            for q in range(3):
                for rl in range(4):
                    acc = 128 + (q*4+rl)*4; cs = 176 + 4*q; m = 240 + 2*rl
                    for p in range(2):
                        e(f"v_pk_fma_f32 v[{acc+2*p}:{acc+2*p+1}], v[{cs+2*p}:{cs+2*p+1}], v[{m}:{m+1}], v[{acc+2*p}:{acc+2*p+1}] op_sel_hi:[1,0,1] neg_lo:[1,0,0] neg_hi:[1,0,0]")
                for rl in range(4):
                    acc = 128 + (q*4+rl)*4; m = 240 + 2*rl
                    for p in range(2):
                        e(f"v_pk_mul_f32 v[{acc+2*p}:{acc+2*p+1}], v[{acc+2*p}:{acc+2*p+1}], v[{m}:{m+1}] op_sel:[0,1] op_sel_hi:[1,1]")
                self.gelu_pairs([128 + q*16 + 2*i for i in range(8)], 40)
                for rl in range(4):
                    acc = 128 + (q*4+rl)*4
                    e(f"v_cvt_pk_bf16_f32 v{72+8*q+2*rl}, v{acc}, v{acc+1}\nv_cvt_pk_bf16_f32 v{73+8*q+2*rl}, v{acc+2}, v{acc+3}")
                for rl in range(4):
                    e(f"ds_write_b64 v104, v[{72+8*q+2*rl}:{73+8*q+2*rl}] offset:{(rl*6 + 2*q)*1024}", tag='hidw')
        n1 = o.get('w4_n1', 5)
        ep_l = self.cap(epi); dm_l = self.cap(lambda: [self.dma_w4(n, 4*n) for n in range(n1)])
        self.mix(ep_l, dm_l, len(ep_l)/len(dm_l)*0.9)
        k.wait_lg('hidw')
        e("s_barrier")
        self.stamp('gelu done')
        for uu in range(6): e(f"ds_read_b128 v[{40+4*uu}:{43+4*uu}], v105 offset:{uu*1024}", tag='hidr')
        k.wait_lg('hidr')
        lines = [f"buffer_store_dwordx4 v[{40+4*uu}:{43+4*uu}], v106, {WS}, s{8+uu} offen" for uu in range(6)]
        self.pub(lines, tag='hids')
        self.flag('v113', 96, wait_tag='hids')
        for n in range(n1, 8): self.dma_w4(n, 4*n)
        e("s_barrier")
        self.dma_w4(8, 32)

    def phase_w4(self):
        e = self.e; k = self.k
        for ct in range(4):
            e(f"v_mov_b32 v{176+ct}, v{14+ct}\nv_add_u32 v{180+ct}, 0x10000, v{14+ct}\nv_add_u32 v{184+ct}, 0x20000, v{14+ct}")
        self.fetch('hid_ld', 'v225'); self.fetch('out_st', 'v224')
        self.poll('v112', 'v189', 96)
        self.stamp('hid ready')
        e("s_barrier")
        NK = 43
        def slot(t): return t if t < 36 else t - 36
        def ard(t):
            ad = slot(t)*4096
            self.a_reads(t, 176 + 4*(ad >> 16), ad & 0xffff, 'a4')
        def bld(t):
            if t % 4 == 0: e(f"s_mov_b32 {sT5}, {t*1024}")
            b = 64 + 4*(t % 16)
            e(f"buffer_load_dwordx4 v[{b}:{b+3}], v225, {WS}, {sT5} offen offset:{(t%4)*1024} sc1", tag=f'b4{t}')
        D = self.opt.get('bdepth4', 6)
        for t in range(D): bld(t)
        for t in range(3): ard(t)
        for t in range(NK):
            if t == 8: e("s_barrier")
            if t == 31:
                k.wait_vm('w4_10'); e("s_barrier")
            k.wait_lg(f'a4{t}')
            k.wait_vm(f'b4{t}')
            buf = 128 + (t % 3)*16; b = 64 + 4*(t % 16)
            def mm():
                for ct in range(4):
                    self.mf(240+4*ct, f"v[{buf+4*ct}:{buf+4*ct+3}]", f"v[{b}:{b+3}]", ag=True)
            def side():
                if t + 3 < NK: ard(t+3)
            def side2():
                if t + D < NK: bld(t+D)
                if t == 8: self.dma_w4(9, 0)
                if t == 12: self.dma_w4(10, 4)
            self.weave(self.cap(mm), (self.cap(side2), 1), (self.cap(side), 2))
        self.stamp('w4 gemm')
        for q in range(16): e(f"v_accvgpr_read_b32 v{40+q}, a{240+q}")
        for q in range(8): e(f"v_cvt_pk_bf16_f32 v{56+q}, v{40+2*q}, v{41+2*q}")
        for pp in range(2):
            b = 56 + 4*pp
            e(f"v_permlane16_swap_b32 v{b}, v{b+2}\nv_permlane16_swap_b32 v{b+1}, v{b+3}")
        for pp in range(2):
            b = 56 + 4*pp
            e(f"buffer_store_dwordx4 v[{b}:{b+3}], v224, {srd(SRD_OUT)}, 0 offen offset:{pp*64}")

    def epoch_update(self):
        e = self.e
        e(f"""s_or_b32 {sT0}, s2, {sW}
s_cmp_eq_u32 {sT0}, 0
s_cselect_b32 {sT0}, {EPOCH}, {hex(OOB)}
s_mov_b64 exec, 1
buffer_store_dword v9, off, {WS}, {sT0} sc1
s_mov_b64 exec, -1""")

    def finish(self):
        e = self.e
        if self.debug:
            e(f"""s_lshl_b32 {sT0}, s2, 10
s_lshl_b32 {sT1}, {sW}, 8
s_add_u32 {sT0}, {sT0}, {sT1}
s_add_u32 {sT0}, {sT0}, {DBG}
s_memrealtime s[84:85]
s_waitcnt lgkmcnt(0)
s_sub_u32 s84, s84, s90
v_writelane_b32 v19, s84, 61
v_writelane_b32 v19, s90, 60
v_writelane_b32 v19, {sTO}, 62
v_writelane_b32 v19, {sFAST}, 63
v_lshlrev_b32 v18, 2, v0
buffer_store_dword v19, v18, {WS}, {sT0} offen""")
        e("s_waitcnt vmcnt(0)")
        e("L_end:\ns_endpgm")
        for blk in self.ool: e(blk)

    def build(self):
        k = self.k; e = self.e
        self.prologue()
        self.stamp('prologue')
        k.raw('@PAGESTART')
        self.pass_k(); self.ids_check(); self.stamp('pass k')
        self.pass_v(); self.stamp('pass v')
        self.kv_publish(); self.stamp('kv1 pub')
        self.pass_q(); self.stamp('pass q')
        e("s_barrier")
        k.push(); self.reduce1a(); k.pop()
        self.stamp('reduce1')
        qf = self.cap(self.qfeat)
        cut = int(len(qf)*self.opt.get('qcut', 70)/100)
        k.L += qf[:cut]
        k.push(); self.reduce1b(); k.pop()
        k.L += qf[cut:]
        self.touches(list(range(4, 16)))
        self.setup_addr(1)
        self.mlp_setup()
        e(f"s_cmp_eq_u32 {sW}, 0\ns_cbranch_scc1 L_qd\ns_barrier")
        k.push()
        e(f"s_sub_u32 {sT0}, {sW}, 1\ns_mul_i32 {sT0}, {sT0}, 6\ns_lshl_b32 {sT1}, {sI}, 2\ns_add_u32 {sT0}, {sT0}, {sT1}")
        for n in range(6):
            if n == 4:
                e(f"s_cmp_eq_u32 {sW}, 3\n~s_cbranch_scc1 L_w1d")
            e(f"s_add_u32 s0, {sT0}, {n}\ns_and_b32 s0, s0, 15\ns_lshl_b32 s1, s0, 15\ns_lshl_b32 s0, s0, 12")
            self.dmag(SRD_W1, 's1', ('s0', 0x10000), self.W4V, 'w1')
        e("~L_w1d:")
        k.pop()
        e("L_qd:")
        self.setup_shift()
        self.stamp('qfeat')
        self.final_kv_and_o(); self.stamp('o pub')
        self.phase_wo(); self.epoch_update(); self.stamp('h pub')
        self.phase_w1(); self.stamp('hh pub')
        self.phase_w2(); self.stamp('x1 pub')
        self.phase_w3(); self.stamp('hid pub')
        self.phase_w4(); self.stamp('end')
        self.finish()
        body = k.finalize()
        lds = 160*1024
        hdr = open('cdna_kernels/' + NAME[:-7] + '.s.ref').read().split('\n')
        top = [l for l in hdr if l.startswith(';') and '@launch' not in l and 'Override' not in l and 'grid=ceil' not in l]
        txt = '\n'.join(top) + '\n'
        txt += f"; @launch grid=(256,1,1) block=(256,1,1) lds={lds}\n"
        txt += f""".amdgcn_target "amdgcn-amd-amdhsa--gfx950"
.text
.globl {NAME}
.p2align 8
.type {NAME},@function
{NAME}:
{body}
.section .rodata,"a"
.p2align 6
.amdhsa_kernel {NAME}
  .amdhsa_next_free_vgpr 512
  .amdhsa_next_free_sgpr 102
  .amdhsa_accum_offset 256
  .amdhsa_group_segment_fixed_size 0
  .amdhsa_kernarg_size 96
  .amdhsa_user_sgpr_count 2
  .amdhsa_user_sgpr_kernarg_segment_ptr 1
  .amdhsa_system_sgpr_workgroup_id_x 1
  .amdhsa_float_denorm_mode_32 3
.end_amdhsa_kernel
"""
        return txt

def generate(debug=True, opt=None):
    g = G(debug=debug, npages=0, opt=opt); g.build(); n = g.k.npages
    n2 = n if not (opt or {}).get('notouch') else 0
    g = G(debug=debug, npages=n2, opt=opt); txt = g.build()
    if g.k.npages != n:
        n = g.k.npages
        g = G(debug=debug, npages=n, opt=opt); txt = g.build()
    return txt, g

if __name__ == '__main__':
    debug = '--nodebug' not in sys.argv
    opt = {}
    for a in sys.argv[1:]:
        if '=' in a and not a.startswith('/'): kk, v = a.split('='); opt[kk.lstrip('-')] = int(v)
    txt, g = generate(debug, opt)
    out = sys.argv[1] if len(sys.argv) > 1 and not sys.argv[1].startswith('--') and '=' not in sys.argv[1] else 'k4.s'
    open(out, 'w').write(txt)
    open('stamps.txt', 'w').write('\n'.join(g.stamp_names))
    print('wrote', out, len(txt), 'bytes', txt.count('\n'), 'lines; pages', g.k.npages)
```

```python
import sys, struct, os
from asmgen import Kern, Ins

NAME = 'sequential_preLN__linear_kernel_hedgehog__mixer_s_mlp__prompt_kernel'
def f2u(x): return struct.unpack('<I', struct.pack('<f', x))[0]

EPOCH = 0
IDS   = 0x1000
F_KV2 = 0x2000
F_KV1 = 0x4000
F_HALO= 0x6000
FLG   = 0x8000
DBG   = 0x10000
KV1Z  = 0x60000
KV2K  = 0xA0000
KV2Z  = 0xE0000
ST    = 0x100000
HALO  = 0x180000
OB    = 0x200000
HHB   = 0x200000
HB    = 0x400000
X1B   = 0x400000
HIDB  = 0x600000
HIDS  = 44*1024
WS_BYTES = 0x10000000
OOB   = 0x40000000
INC   = 0x9E3779B0

SRD_X, SRD_WQKV, SRD_WPHI, SRD_WO, SRD_W1, SRD_W2, SRD_W3, SRD_W4, SRD_OUT, SRD_WS = [8+4*i for i in range(10)]
def srd(b): return f's[{b}:{b+3}]'
WS = srd(SRD_WS)
sX, sI, sJ, sR, sW, sA, sB, sT, sFAST, sTO, sXCC, sRHO = [f's{i}' for i in range(48, 60)]
sM0W = 's60'; sCNT = 's61'
sT0, sT1, sT2, sT3, sT4, sT5 = 's62','s63','s64','s65','s66','s67'
sMK1, sMK2, sMK3, sMKD = 's[68:69]','s[70:71]','s[72:73]','s[74:75]'
sS0 = 's[76:77]'; sLL = 's[78:79]'
sEPS = 's82'; sINV = 's83'; sTS = 's[84:85]'; sTS0 = 's86'; sF0 = 's87'; sFW = 's88'; sU0 = 's89'
sD = 's3'
sROT = 's89'
c4K, c8K, c12K, c16K = 's4', 's5', 's6', 's7'
CQ = ['0', c4K, c8K, c12K]
MF = 'v_mfma_f32_16x16x32_bf16'

STASH = ['kv1d','kv1z','kv1f','r_poll','r_kv','r_z','kv2d','kv2z','kv2f','k_poll','k_kv','k_z','o_st','o_fl','o_poll',
         'tile','flag','fpoll','st_st','st_ld','b_o','b_h','hh_st','hh_halo','hh_haloflag','hh_poll','hh_ld0','hh_ld1','hh_ld2','hh_ld3','hid_st','hid_ld','out_st','pwA','pwB','pwC']
AST = {n: 128+i for i, n in enumerate(STASH)}

class G:
    def __init__(self, debug=True, npages=0, opt=None):
        self.k = Kern(); self.k.paged = True
        self.debug = debug; self.npages = npages
        self.nstamp = 0; self.stamp_names = []
        self.opt = opt or {}
        self.ool = []

    def e(self, t, tag=None, nocount=False): self.k.e(t, tag, nocount)
    def cap(self, fn, *a, **kw):
        prev = self.k.capture(); fn(*a, **kw); return self.k.end_capture(prev)
    def stash(self, n, v): self.e(f"v_accvgpr_write_b32 a{AST[n]}, {v}")
    def fetch(self, n, v): self.e(f"v_accvgpr_read_b32 {v}, a{AST[n]}")

    def weave(self, main, *sides):
        k = self.k
        pos = [0]*len(sides); acc = [0.0]*len(sides)
        for ins in main:
            k.L.append(ins)
            if ins.kind == 'i' and ins.text.startswith('v_mfma'):
                for si, (lst, per) in enumerate(sides):
                    acc[si] += per
                    while acc[si] >= 1 and pos[si] < len(lst):
                        k.L.append(lst[pos[si]]); pos[si] += 1
                        if lst[pos[si]-1].kind == 'i': acc[si] -= 1
        for si, (lst, per) in enumerate(sides): k.L += lst[pos[si]:]

    def mix(self, a, b, ratio):
        k = self.k; pb = 0; cnt = 0.0
        for ins in a:
            k.L.append(ins)
            if ins.kind == 'i':
                cnt += 1
                while cnt >= ratio and pb < len(b):
                    k.L.append(b[pb]); pb += 1
                    if b[pb-1].kind == 'i': cnt -= ratio
        k.L += b[pb:]

    def stamp(self, name):
        if not self.debug: return
        n = self.nstamp; self.nstamp += 1; self.stamp_names.append(name)
        self.e(f"""s_memtime {sTS}
s_waitcnt lgkmcnt(0)
s_sub_u32 s84, s84, {sTS0}
v_writelane_b32 v19, s84, {n}""")

    def poll(self, vaddr, vtmp, off=0):
        k = self.k
        Lp = k.label('Lpoll'); Ld = k.label('Lpd')
        self.e(f"""s_movk_i32 {sCNT}, 1
s_cmp_lg_u32 {sTO}, 0
~s_cbranch_scc1 {Lp}
s_mov_b32 {sCNT}, 0x8000
~{Lp}:
buffer_load_dword {vtmp}, {vaddr}, {WS}, 0 offen offset:{off} sc1""", nocount=True)
        self.e(f"""s_waitcnt vmcnt(0)
v_cmp_ne_u32 vcc, {sT}, {vtmp}
~s_cbranch_vccz {Ld}
s_sub_u32 {sCNT}, {sCNT}, 1
s_cmp_lg_u32 {sCNT}, 0
~s_cbranch_scc1 {Lp}
s_mov_b32 {sTO}, 1
~{Ld}:""")

    def pub(self, lines, force_sc1=False, tag=None):
        k = self.k
        if force_sc1:
            for l in lines: self.e(l + ' sc1', tag=tag)
            return
        Ls = k.label('Lslow'); Ld = k.label('Lpub')
        self.e(f"s_cmp_eq_u32 {sFAST}, 0\n~s_cbranch_scc1 {Ls}")
        for l in lines: self.e(l, tag=tag)
        self.e(f"~s_branch {Ld}\n~{Ls}:")
        for l in lines: self.e(l + ' sc1', nocount=True)
        self.e(f"~{Ld}:")

    def flag(self, vaddr, offs, force_sc1=False, wait_tag=None):
        if wait_tag is None: self.e("s_waitcnt vmcnt(0)")
        else: self.k.wait_vm(wait_tag)
        if not isinstance(offs, list): offs = [offs]
        self.e("s_mov_b64 exec, 1")
        self.pub([f"buffer_store_dword v9, {vaddr}, {WS}, 0 offen offset:{o}" for o in offs], force_sc1)
        self.e("s_mov_b64 exec, -1")

    def allred(self, pairs, op):
        e = self.e
        for A, B in pairs: e(f"v_permlane32_swap_b32 {A}, {B}")
        for A, B in pairs: e(f"{op} {A}, {A}, {B}")
        for A, B in pairs: e(f"v_mov_b32 {B}, {A}")
        for A, B in pairs: e(f"v_permlane16_swap_b32 {A}, {B}")
        for A, B in pairs: e(f"{op} {A}, {A}, {B}")
        for A, B in pairs: e(f"v_mov_b32 {B}, {A}")
        for A, B in pairs: e(f"v_permlane32_swap_b32 {A}, {B}")

    def mf(self, acc, A, B, first=False, ag=False):
        r = 'a' if ag else 'v'
        self.e(f"{MF} {r}[{acc}:{acc+3}], {A}, {B}, " + ("0" if first else f"{r}[{acc}:{acc+3}]"))

    def dmag(self, srdb, soff, m0, loads, tag, sc1=False):
        self.e(f"s_add_u32 m0, {m0[0]}, {m0[1]}")
        if isinstance(soff, tuple):
            self.e(f"s_add_u32 {sD}, {soff[0]}, {soff[1]}"); so = sD
        else: so = soff
        for v, imm in loads:
            self.e(f"buffer_load_dwordx4 {v}, {srd(srdb)}, {so} offen offset:{imm}{' sc1' if sc1 else ''} lds", tag=tag)
    def rot_chunk(self, c):
        self.e(f"s_add_u32 s0, {sROT}, {c}\ns_and_b32 s0, s0, 7\ns_mul_i32 s1, s0, {64*3072}\ns_lshl_b32 s0, s0, 7")
    def dma_wqkv(self, c, part, ldsbase, tag, rot=True):
        if rot: self.rot_chunk(c)
        self.dmag(SRD_WQKV, ('s1', part*1024) if part else 's1', (sM0W, ldsbase), [('v6', 0), ('v7', 1024)], tag)
    def dma_k(self, c):
        self.rot_chunk(c)
        self.dmag(SRD_X, 's0', (sM0W, c*8192), [('v4', 0), ('v5', 1024)], f'k{c}')
        self.dma_wqkv(c, 1, 65536 + c*8192, f'k{c}', rot=False)
    W4V = [('v8', 0), ('v10', 1024), ('v11', 2048), ('v255', 3072)]
    def dma_w64(self, srdb, ldsbase, tag, groups):
        for g in groups:
            self.e(f"s_add_u32 s0, {sI}, {g}\ns_and_b32 s0, s0, 3\ns_lshl_b32 s1, s0, 15\ns_add_u32 s1, s1, s97\ns_lshl_b32 s0, s0, 12\ns_add_u32 s0, s0, s96")
            self.dmag(srdb, 's1', ('s0', ldsbase), self.W4V, tag)

    def touches(self, pages):
        e = self.e; k = self.k
        if not self.npages: return
        pc = k.label('Lpc')
        e(f"s_getpc_b64 s[92:93]\n{pc}:")
        for w in range(4):
            mine = [p for p in pages[w::4] if p < self.npages]
            if not mine: continue
            L = k.label('Ltouch')
            e(f"s_cmp_eq_u32 {sW}, {w}\ns_cbranch_scc0 {L}")
            for p in mine:
                e(f"s_add_u32 s98, s92, Lpg_{p}-{pc}\ns_addc_u32 s99, s93, 0\ns_swappc_b64 s[100:101], s[98:99]")
            e(f"{L}:")

    PTRS = [(SRD_X,0,0x200000),(SRD_WQKV,8,0x180000),(SRD_WS,88,WS_BYTES),(SRD_WPHI,16,0x4000),(SRD_WO,24,0x80000),
            (SRD_W1,40,0x80000),(SRD_W2,48,0x80000),(SRD_W3,56,512*1376*2),(SRD_W4,64,1376*512*2),(SRD_OUT,72,0x200000)]

    def prologue(self):
        e = self.e; k = self.k; o = self.opt
        e(f"s_cmp_ge_u32 s2, 256\ns_cbranch_scc1 L_end")
        e(f"s_load_dwordx4 s[8:11], s[0:1], 0")
        if self.debug or o.get('dbgout'): e(f"s_memtime s[86:87]\ns_memrealtime s[90:91]")
        e(f"""
v_lshrrev_b32 v2, 6, v0
v_and_b32 v0, 63, v0
s_and_b32 {sX}, s2, 7
s_lshr_b32 {sT0}, s2, 3
v_readfirstlane_b32 {sW}, v2
s_and_b32 {sJ}, {sT0}, 7
s_lshr_b32 {sI}, {sT0}, 3
s_lshl_b32 {sR}, {sX}, 2
s_add_u32 {sR}, {sR}, {sI}
v_lshrrev_b32 v3, 4, v0
v_lshrrev_b32 v10, 3, v0
v_and_b32 v11, 7, v0
v_lshlrev_b32 v13, 10, v10
v_xor_b32 v14, v11, v3
v_mul_u32_u24 v15, 3072, v10
v_and_b32 v16, 2, v10
v_xor_b32 v16, v11, v16
s_lshl_b32 {sM0W}, {sW}, 11
s_lshl_b32 {sT0}, {sR}, 16
s_lshl_b32 {sT1}, {sW}, 14
s_add_u32 {sT0}, {sT0}, {sT1}
s_mul_i32 {sT2}, {sW}, {16*3072}
s_lshl_b32 {sT1}, {sJ}, 7
s_add_u32 {sT2}, {sT2}, {sT1}
v_add_u32 v13, {sT0}, v13
v_add_u32 v15, {sT2}, v15
v_lshl_add_u32 v4, v14, 4, v13
v_lshl_add_u32 v6, v16, 4, v15
v_xor_b32 v14, 4, v14
v_xor_b32 v16, 4, v16
v_lshl_add_u32 v5, v14, 4, v13
v_lshl_add_u32 v7, v16, 4, v15
v_add_u32 v5, 0x1c00, v5
v_add_u32 v7, {8*3072-1024}, v7
s_lshl_b32 {sROT}, {sI}, 1
s_add_u32 {sROT}, {sROT}, {sJ}
s_waitcnt lgkmcnt(0)
s_mov_b32 s12, s10
s_mov_b32 s13, s11
s_mov_b32 s{SRD_X+2}, 0x200000
s_mov_b32 s{SRD_X+3}, 0x20000
s_mov_b32 s{SRD_WQKV+2}, 0x180000
s_mov_b32 s{SRD_WQKV+3}, 0x20000
""")
        if o.get('prstamp'): self.stamp('  pr karg')
        for b,off,sz in self.PTRS[2:]: e(f"s_load_dwordx2 s[{b}:{b+1}], s[0:1], {off}")
        if o.get('dbgout'): e("s_load_dwordx2 s[84:85], s[0:1], 80")
        self.D1 = o.get('pk_depth', 4)
        dm = self.cap(lambda: [self.dma_k(c) for c in range(self.D1)])
        def setups():
            if self.npages:
                e(f"""s_getpc_b64 s[92:93]
~L_cpc:
s_lshr_b32 {sT0}, s2, 3
s_lshl_b32 {sT0}, {sT0}, 2
s_add_u32 {sT0}, {sT0}, {sW}
s_lshl_b32 {sT0}, {sT0}, 9
v_and_b32 v18, 3, v0
v_lshlrev_b32 v18, 7, v18
v_add_u32 v18, {sT0}, v18
s_add_u32 s92, s92, Lpg_0-L_cpc
s_addc_u32 s93, s93, 0
v_min_u32 v18, {self.npages*4096 - 128}, v18
global_load_dword a200, v18, s[92:93]""", tag='cpf')
            e(f"""
v_and_b32 v2, 15, v0
s_lshr_b32 {sA}, {sW}, 1
s_and_b32 {sB}, {sW}, 1
v_lshlrev_b32 v1, 4, v0
s_lshl_b32 {sRHO}, {sR}, 2
s_add_u32 {sRHO}, {sRHO}, {sW}
s_mov_b32 {sTO}, 0
s_getreg_b32 {sXCC}, hwreg(HW_REG_XCC_ID, 0, 4)
s_lshl_b32 s96, {sW}, 14
s_lshl_b32 s97, {sW}, 17
s_movk_i32 {c4K}, 0x1000
s_movk_i32 {c8K}, 0x2000
s_movk_i32 {c12K}, 0x3000
s_movk_i32 {c16K}, 0x4000
v_lshrrev_b32 v13, 1, v2
v_xor_b32 v13, v13, v3
v_and_b32 v13, 7, v13
v_lshlrev_b32 v13, 4, v13
v_lshl_add_u32 v13, v2, 7, v13
s_lshl_b32 {sT0}, {sA}, 12
v_add_u32 v10, {sT0}, v13
v_xor_b32 v11, 64, v10
v_lshrrev_b32 v13, 2, v2
v_and_b32 v14, 2, v13
v_and_b32 v15, 1, v3
v_lshl_or_b32 v14, v15, 2, v14
v_bfe_u32 v15, v2, 1, 1
v_xor_b32 v14, v14, v15
v_lshlrev_b32 v14, 4, v14
v_and_b32 v15, 1, v2
v_lshl_add_u32 v14, v15, 3, v14
v_lshl_add_u32 v15, v3, 3, v13
v_lshl_add_u32 v16, v15, 7, v14
v_lshl_add_u32 v15, v3, 2, v13
v_lshl_add_u32 v17, v15, 7, v14
s_lshl_b32 {sT0}, {sB}, 6
v_xor_b32 v12, {sT0}, v16
v_xor_b32 v13, 32, v12
v_add_u32 v34, 0x10000, v12
v_add_u32 v35, 0x10000, v13
v_lshrrev_b32 v30, 2, v2
v_lshl_add_u32 v30, v3, 2, v30
v_lshlrev_b32 v30, 5, v30
v_and_b32 v31, 3, v2
v_lshl_add_u32 v30, v31, 3, v30
v_mov_b32 v14, v17
v_xor_b32 v15, 32, v17
v_xor_b32 v16, 64, v17
v_xor_b32 v17, 0x60, v17
v_mov_b32 v20, 0x3f803f80
v_mov_b32 v21, 0x3f803f80
v_mov_b32 v22, 0x3f803f80
v_mov_b32 v23, 0x3f803f80
""")
        st = self.cap(setups)
        self.mix(dm, st, 1.0*len([x for x in dm if x.kind == 'i'])/max(1, len([x for x in st if x.kind == 'i'])))
        if o.get('prstamp'): self.stamp('  pr setups')
        e("s_waitcnt lgkmcnt(0)")
        for b,off,sz in self.PTRS[2:]: e(f"s_mov_b32 s{b+2}, {hex(sz)}\ns_mov_b32 s{b+3}, 0x20000")
        e(f"s_load_dword {sT}, s[{SRD_WS}:{SRD_WS+1}], {EPOCH}")
        self.touches(list(range(0, 4)))

    def setup_ids(self):
        e = self.e
        L = 1.4426950408889634; c0 = -2.0*L*0.7978845608028654
        e(f"""
s_add_u32 {sT}, {sT}, {hex(INC)}
v_mov_b32 v9, {sT}
s_add_u32 {sT0}, {sT}, {sXCC}
v_mov_b32 v18, {sT0}
s_lshl_b32 {sT1}, {sX}, 7
s_lshl_b32 {sT2}, {sI}, 5
s_add_u32 {sT1}, {sT1}, {sT2}
s_lshl_b32 {sT2}, {sJ}, 2
s_add_u32 {sT1}, {sT1}, {sT2}
s_add_u32 {sT1}, {sT1}, {IDS}
s_cmp_lg_u32 {sW}, 0
s_cselect_b32 {sT1}, {hex(OOB)}, {sT1}
v_mov_b32 v36, {sT1}
v_mov_b32 v37, {hex(OOB)}
v_cmp_eq_u32 vcc, 0, v0
v_cndmask_b32 v36, v37, v36, vcc
buffer_store_dword v18, v36, {WS}, 0 offen sc1
s_mov_b32 s78, {hex(f2u(L))}
s_mov_b32 s79, {hex(f2u(-L))}
s_mov_b32 s80, {hex(f2u(c0))}
s_mov_b32 s81, {hex(f2u(c0*0.044715))}
s_mov_b32 {sEPS}, {hex(f2u(1e-5))}
s_mov_b32 {sINV}, {hex(f2u(1.0/512))}
s_mov_b32 s94, 1.0
s_mov_b32 s95, 1.0
""")

    def setup_b(self):
        e = self.e
        e(f"""
v_and_b32 v36, 3, v2
v_cmp_eq_u32 {sMK1}, 1, v36
v_cmp_eq_u32 {sMK2}, 2, v36
v_cmp_eq_u32 {sMK3}, 3, v36
v_lshrrev_b32 v37, 2, v2
v_cmp_eq_u32 {sMKD}, v37, v3
v_cmp_eq_u32 {sS0}, 0, v2
v_and_b32 v36, 1, v2
v_lshlrev_b32 v36, 4, v36
v_mov_b32 v37, 0x3f80
v_lshlrev_b32 v37, v36, v37
v_cndmask_b32 v37, 0, v37, {sMKD}
v_and_b32 v36, 2, v2
v_cmp_eq_u32 vcc, 0, v36
v_mov_b32 v24, 0
v_mov_b32 v25, 0
v_mov_b32 v28, 0
v_mov_b32 v29, 0
v_cndmask_b32 v26, 0, v37, vcc
v_cndmask_b32 v27, v37, 0, vcc
v_lshrrev_b32 v18, 3, v0
v_and_b32 v36, 6, v18
v_and_b32 v8, 7, v0
v_xor_b32 v8, v8, v36
v_lshlrev_b32 v8, 4, v8
v_lshl_add_u32 v8, v18, 10, v8
s_lshl_b32 {sT0}, {sJ}, 7
v_add_u32 v8, {sT0}, v8
""")

    def setup_addr(self, part):
        e0 = self.e
        if part == 0: R = {'v36':'v36','v37':'v37','v38':'v38','v39':'v39'}
        elif part == 2: R = {'v36':'v232','v37':'v233','v38':'v234','v39':'v235'}
        else: R = {'v36':'v248','v37':'v249','v38':'v250','v39':'v251'}
        def e(t):
            for a, b in R.items(): t = t.replace(a, b)
            e0(t)
        def st(n, v): self.stash(n, R[v])
        e(f"v_and_b32 v38, 7, v0\nv_lshlrev_b32 v38, 2, v38\nv_lshlrev_b32 v39, 4, v3")
        if part == 1: return self.setup_addr_late(e, st)
        if part == 2:
            e(f"""s_mul_i32 {sT2}, {sX}, {16*HIDS}
s_add_u32 {sT2}, {sT2}, {HIDB}
s_lshl_b32 {sT4}, {sX}, 5""")
            return self.setup_addr_red(e, st)
        e(f"""s_lshl_b32 {sT0}, {sJ}, 2
s_lshl_b32 {sT1}, {sB}, 1
s_add_u32 {sT0}, {sT0}, {sT1}
s_lshl_b32 {sT1}, {sI}, 1
s_add_u32 {sT1}, {sT1}, {sA}
s_mul_i32 {sT2}, {sX}, {16*HIDS}
s_add_u32 {sT2}, {sT2}, {HIDB}
s_lshl_b32 {sT3}, {sT0}, 13
s_add_u32 {sT3}, {sT3}, {sT2}
s_lshl_b32 {sT4}, {sT1}, 10
s_add_u32 {sT3}, {sT3}, {sT4}
v_add_u32 v36, {sT3}, v1""")
        st('kv1d', 'v36')
        e(f"""s_lshl_b32 {sT4}, {sX}, 5
s_add_u32 {sT0}, {sT0}, {sT4}
s_lshl_b32 {sT3}, {sT0}, 10
s_lshl_b32 {sT5}, {sT1}, 7
s_add_u32 {sT3}, {sT3}, {sT5}
s_add_u32 {sT3}, {sT3}, {KV1Z}
v_add_u32 v36, {sT3}, v39""")
        st('kv1z', 'v36')
        e(f"""s_lshl_b32 {sT3}, {sT0}, 5
s_lshl_b32 {sT1}, {sT1}, 2
s_add_u32 {sT3}, {sT3}, {sT1}
s_add_u32 {sT3}, {sT3}, {F_KV1}
v_mov_b32 v36, {sT3}""")
        st('kv1f', 'v36')
        if part == 0: return

    def setup_addr_red(self, e, st):
        e(f"""s_lshl_b32 {sT0}, {sJ}, 2
s_add_u32 {sT0}, {sT0}, {sI}
s_add_u32 {sT1}, {sT4}, {sT0}
s_lshl_b32 {sT3}, {sT1}, 5
s_add_u32 {sT3}, {sT3}, {F_KV1}
v_add_u32 v36, {sT3}, v38""")
        st('r_poll', 'v36')
        e(f"""s_lshl_b32 {sT3}, {sT0}, 13
s_add_u32 {sT3}, {sT3}, {sT2}
v_add_u32 v36, {sT3}, v1""")
        st('r_kv', 'v36')
        e(f"""s_lshl_b32 {sT3}, {sT1}, 10
s_add_u32 {sT3}, {sT3}, {KV1Z}
v_add_u32 v36, {sT3}, v39""")
        st('r_z', 'v36')
        e(f"""s_lshl_b32 {sT1}, {sT0}, 3
s_add_u32 {sT1}, {sT1}, {sX}
s_lshl_b32 {sT3}, {sT1}, 10
s_add_u32 {sT3}, {sT3}, {KV2K}
v_add_u32 v36, {sT3}, v1""")
        st('kv2d', 'v36')
        e(f"""s_lshl_b32 {sT3}, {sT1}, 7
s_add_u32 {sT3}, {sT3}, {KV2Z}
v_add_u32 v36, {sT3}, v39""")
        st('kv2z', 'v36')
        e(f"""s_lshl_b32 {sT3}, {sT0}, 7
s_lshl_b32 {sT1}, {sX}, 2
s_add_u32 {sT3}, {sT3}, {sT1}
s_add_u32 {sT3}, {sT3}, {F_KV2}
v_mov_b32 v36, {sT3}""")
        st('kv2f', 'v36')
        e(f"""s_lshl_b32 {sT0}, {sJ}, 2
s_add_u32 {sT0}, {sT0}, {sW}
s_lshl_b32 {sT3}, {sT0}, 7
s_add_u32 {sT3}, {sT3}, {F_KV2}
v_add_u32 v36, {sT3}, v38""")
        st('k_poll', 'v36')
        e(f"""s_lshl_b32 {sT3}, {sT0}, 13
s_add_u32 {sT3}, {sT3}, {KV2K}
v_add_u32 v36, {sT3}, v1""")
        st('k_kv', 'v36')
        e(f"""s_lshl_b32 {sT3}, {sT0}, 10
s_add_u32 {sT3}, {sT3}, {KV2Z}
v_add_u32 v36, {sT3}, v39""")
        st('k_z', 'v36')

    def setup_addr_late(self, e, st):
        e(f"""s_lshl_b32 {sT0}, {sR}, 2
s_lshl_b32 {sT1}, {sA}, 1
s_add_u32 {sT0}, {sT0}, {sT1}
s_lshl_b32 {sT1}, {sJ}, 1
s_add_u32 {sT1}, {sT1}, {sB}
s_lshl_b32 {sT3}, {sT0}, 14
s_lshl_b32 {sT4}, {sT1}, 10
s_add_u32 {sT3}, {sT3}, {sT4}
s_add_u32 {sT3}, {sT3}, {OB}
v_add_u32 v36, {sT3}, v1""")
        st('o_st', 'v36')
        e(f"""s_lshl_b32 {sT3}, {sT0}, 8
s_add_u32 {sT3}, {sT3}, {FLG+128}
s_lshl_b32 {sT4}, {sT1}, 2
s_add_u32 {sT4}, {sT4}, {sT3}
v_mov_b32 v36, {sT4}""")
        st('o_fl', 'v36')
        e(f"v_lshlrev_b32 v36, 2, v2\nv_add_u32 v36, {sT3}, v36")
        st('o_poll', 'v36')
        e(f"""s_lshl_b32 {sT0}, {sRHO}, 14
s_lshl_b32 {sT1}, {sJ}, 11
s_add_u32 {sT3}, {sT0}, {sT1}
s_add_u32 {sT3}, {sT3}, {HB}
v_add_u32 v36, {sT3}, v1""")
        st('tile', 'v36')
        e(f"""s_lshl_b32 {sT2}, {sRHO}, 8
s_add_u32 {sT2}, {sT2}, {FLG}
s_lshl_b32 {sT3}, {sJ}, 2
s_add_u32 {sT3}, {sT3}, {sT2}
v_mov_b32 v36, {sT3}""")
        st('flag', 'v36')
        e(f"v_add_u32 v36, {sT2}, v38")
        st('fpoll', 'v36')
        e(f"""s_lshl_b32 {sT3}, {sRHO}, 12
s_add_u32 {sT3}, {sT3}, {ST}
v_lshlrev_b32 v37, 6, v2
v_add_u32 v37, {sT3}, v37
v_add_u32 v36, v39, v37""")
        st('st_ld', 'v36')
        e(f"s_lshl_b32 {sT3}, {sJ}, 3\nv_add_u32 v36, {sT3}, v37")
        st('st_st', 'v36')
        e(f"s_add_u32 {sT3}, {sT0}, {OB}\nv_add_u32 v36, {sT3}, v1")
        st('b_o', 'v36')
        e(f"s_add_u32 {sT3}, {sT0}, {HB}\nv_add_u32 v36, {sT3}, v1")
        st('b_h', 'v36')
        e(f"""s_mul_i32 {sT3}, {sRHO}, {HIDS}
s_add_u32 {sT3}, {sT3}, {HIDB}
v_add_u32 v36, {sT3}, v1""")
        st('hid_ld', 'v36')
        st('hid_st', 'v36')
        e(f"""s_lshl_b32 {sT0}, {sRHO}, 14
s_lshl_b32 {sT1}, {sJ}, 7
s_add_u32 {sT0}, {sT0}, {sT1}
v_and_b32 v36, 1, v3
v_lshlrev_b32 v36, 5, v36
v_lshrrev_b32 v37, 1, v3
v_lshl_add_u32 v36, v37, 4, v36
v_lshl_add_u32 v36, v2, 10, v36
v_add_u32 v36, {sT0}, v36""")
        st('out_st', 'v36')

    def setup_shift(self):
        e = self.e; st = self.stash
        e(f"""s_lshr_b32 {sT0}, {sJ}, 2
s_add_u32 {sT0}, {sT0}, 1
s_bitcmp1_b32 {sJ}, 1
s_cselect_b32 {sT1}, -1, 1
s_mul_i32 {sT0}, {sT0}, {sT1}
s_lshl_b32 {sT1}, {sRHO}, 4
s_add_u32 {sT1}, {sT1}, {sT0}
v_add_u32 v36, {sT1}, v2
v_lshrrev_b32 v37, 4, v36
v_lshlrev_b32 v37, 14, v37
v_and_b32 v38, 15, v36
v_lshl_add_u32 v38, v3, 4, v38
v_lshlrev_b32 v38, 4, v38
v_add_u32 v37, v37, v38
s_lshl_b32 {sT1}, {sJ}, 11
s_add_u32 {sT2}, {sT1}, {HHB}
v_add_u32 v37, {sT2}, v37
s_lshl_b32 {sT2}, {sX}, 8
v_subrev_u32 v36, {sT2}, v36
v_cmp_lt_u32 vcc, 0xff, v36
v_mov_b32 v36, {hex(OOB)}
v_cndmask_b32 v37, v37, v36, vcc
s_mov_b64 s[68:69], vcc""")
        st('hh_st', 'v37')
        e(f"""s_lshl_b32 {sT2}, {sX}, 1
s_add_u32 {sT3}, {sT2}, 2
s_sub_u32 {sT2}, {sT2}, 1
s_cmp_gt_i32 {sT0}, 0
s_cselect_b32 {sT2}, {sT3}, {sT2}
s_lshl_b32 {sT3}, {sT2}, 14
s_add_u32 {sT3}, {sT3}, {sT1}
s_add_u32 {sT3}, {sT3}, {HALO}
v_add_u32 v36, {sT3}, v38""")
        st('hh_halo', 'v36')
        e(f"""s_lshl_b32 {sT3}, {sT2}, 5
s_lshl_b32 {sT1}, {sJ}, 2
s_add_u32 {sT3}, {sT3}, {sT1}
s_add_u32 {sT3}, {sT3}, {F_HALO}
v_mov_b32 v36, {sT3}
s_cmp_lt_u32 {sT2}, 16
s_cselect_b64 s[68:69], s[68:69], 0""")
        st('hh_haloflag', 'v36')
        e(f"""s_lshl_b32 {sT0}, {sRHO}, 8
s_add_u32 {sT0}, {sT0}, {FLG+32}
v_and_b32 v38, 7, v0
v_lshlrev_b32 v38, 2, v38
v_add_u32 v39, {sT0}, v38
s_and_b32 {sT1}, {sRHO}, 15
s_sub_u32 {sT2}, {sT0}, 256
s_lshl_b32 {sT3}, {sX}, 6
s_add_u32 {sT3}, {sT3}, {F_HALO}
s_cmp_eq_u32 {sT1}, 0
s_cselect_b32 {sT2}, {sT3}, {sT2}
s_cselect_b32 s92, 0x0f0f, 0
s_cmp_eq_u32 {sRHO}, 0
s_cselect_b32 {sT2}, {sT0}, {sT2}
s_add_u32 {sT4}, {sT0}, 256
s_add_u32 {sT3}, {sT3}, 32
s_cmp_eq_u32 {sT1}, 15
s_cselect_b32 {sT4}, {sT3}, {sT4}
s_cselect_b32 s92, 0xf0f0, s92
s_cmp_eq_u32 {sRHO}, 127
s_cselect_b32 {sT4}, {sT0}, {sT4}
v_lshrrev_b32 v36, 3, v0
v_bfe_u32 v37, v0, 1, 1
v_lshl_or_b32 v36, v36, 1, v37
v_add_u32 v37, {sT2}, v38
v_cmp_eq_u32 vcc, 2, v36
v_cndmask_b32 v39, v39, v37, vcc
v_add_u32 v37, {sT4}, v38
v_cmp_eq_u32 vcc, 5, v36
v_cndmask_b32 v39, v39, v37, vcc""")
        st('hh_poll', 'v39')
        e(f"""s_lshl_b32 {sT2}, {sX}, 15
s_add_u32 {sT2}, {sT2}, {HALO}          ; HALO[x*2+0]
s_add_u32 {sT3}, {sT2}, 16384           ; HALO[x*2+1]
s_cmp_eq_u32 {sRHO}, 0
s_cselect_b32 {sT2}, {hex(OOB)}, {sT2}
s_cmp_eq_u32 {sRHO}, 127
s_cselect_b32 {sT3}, {hex(OOB)}, {sT3}
s_lshl_b32 {sT0}, {sRHO}, 14
s_add_u32 {sT0}, {sT0}, {OB}
v_add_u32 v36, {sT0}, v1
v_add_u32 v37, {sT2}, v1
v_add_u32 v38, {sT3}, v1
s_cmp_eq_u32 {sT1}, 0
s_cselect_b32 {sT4}, 1, 0
s_cmp_eq_u32 {sT1}, 15
s_cselect_b32 {sT5}, 1, 0""")
        for q, (mag, lo) in enumerate(((1, True), (1, False), (2, True), (2, False))):
            if lo:
                e(f"s_mul_i32 {sT0}, {sT4}, {mag}\nv_cmp_gt_u32 vcc, {sT0}, v2\nv_cndmask_b32 v39, v36, v37, vcc")
            else:
                e(f"s_mul_i32 {sT0}, {sT5}, {mag}\ns_sub_u32 {sT0}, 15, {sT0}\nv_cmp_lt_u32 vcc, {sT0}, v2\nv_cndmask_b32 v39, v36, v38, vcc")
            st(f'hh_ld{q}', 'v39')

    def prewarm(self):
        e = self.e
        e(f"""s_lshl_b32 {sT0}, {sRHO}, 14
s_lshl_b32 {sT1}, {sJ}, 11
s_add_u32 {sT0}, {sT0}, {sT1}
v_and_b32 v36, 15, v0
v_lshlrev_b32 v36, 7, v36                ; (l&15)*128
s_add_u32 {sT1}, {sT0}, {OB}
v_add_u32 v37, {sT1}, v36                ; lanes 0-15: O
s_add_u32 {sT1}, {sT0}, {HB}
v_add_u32 v38, {sT1}, v36                ; lanes 16-31: H
v_cmp_lt_u32 vcc, 15, v0
v_cndmask_b32 v37, v37, v38, vcc""")
        self.fetch('kv1d', 'v38')
        e(f"""v_and_b32 v39, 7, v0
v_lshlrev_b32 v39, 7, v39
v_readfirstlane_b32 {sT1}, v38
v_bfe_u32 v38, v0, 3, 1
v_lshlrev_b32 v38, 13, v38
v_add_u32 v39, v39, v38
v_add_u32 v39, {sT1}, v39
v_cmp_lt_u32 vcc, 31, v0
v_cndmask_b32 v37, v37, v39, vcc""")
        self.fetch('kv1z', 'v38')
        e(f"""v_and_b32 v39, 1, v0
v_readfirstlane_b32 {sT1}, v38
v_lshlrev_b32 v39, 10, v39
v_add_u32 v39, {sT1}, v39                ; z lines (+0,+1024)
s_lshl_b32 {sT2}, {sRHO}, 12
s_lshl_b32 {sT3}, {sJ}, 7
s_add_u32 {sT2}, {sT2}, {sT3}
s_add_u32 {sT2}, {sT2}, {ST}
v_and_b32 v38, 1, v0
v_lshlrev_b32 v38, 11, v38
v_add_u32 v38, {sT2}, v38
v_cmp_lt_u32 vcc, 55, v0
v_cndmask_b32 v39, v39, v38, vcc
v_cmp_lt_u32 vcc, 47, v0
v_cndmask_b32 v37, v37, v39, vcc
v_accvgpr_write_b32 a{AST['pwA']}, v37
s_mul_i32 {sT1}, {sRHO}, {HIDS}
s_mul_i32 {sT2}, {sJ}, 192
s_mul_i32 {sT3}, {sJ}, 160
s_add_u32 {sT3}, {sT3}, 96
s_cmp_lt_u32 {sJ}, 3
s_cselect_b32 {sF0}, {sT2}, {sT3}
s_cselect_b32 {sFW}, 8, 4
s_mul_i32 {sT2}, {sJ}, 6144
s_add_u32 {sT1}, {sT1}, {sT2}
s_add_u32 {sT1}, {sT1}, {HIDB}
v_min_u32 v38, 47, v0
v_lshlrev_b32 v38, 7, v38
v_add_u32 v38, {sT1}, v38
v_accvgpr_write_b32 a{AST['pwB']}, v38
s_lshl_b32 {sT0}, {sRHO}, 14
s_lshl_b32 {sT1}, {sJ}, 7
s_add_u32 {sT0}, {sT0}, {sT1}
v_lshlrev_b32 v36, 3, v36                ; (l&15)*1024
v_add_u32 v36, {sT0}, v36
v_accvgpr_write_b32 a{AST['pwC']}, v36""")

    def prewarm_issue(self, which, vt):
        self.fetch(which, vt)
        self.e(f"buffer_load_dword a200, {vt}, {WS}, 0 offen", tag='pw')

    def xa(self, ee, t): return f"a[{(ee*16+t)*4}:{(ee*16+t)*4+3}]"
    def wreads(self, c, off, tagp, withx=False):
        buf = 128 + (c % 2)*16
        for u in range(2):
            t = 2*c+u
            if withx:
                for ee in range(2):
                    self.e(f"ds_read_b128 {self.xa(ee,t)}, v{10+u} offset:{c*8192 + ee*2048}", tag=f'{tagp}{c}')
            for ep in range(2):
                wb = buf + (u*2+ep)*4
                for h in range(2):
                    self.e(f"ds_read_b64_tr_b16 v[{wb+2*h}:{wb+2*h+1}], v{34+ep} offset:{off + u*4096 + h*512}", tag=f'{tagp}{c}')
    def mfma_k(self, c):
        buf = 128 + (c % 2)*16
        for u in range(2):
            t = 2*c+u
            for ep in range(2):
                wb = buf + (u*2+ep)*4
                for ee in range(2): self.mf(40 + (ep*2+ee)*4, f"v[{wb}:{wb+3}]", self.xa(ee,t), t == 0)
                self.mf(56+ep*4, f"v[{wb}:{wb+3}]", "v[20:23]", t == 0)
            for ee in range(2):
                self.mf(64+ee*4, "v[20:23]", self.xa(ee,t), t == 0)
                self.mf(72+ee*4, self.xa(ee,t), self.xa(ee,t), t == 0)
    def mfma_vq(self, c, which):
        buf = 128 + (c % 2)*16
        for u in range(2):
            t = 2*c+u
            for ep in range(2):
                wb = buf + (u*2+ep)*4
                for ee in range(2):
                    if which == 'v': self.mf(80 + (ee*2+ep)*4, self.xa(ee,t), f"v[{wb}:{wb+3}]", t == 0)
                    else: self.mf(104 + (ep*2+ee)*4, f"v[{wb}:{wb+3}]", self.xa(ee,t), t == 0)
                if which == 'v': self.mf(96+ep*4, "v[20:23]", f"v[{wb}:{wb+3}]", t == 0)
                else: self.mf(120+ep*4, f"v[{wb}:{wb+3}]", "v[20:23]", t == 0)

    def ids_issue(self):
        self.e(f"""s_lshl_b32 s92, {sX}, 7
s_add_u32 s92, s92, {IDS}
v_and_b32 v250, 31, v0
v_lshlrev_b32 v250, 2, v250
v_add_u32 v250, s92, v250""")
        self.e(f"buffer_load_dword v251, v250, {WS}, 0 offen sc1", tag='ids')
    def ids_check(self):
        e = self.e; k = self.k
        Lp = k.label('Lid'); Ld = k.label('Lidd')
        k.wait_vm('ids')
        e(f"""s_mov_b32 {sCNT}, 0x8000
~{Lp}:
v_subrev_u32 v252, {sT}, v251
v_cmp_lt_u32 vcc, 7, v252
~s_cbranch_vccz {Ld}""")
        k.push()
        e(f"buffer_load_dword v251, v250, {WS}, 0 offen sc1", nocount=True)
        e(f"""s_waitcnt vmcnt(0)
s_sub_u32 {sCNT}, {sCNT}, 1
s_cmp_lg_u32 {sCNT}, 0
~s_cbranch_scc1 {Lp}
s_mov_b32 {sTO}, 1""")
        k.pop()
        e(f"""~{Ld}:
v_cmp_ne_u32 vcc, {sXCC}, v252
s_cmp_eq_u64 vcc, 0
s_cselect_b32 {sFAST}, 1, 0""")

    def pass_k(self):
        e = self.e; k = self.k; D = self.D1
        q = [('k', c) for c in range(D, 8)] + [('v', c) for c in range(6)]
        def issue(item):
            kind, c = item
            if kind == 'k':
                self.dma_k(c)
            else:
                self.dma_wqkv(c, 2, (131072 + c*8192) if c < 4 else (c-4)*8192, f'v{c}')
        sides = {}
        k.wait_vm('k0'); e("s_barrier")
        self.wreads(0, 0, 'kr', withx=True)
        qi = 0
        for c in range(8):
            if c < 7:
                k.wait_vm(f'k{c+1}'); e("s_barrier")
            k.wait_lg(f'kr{c}')
            if self.opt.get('pkstamp') and c in (0, 2, 4, 6): self.stamp(f'  pk c{c}')
            main = self.cap(self.mfma_k, c)
            rd = self.cap(self.wreads, c+1, (c+1)*8192, 'kr', True) if c < 7 else []
            items = []
            while qi < len(q) and len(items) < 4:
                kind, cc = q[qi]
                cost = 4 if kind == 'k' else 2
                if sum(4 if a == 'k' else 2 for a, _ in items) + cost > 4: break
                items.append(q[qi]); qi += 1
            dm = self.cap(lambda: [issue(it) for it in items])
            if c == 3: dm = self.cap(self.ids_issue) + dm
            sd = []
            if c == 0: sd = self.cap(self.setup_ids)
            if c == 1: sd = self.cap(self.setup_b)
            if c == 2: sd = self.cap(self.setup_addr, 0)
            if c in (4, 5):
                pw = self.cap(self.prewarm); sd = pw[:len(pw)//2] if c == 4 else pw[len(pw)//2:]
            if c == 7:
                def wp():
                    e(f"s_lshl_b32 {sT0}, {sJ}, 2\ns_lshl_b32 {sT1}, {sB}, 1\ns_add_u32 {sT0}, {sT0}, {sT1}\ns_lshl_b32 {sT0}, {sT0}, 9\ns_lshl_b32 {sT1}, {sW}, 10")
                    self.dmag(SRD_WPHI, sT0, (sT1, 5*8192), [('v1', 0)], 'wphi')
                    e(f"v_add_u32 v30, {sT1}, v30")
                sd = self.cap(wp)
            self.weave(main, (dm, 2), (rd, 1), (sd, 1.5))
        assert qi == len(q), (qi, len(q))

    def stats1(self):
        e = self.e
        ST1 = 4*8192
        for ee in range(2):
            g0 = 72 + ee*4; t = 160 + ee
            e(f"""v_cndmask_b32 v{t}, v{g0}, v{g0+1}, {sMK1}
v_cndmask_b32 v{t}, v{t}, v{g0+2}, {sMK2}
v_cndmask_b32 v{t}, v{t}, v{g0+3}, {sMK3}
v_cndmask_b32 v{t}, 0, v{t}, {sMKD}""")
        self.allred([('v160','v161')], 'v_add_f32')
        for ee in range(2): e(f"v_mul_f32 v{36+ee}, {sINV}, v{64+ee*4}\nv_mul_f32 v{160+ee}, {sINV}, v{160+ee}")
        for ee in range(2): e(f"v_fma_f32 v{160+ee}, -v{36+ee}, v{36+ee}, v{160+ee}")
        for ee in range(2): e(f"v_max_f32 v{160+ee}, 0, v{160+ee}")
        for ee in range(2): e(f"v_add_f32 v{160+ee}, {sEPS}, v{160+ee}")
        for ee in range(2): e(f"v_rsq_f32 v{38+ee}, v{160+ee}")
        e(f"""s_lshl_b32 {sT0}, {sA}, 7
v_lshlrev_b32 v253, 2, v2
v_add_u32 v253, {sT0}, v253
v_lshlrev_b32 v254, 4, v3
v_add_u32 v254, {sT0}, v254""")
        for ee in range(2):
            e(f"ds_write_b32 v253, v{36+ee} offset:{ST1 + ee*64}", tag='st1w')
            e(f"ds_write_b32 v253, v{38+ee} offset:{ST1 + 256 + ee*64}", tag='st1w')

    def features(self, tiles, T):
        e = self.e
        n = len(tiles)
        def each(fn):
            for i, tl in enumerate(tiles): fn(T + 16*i, *tl)
        def sel(r): return f"v[{r&~1}:{(r&~1)+1}]", r & 1
        def s1(t, acc, cs, m, rs, wp, out):
            mp, ms = sel(m)
            for p in range(2):
                e(f"v_pk_fma_f32 v[{t+2*p}:{t+2*p+1}], v[{cs+2*p}:{cs+2*p+1}], {mp}, v[{acc+2*p}:{acc+2*p+1}] op_sel:[0,{ms},0] op_sel_hi:[1,{ms},1] neg_lo:[1,0,0] neg_hi:[1,0,0]")
        def s2(t, acc, cs, m, rs, wp, out):
            rp, rsl = sel(rs)
            for p in range(2):
                e(f"v_pk_mul_f32 v[{t+2*p}:{t+2*p+1}], v[{t+2*p}:{t+2*p+1}], {rp} op_sel:[0,{rsl}] op_sel_hi:[1,{rsl}]")
        each(s1); each(s2)
        each(lambda t,*a: e(f"v_cvt_pk_bf16_f32 v{t+4}, v{t}, v{t+1}\nv_cvt_pk_bf16_f32 v{t+5}, v{t+2}, v{t+3}"))
        each(lambda t,acc,cs,m,rs,wp,out: e(f"v_mfma_f32_16x16x16_bf16 v[{t}:{t+3}], v[{wp}:{wp+1}], v[{t+4}:{t+5}], 0"))
        each(lambda t,*a: e(f"v_max3_f32 v{t+4}, v{t}, v{t+1}, v{t+2}\nv_max3_f32 v{t+5}, -v{t}, -v{t+1}, -v{t+2}"))
        each(lambda t,*a: e(f"v_max_f32 v{t+4}, v{t+4}, v{t+3}\nv_max_f32_e64 v{t+5}, v{t+5}, -v{t+3}"))
        self.allred([(f'v{T+16*i+4}', f'v{T+16*i+5}') for i in range(n)], 'v_max_f32')
        each(lambda t,*a: e(f"v_pk_mul_f32 v[{t+4}:{t+5}], v[{t+4}:{t+5}], {sLL} op_sel_hi:[1,0]"))
        for r in range(4):
            each(lambda t,*a: e(f"v_pk_fma_f32 v[{t+8+2*r}:{t+9+2*r}], v[{t+(r&~1)}:{t+(r&~1)+1}], {sLL}, v[{t+4}:{t+5}] op_sel:[{r&1},0,0] op_sel_hi:[{r&1},1,1] neg_lo:[0,0,1] neg_hi:[0,0,1]"))
        for i8 in range(8): each(lambda t,*a: e(f"v_exp_f32 v{t+8+i8}, v{t+8+i8}"))
        each(lambda t,*a: e(f"v_pk_add_f32 v[{t}:{t+1}], v[{t+8}:{t+9}], v[{t+10}:{t+11}]\nv_pk_add_f32 v[{t+2}:{t+3}], v[{t+12}:{t+13}], v[{t+14}:{t+15}]"))
        each(lambda t,*a: e(f"v_pk_add_f32 v[{t}:{t+1}], v[{t}:{t+1}], v[{t+2}:{t+3}]"))
        self.allred([(f'v{T+16*i}', f'v{T+16*i+1}') for i in range(n)], 'v_add_f32')
        each(lambda t,*a: e(f"v_rcp_f32 v{t}, v{t}\nv_rcp_f32 v{t+1}, v{t+1}"))
        for r in range(4):
            each(lambda t,*a: e(f"v_pk_mul_f32 v[{t+8+2*r}:{t+9+2*r}], v[{t+8+2*r}:{t+9+2*r}], v[{t}:{t+1}]"))
        each(lambda t,acc,cs,m,rs,wp,out: e(f"""v_cvt_pk_bf16_f32 v{out}, v{t+8}, v{t+10}
v_cvt_pk_bf16_f32 v{out+1}, v{t+12}, v{t+14}
v_cvt_pk_bf16_f32 v{out+2}, v{t+9}, v{t+11}
v_cvt_pk_bf16_f32 v{out+3}, v{t+13}, v{t+15}"""))

    def kside(self):
        e = self.e; k = self.k
        self.stats1()
        k.wait_vm('wphi')
        e(f"ds_read_b64_tr_b16 v[32:33], v30 offset:{5*8192+512}", tag='wpr')
        e(f"ds_read_b64_tr_b16 v[30:31], v30 offset:{5*8192}", tag='wpr')
        k.wait_lg('wpr')
        tiles = [(40 + (ep*2+ee)*4, 56 + ep*4, 36+ee, 38+ee, 30+2*ep, 224 + (ep*2+ee)*4) for ep in range(2) for ee in range(2)]
        self.features(tiles, 160)
        for i in range(4):
            for sg in range(2):
                o = 224 + 4*i + 2*sg
                e(f"v_mfma_f32_16x16x16_bf16 v[{160+8*i+4*sg}:{163+8*i+4*sg}], v[{o}:{o+1}], v[26:27], 0")
        for ep in range(2):
            for ee in range(2):
                i = ep*2+ee
                for sg in range(2):
                    d = 192 + 8*ep + 4*sg + 2*ee; s = 160 + 8*i + 4*sg
                    e(f"v_cvt_pk_bf16_f32 v{d}, v{s}, v{s+1}\nv_cvt_pk_bf16_f32 v{d+1}, v{s+2}, v{s+3}")
        self.fetch('kv1d', 'v248'); self.fetch('kv1z', 'v249'); self.fetch('kv1f', 'v250')

    def pass_v(self):
        e = self.e; k = self.k
        side = self.cap(self.kside)
        e("v_add_u32 v34, 0x20000, v12\nv_add_u32 v35, 0x20000, v13")
        k.wait_vm('v1'); e("s_barrier")
        self.wreads(0, 0, 'vr')
        chunk = (len(side) + 7)//8
        q0 = 4
        for c in range(8):
            if c in (1, 3, 5):
                k.wait_vm(f'v{c+2}'); e("s_barrier")
            k.wait_lg(f'vr{c}')
            if c == 3: e("v_mov_b32 v34, v12\nv_mov_b32 v35, v13")
            main = self.cap(self.mfma_vq, c, 'v')
            if c < 7:
                off = (c+1)*8192 if c+1 < 4 else (c+1-4)*8192
                rd = self.cap(self.wreads, c+1, off, 'vr')
            else: rd = []
            def dm():
                if c == 0:
                    for cc in (6, 7): self.dma_wqkv(cc, 2, (cc-4)*8192, f'v{cc}')
                    self.prewarm_issue('pwA', 'v251')
                elif c >= q0:
                    for cc in (2*(c-q0), 2*(c-q0)+1): self.dma_wqkv(cc, 0, 65536 + cc*8192, f'q{cc}')
            sd = side[c*chunk:(c+1)*chunk]
            self.weave(main, (rd, 0.7), (self.cap(dm), 1.0), (sd, len(sd)/12.0))

    def kv_publish(self):
        e = self.e; k = self.k
        ST1 = 4*8192
        k.wait_lg('st1w')
        for ee in range(2):
            e(f"ds_read_b128 v[{128+8*ee}:{131+8*ee}], v254 offset:{ST1 + ee*64}", tag='st1r')
            e(f"ds_read_b128 v[{132+8*ee}:{135+8*ee}], v254 offset:{ST1 + 256 + ee*64}", tag='st1r')
        k.wait_lg('st1r')
        T = 160
        tl = [(ee, ep) for ee in range(2) for ep in range(2)]
        for i, (ee, ep) in enumerate(tl):
            M = 128 + 8*ee; acc = 80 + (ee*2+ep)*4; cs = 96 + ep*4; t = T + 4*i
            for p in range(2):
                e(f"v_pk_fma_f32 v[{t+2*p}:{t+2*p+1}], v[{M+2*p}:{M+2*p+1}], v[{cs}:{cs+1}], v[{acc+2*p}:{acc+2*p+1}] op_sel_hi:[1,0,1] neg_lo:[1,0,0] neg_hi:[1,0,0]")
        for i, (ee, ep) in enumerate(tl):
            RS = 132 + 8*ee; t = T + 4*i
            for p in range(2):
                e(f"v_pk_mul_f32 v[{t+2*p}:{t+2*p+1}], v[{t+2*p}:{t+2*p+1}], v[{RS+2*p}:{RS+2*p+1}]")
        for i, (ee, ep) in enumerate(tl):
            t = T + 4*i; d = 208 + 4*ep + 2*ee
            e(f"v_cvt_pk_bf16_f32 v{d}, v{t}, v{t+1}\nv_cvt_pk_bf16_f32 v{d+1}, v{t+2}, v{t+3}")
        for ep in range(2):
            for sg in range(2):
                pa = 192 + 8*ep + 4*sg
                e(f"{MF} v[{40+8*ep+4*sg}:{43+8*ep+4*sg}], v[{pa}:{pa+3}], v[{208+4*ep}:{211+4*ep}], 0")
        for ep in range(2):
            for sg in range(2):
                pa = 192 + 8*ep + 4*sg
                e(f"{MF} v[{56+8*ep+4*sg}:{59+8*ep+4*sg}], v[{pa}:{pa+3}], v[20:23], 0")
        for ep in range(2):
            for q in range(4): e(f"v_cvt_pk_bf16_f32 v{72+8*ep+q}, v{40+8*ep+2*q}, v{41+8*ep+2*q}")
        self.pub([f"buffer_store_dwordx4 v[72:75], v248, {WS}, 0 offen",
                  f"buffer_store_dwordx4 v[80:83], v248, {WS}, {c8K} offen"], tag='kv1s')
        for ep in range(2):
            for q in range(4): e(f"v_cvt_pk_bf16_f32 v{76+8*ep+q}, v{56+8*ep+2*q}, v{57+8*ep+2*q}")
        e(f"s_mov_b64 exec, {sS0}")
        self.pub([f"buffer_store_dwordx4 v[76:79], v249, {WS}, 0 offen",
                  f"buffer_store_dwordx4 v[84:87], v249, {WS}, 0 offen offset:1024"], tag='kv1s')
        e("s_mov_b64 exec, -1")
        e("v_add_u32 v34, 0x10000, v12\nv_add_u32 v35, 0x10000, v13")
        self.flag('v250', [0, 32], wait_tag='kv1s')

    def pass_q(self):
        e = self.e; k = self.k
        e("v_add_u32 v10, 7168, v8\nv_add_u32 v11, 14336, v8\nv_add_u32 v255, 21504, v8")
        k.wait_vm('q7'); e("s_barrier")
        self.wreads(0, 0, 'qr')
        sa = self.cap(self.setup_addr, 2); na = (len(sa) + 4)//5
        for c in range(8):
            k.wait_lg(f'qr{c}')
            main = self.cap(self.mfma_vq, c, 'q')
            rd = self.cap(self.wreads, c+1, (c+1)*8192, 'qr') if c < 7 else []
            dm = self.cap(self.dma_w64, SRD_WO, 0, 'wo', [c//2]) if c % 2 == 0 else []
            sd = []
            if c == 0:
                def rx():
                    e(f"s_lshl_b32 {sT2}, {sRHO}, 14\ns_lshl_b32 {sT1}, {sJ}, 7\ns_add_u32 {sT2}, {sT2}, {sT1}\nv_lshlrev_b32 v236, 10, v2\nv_lshl_add_u32 v236, v3, 3, v236")
                    for ct in range(4):
                        e(f"buffer_load_dwordx2 v[{240+2*ct}:{241+2*ct}], v236, {srd(SRD_X)}, {sT2} offen offset:{ct*32}", tag='resx')
                sd = self.cap(rx)
            if 2 <= c <= 6: sd = sa[(c-2)*na:(c-1)*na]
            if c == 7: sd = self.cap(lambda: (self.fetch('r_poll', 'v248'), self.fetch('r_kv', 'v249'), self.fetch('r_z', 'v250')))
            self.weave(main, (rd, 0.7), (dm, 1.0), (sd, max(0.5, len(sd)/11)))

    def sum8(self, vkv, vz, tagp):
        e = self.e; k = self.k
        for x in range(8):
            e(f"buffer_load_dwordx4 v[{176+4*x}:{179+4*x}], {vkv}, {WS}, {CQ[x>>2]} offen offset:{(x&3)*1024} sc1", tag=f'{tagp}{x}')
        e(f"s_mov_b64 exec, {sS0}")
        for x in range(8):
            e(f"buffer_load_dwordx4 v[{208+4*x}:{211+4*x}], {vz}, {WS}, 0 offen offset:{x*128} sc1", tag=f'{tagp}z')
        e("s_mov_b64 exec, -1")
        for x in range(8):
            k.wait_vm(f'{tagp}{x}')
            self.mf(40, "v[26:29]", f"v[{176+4*x}:{179+4*x}]", x == 0)
            self.mf(44, "v[24:27]", f"v[{176+4*x}:{179+4*x}]", x == 0)
        k.wait_vm(f'{tagp}z')
        for x in range(8):
            self.mf(48, "v[26:29]", f"v[{208+4*x}:{211+4*x}]", x == 0)
            self.mf(52, "v[24:27]", f"v[{208+4*x}:{211+4*x}]", x == 0)
        for q in range(8): e(f"v_cvt_pk_bf16_f32 v{56+q}, v{40+2*q}, v{41+2*q}")

    def reduce1a(self):
        e = self.e; k = self.k
        Lskip = k.label('Lred')
        e(f"s_cmp_lg_u32 {sW}, 0\ns_cbranch_scc1 {Lskip}")
        self.poll('v248', 'v161')
        self.fetch('kv2d', 'v251'); self.fetch('kv2z', 'v252'); self.fetch('kv2f', 'v253')
        self.sum8('v249', 'v250', 'r')
        e(f"""buffer_store_dwordx4 v[56:59], v251, {WS}, 0 offen sc1
s_mov_b64 exec, {sS0}
buffer_store_dwordx4 v[60:63], v252, {WS}, 0 offen sc1
s_mov_b64 exec, -1""", nocount=True)
        e(f"{Lskip}:")
    def reduce1b(self):
        e = self.e; k = self.k
        Lskip = k.label('Lred')
        e(f"s_cmp_lg_u32 {sW}, 0\ns_cbranch_scc1 {Lskip}")
        self.flag('v253', 0, force_sc1=True)
        e("s_barrier")
        e(f"{Lskip}:")

    def qfeat(self):
        tiles = [(104 + (ep*2+ee)*4, 120 + ep*4, 36+ee, 38+ee, 30+2*ep, 128 + 8*ep + 4*ee) for ep in range(2) for ee in range(2)]
        self.features(tiles, 160)

    def final_kv_and_o(self):
        e = self.e; k = self.k
        SC = 152*1024
        self.fetch('k_poll', 'v248'); self.fetch('k_kv', 'v249'); self.fetch('k_z', 'v250')
        self.fetch('o_st', 'v253'); self.fetch('o_fl', 'v254')
        e(f"""s_lshl_b32 {sT0}, {sW}, 11
v_add_u32 v251, {sT0}, v1
v_add_u32 v251, {SC}, v251
s_lshl_b32 {sT0}, {sB}, 12
v_add_u32 v252, {sT0}, v1
v_add_u32 v252, {SC}, v252""")
        self.poll('v248', 'v161')
        self.stamp('kv2 ready')
        self.sum8('v249', 'v250', 'kv')
        for q in range(4): e(f"v_mov_b32_dpp v{60+q}, v{60+q} row_newbcast:0 row_mask:0xf bank_mask:0xf")
        e("ds_write_b128 v251, v[56:59]", tag='kvw')
        e("ds_write_b128 v251, v[60:63] offset:1024", tag='kvw')
        k.wait_lg('kvw')
        e("s_barrier")
        for ep in range(2):
            e(f"ds_read_b128 v[{40+8*ep}:{43+8*ep}], v252 offset:{ep*2048}", tag='kvr')
            e(f"ds_read_b128 v[{44+8*ep}:{47+8*ep}], v252 offset:{ep*2048+1024}", tag='kvr')
        k.wait_lg('kvr')
        tl = [(ee, ep) for ee in range(2) for ep in range(2)]
        for i, (ee, ep) in enumerate(tl):
            pq = 128 + 8*ep + 4*ee; n = 176 + i*8
            e(f"{MF} v[{n}:{n+3}], v[{40+8*ep}:{43+8*ep}], v[{pq}:{pq+3}], 0")
            e(f"{MF} v[{n+4}:{n+7}], v[{44+8*ep}:{47+8*ep}], v[{pq}:{pq+3}], 0")
        for i in range(4): n = 176 + i*8; e(f"v_add_f32 v{n+4}, 0x358637bd, v{n+4}")
        for i in range(4): n = 176 + i*8; e(f"v_rcp_f32 v{n+4}, v{n+4}")
        for i in range(4):
            n = 176 + i*8
            e(f"v_pk_mul_f32 v[{n}:{n+1}], v[{n}:{n+1}], v[{n+4}:{n+5}] op_sel_hi:[1,0]\nv_pk_mul_f32 v[{n+2}:{n+3}], v[{n+2}:{n+3}], v[{n+4}:{n+5}] op_sel_hi:[1,0]")
        for i, (ee, ep) in enumerate(tl):
            n = 176 + i*8
            e(f"v_cvt_pk_bf16_f32 v{72+4*ee+2*ep}, v{n}, v{n+1}\nv_cvt_pk_bf16_f32 v{72+4*ee+2*ep+1}, v{n+2}, v{n+3}")
        self.pub([f"buffer_store_dwordx4 v[72:75], v253, {WS}, 0 offen",
                  f"buffer_store_dwordx4 v[76:79], v253, {WS}, {c16K} offen"], tag='os')
        self.flag('v254', 0, wait_tag='os')

    def phase_regs(self):
        e = self.e
        for ct in range(4): e(f"v_add_u32 v{56+ct}, 0x10000, v{14+ct}")
        self.fetch('tile', 'v60'); self.fetch('flag', 'v61'); self.fetch('fpoll', 'v62'); self.fetch('st_st', 'v63'); self.fetch('st_ld', 'v224')

    def unpack16(self, src, dst):
        for q in range(8):
            self.e(f"v_lshlrev_b32 v{dst+2*q}, 16, v{src+q}\nv_and_b32 v{dst+2*q+1}, 0xffff0000, v{src+q}")

    def a_reads(self, t, basereg, imm, tagp):
        buf = 128 + (t % 3)*16
        for ct in range(4):
            for h in range(2):
                self.e(f"ds_read_b64_tr_b16 v[{buf+4*ct+2*h}:{buf+4*ct+2*h+1}], v{basereg+ct} offset:{imm + h*2048}", tag=f'{tagp}{t}')

    def gemm64_pre(self, base, tagp):
        for t in range(3): self.a_reads(t, base, t*4096, tagp)

    def bload(self, t, btag, vaddr=None):
        va = 'v225' if vaddr is None else vaddr(t)
        self.e(f"buffer_load_dwordx4 v[{64+4*t}:{67+4*t}], {va}, {WS}, {CQ[t//4]} offen offset:{(t%4)*1024} sc1", tag=f'{btag}{t}')

    def gemm64_main(self, base, tagp, btag, first_zero=False, mid=None, late=(), pre_step=None, vaddr=None):
        k = self.k
        late = list(late)
        D = self.opt.get('bdepth', 6)
        for t in range(D): self.bload(t, btag, vaddr)
        if mid: mid()
        for t in range(16):
            k.wait_lg(f'{tagp}{t}')
            k.wait_vm(f'{btag}{t}')
            if self.opt.get('gstamp') and t in (0, 4, 8, 12): self.stamp(f'  {btag} t{t}')
            if pre_step: pre_step(t)
            buf = 128 + (t % 3)*16
            def mm():
                for ct in range(4):
                    self.mf(40+4*ct, f"v[{buf+4*ct}:{buf+4*ct+3}]", f"v[{64+4*t}:{67+4*t}]", first_zero and t == 0)
            rd = self.cap(self.a_reads, t+3, base, (t+3)*4096, tagp) if t + 3 < 16 else []
            bl = self.cap(self.bload, t+D, btag, vaddr) if t + D < 16 else []
            if t + D >= 16 and late:
                bl = late[:3]; late = late[3:]
            self.weave(self.cap(mm), (bl, 1), (rd, 2))
        self.k.L += late

    def row_stats(self):
        e = self.e
        e("v_pk_add_f32 v[180:181], v[40:41], v[42:43]\nv_pk_mul_f32 v[182:183], v[40:41], v[40:41]")
        e("v_pk_add_f32 v[184:185], v[44:45], v[46:47]\nv_pk_mul_f32 v[186:187], v[44:45], v[44:45]")
        e("v_pk_fma_f32 v[182:183], v[42:43], v[42:43], v[182:183]\nv_pk_fma_f32 v[186:187], v[46:47], v[46:47], v[186:187]")
        for q in range(4, 8, 2):
            e(f"v_pk_add_f32 v[180:181], v[180:181], v[{40+2*q}:{41+2*q}]\nv_pk_add_f32 v[184:185], v[184:185], v[{42+2*q}:{43+2*q}]")
            e(f"v_pk_fma_f32 v[182:183], v[{40+2*q}:{41+2*q}], v[{40+2*q}:{41+2*q}], v[182:183]\nv_pk_fma_f32 v[186:187], v[{42+2*q}:{43+2*q}], v[{42+2*q}:{43+2*q}], v[186:187]")
        e("v_pk_add_f32 v[180:181], v[180:181], v[184:185]\nv_pk_add_f32 v[182:183], v[182:183], v[186:187]")
        e("v_add_f32 v180, v180, v181\nv_add_f32 v181, v182, v183")
        self.allred([('v180','v181')], 'v_add_f32')

    def pack(self, dst):
        for q in range(8): self.e(f"v_cvt_pk_bf16_f32 v{dst+q}, v{40+2*q}, v{41+2*q}")
    def pub_tile(self, pk, tag):
        self.pub([f"buffer_store_dwordx4 v[{pk}:{pk+3}], v60, {WS}, 0 offen",
                  f"buffer_store_dwordx4 v[{pk+4}:{pk+7}], v60, {WS}, 0 offen offset:1024"], tag=tag)
    def pub_stats(self, off, tag):
        self.e("s_mov_b64 exec, 0xffff")
        self.pub([f"buffer_store_dwordx2 v[180:181], v63, {WS}, 0 offen offset:{off}"], tag=tag)
        self.e("s_mov_b64 exec, -1")
    def load_stats(self, off, tag):
        self.e(f"buffer_load_dwordx4 v[188:191], v224, {WS}, 0 offen offset:{off} sc1", tag=tag)

    def reduce_stats(self, tag, m, rs):
        e = self.e
        self.k.wait_vm(tag)
        e("v_pk_add_f32 v[188:189], v[188:189], v[190:191]")
        self.allred([('v188','v189')], 'v_add_f32')
        e(f"""v_mul_f32 v{m}, {sINV}, v188
v_mul_f32 v189, {sINV}, v189
v_fma_f32 v189, -v{m}, v{m}, v189
v_max_f32 v189, 0, v189
v_add_f32 v190, {sEPS}, v189
v_rsq_f32 v{rs}, v190""")

    def gelu_pairs(self, regs, T):
        e = self.e
        P = list(enumerate(regs))
        for i, y in P: e(f"v_pk_mul_f32 v[{T+2*i}:{T+2*i+1}], v[{y}:{y+1}], v[{y}:{y+1}]")
        for i, y in P: e(f"v_pk_fma_f32 v[{T+2*i}:{T+2*i+1}], v[{T+2*i}:{T+2*i+1}], s[80:81], s[80:81] op_sel:[0,1,0] op_sel_hi:[1,1,0]")
        for i, y in P: e(f"v_pk_mul_f32 v[{T+2*i}:{T+2*i+1}], v[{T+2*i}:{T+2*i+1}], v[{y}:{y+1}]")
        for i, y in P: e(f"v_exp_f32 v{T+2*i}, v{T+2*i}\nv_exp_f32 v{T+2*i+1}, v{T+2*i+1}")
        for i, y in P: e(f"v_pk_add_f32 v[{T+2*i}:{T+2*i+1}], v[{T+2*i}:{T+2*i+1}], s[94:95]")
        for i, y in P: e(f"v_rcp_f32 v{T+2*i}, v{T+2*i}\nv_rcp_f32 v{T+2*i+1}, v{T+2*i+1}")
        for i, y in P: e(f"v_pk_mul_f32 v[{y}:{y+1}], v[{y}:{y+1}], v[{T+2*i}:{T+2*i+1}]")

    def cs1(self):
        e = self.e; k = self.k
        SC1 = 128*1024
        e(f"s_lshl_b32 {sT0}, {sW}, 5\nv_xor_b32 v184, {sT0}, v56")
        def rd(t):
            tt = t % 8
            for h in range(2): e(f"ds_read_b64_tr_b16 v[{64+4*tt+2*h}:{64+4*tt+2*h+1}], v184 offset:{t*4096 + h*2048}", tag=f'c1_{t}')
        for t in range(7): rd(t)
        e(f"""s_lshl_b32 {sT0}, {sW}, 6
v_lshlrev_b32 v185, 4, v3
v_add_u32 v185, {SC1}, v185
v_add_u32 v186, {sT0}, v185""")
        for t in range(16):
            k.wait_lg(f'c1_{t}')
            self.mf(188, f"v[{64+4*(t%8)}:{67+4*(t%8)}]", "v[20:23]", t == 0)
            if t + 7 < 16: rd(t+7)
        e(f"s_mov_b64 exec, {sS0}")
        e("ds_write_b128 v186, v[188:191]", tag='c1w')
        e("s_mov_b64 exec, -1")
        k.wait_lg('c1w')
        e("s_barrier")
        for ct in range(4): e(f"ds_read_b128 v[{208+4*ct}:{211+4*ct}], v185 offset:{ct*64}", tag='c1r')

    def phase_wo(self):
        e = self.e; k = self.k; o = self.opt
        self.phase_regs()
        self.cs1()
        self.gemm64_pre(14, 'ao')
        k.wait_vm('resx')
        self.unpack16(240, 40)
        self.fetch('o_poll', 'v184'); self.fetch('b_o', 'v225')
        self.poll('v184', 'v185')
        self.stamp('o ready')
        self.gemm64_main(14, 'ao', 'bo', late=self.cap(self.dma_w3, 2))
        self.stamp('wo gemm')
        self.pack(232)
        self.pub_tile(232, 'hs')
        self.row_stats()
        self.pub_stats(0, 'hs2')
        self.flag('v61', 0, wait_tag='hs2')

    def phase_w1(self):
        e = self.e; k = self.k; o = self.opt
        e("s_barrier")
        self.dma_w64(SRD_W2, 0, 'w2', [0])
        self.gemm64_pre(56, 'a1')
        self.fetch('b_h', 'v225'); self.fetch('hh_st', 'v200'); self.fetch('hh_halo', 'v201'); self.fetch('hh_haloflag', 'v202')
        self.poll('v62', 'v185', 0)
        self.stamp('h ready')
        self.load_stats(0, 'sth')
        def mid():
            self.reduce_stats('sth', 230, 231)
            e(f"""v_mul_f32 v190, v231, v231
v_mul_f32 v190, v189, v190
v_add_f32 v190, {sEPS}, v190
v_rsq_f32 v190, v190
v_mul_f32 v228, v231, v190""")
        w2 = self.cap(self.dma_w64, SRD_W2, 0, 'w2', [1, 2, 3])
        nl = 22
        self.gemm64_main(56, 'a1', 'b1', first_zero=True, mid=mid, late=w2[:nl])
        self.stamp('w1 gemm')
        k.wait_lg('c1r')
        def epi():
            for q in range(8):
                e(f"v_pk_fma_f32 v[{40+2*q}:{41+2*q}], v[{208+2*q}:{209+2*q}], v[230:231], v[{40+2*q}:{41+2*q}] op_sel_hi:[1,0,1] neg_lo:[1,0,0] neg_hi:[1,0,0]")
            for q in range(8):
                e(f"v_pk_mul_f32 v[{40+2*q}:{41+2*q}], v[{40+2*q}:{41+2*q}], v[228:229] op_sel_hi:[1,0]")
            self.gelu_pairs([40+2*q for q in range(8)], 64)
            self.pack(192)
        e("s_barrier")
        self.mix(self.cap(epi), w2[nl:] + self.cap(self.dma_w3, 0), 2.2)
        self.pub([f"buffer_store_dwordx4 v[192:195], v200, {WS}, 0 offen",
                  f"buffer_store_dwordx4 v[196:199], v200, {WS}, 0 offen offset:1024"], tag='hhs')
        Lh = k.label('Lhalo')
        e(f"s_cmp_eq_u64 s[68:69], 0\n~s_cbranch_scc1 {Lh}")
        k.push()
        e(f"""s_mov_b64 exec, s[68:69]
buffer_store_dwordx4 v[192:195], v201, {WS}, 0 offen sc1
buffer_store_dwordx4 v[196:199], v201, {WS}, 0 offen offset:1024 sc1
s_mov_b64 exec, -1""", nocount=True)
        self.flag('v202', 0, force_sc1=True)
        k.pop()
        e(f"~{Lh}:")
        self.flag('v61', 32, wait_tag='hhs')

    def phase_w2(self):
        e = self.e; k = self.k; o = self.opt
        e("s_barrier")
        self.gemm64_pre(14, 'a2')
        self.unpack16(232, 40)
        e("v_mul_f32 v229, v230, v231")
        for q in range(8):
            e(f"v_pk_fma_f32 v[{40+2*q}:{41+2*q}], v[{40+2*q}:{41+2*q}], v[230:231], v[228:229] op_sel:[0,1,1] op_sel_hi:[1,1,1] neg_lo:[0,0,1] neg_hi:[0,0,1]")
        self.fetch('hh_poll', 'v185')
        for q in range(4): self.fetch(f'hh_ld{q}', f'v{244+q}')
        self.poll('v185', 'v186')
        self.stamp('hh ready')
        self.gemm64_main(14, 'a2', 'b2', late=self.cap(self.dma_w3, 1), vaddr=lambda t: f'v{244 + t//4}')
        self.stamp('w2 gemm')
        e("s_barrier")
        self.pack(192)
        self.pub_tile(192, 'x1s')
        self.row_stats()
        self.pub_stats(2048, 'x1s2')
        self.flag('v61', 64, wait_tag='x1s2')
        def hx():
            self.unpack16(232, 208)
            for q in range(8):
                e(f"v_pk_add_f32 v[{208+2*q}:{209+2*q}], v[{208+2*q}:{209+2*q}], v[{40+2*q}:{41+2*q}]")
            for q in range(16): e(f"v_accvgpr_write_b32 a{240+q}, v{208+q}")
        self.mix(self.cap(hx), self.cap(lambda: (self.dma_w3(3), self.dma_w3(4))), 1.3)

    def mlp_setup(self):
        e = self.e
        e(f"""v_lshrrev_b32 v18, 3, v0
v_and_b32 v5, 6, v18
v_and_b32 v6, 7, v0
v_xor_b32 v6, v6, v5
v_mul_u32_u24 v4, 2752, v18
v_lshl_add_u32 v4, v6, 4, v4
s_lshl_b32 {sT0}, {sF0}, 1
s_mul_i32 {sT1}, {sW}, {16*2752}
s_add_u32 {sT0}, {sT0}, {sT1}
v_add_u32 v4, {sT0}, v4
v_add_u32 v7, {8*2752-1024}, v4
v_cmp_gt_u32 vcc, {sFW}, v6
v_mov_b32 v12, {hex(OOB)}
v_cndmask_b32 v5, v12, v4, vcc
v_cndmask_b32 v12, v12, v7, vcc
s_lshl_b32 s98, {sW}, 12
s_lshl_b32 s99, {sRHO}, 14
s_add_u32 s99, s99, {X1B}
s_mul_i32 s19, {sI}, 11
s_add_u32 {sROT}, s19, {sW}""")

    W3A = [65536, 65536+24576, 131072, 16384, 40960, 65536, 65536+24576, 131072]
    X1A = [114688, 122880, 0, 8192, 114688, 122880, 0, 8192]
    def dma_w3(self, c):
        self.e(f"s_lshl_b32 s0, {sI}, 1\ns_add_u32 s0, s0, {c}\ns_and_b32 s0, s0, 7\ns_mul_i32 s1, s0, {64*2752}")
        for q in range(3):
            self.dmag(SRD_W3, ('s1', q*128) if q else 's1', (sM0W, self.W3A[c] + q*8192), [('v4', 0), ('v7', 1024)] if q < 2 else [('v5', 0), ('v12', 1024)], f'm{c}')
    def dma_x1(self, c):
        self.e(f"s_lshl_b32 s0, {sI}, 1\ns_add_u32 s0, s0, {c}\ns_and_b32 s0, s0, 7\ns_lshl_b32 s0, s0, 11\ns_add_u32 s0, s0, s99")
        self.dmag(SRD_WS, 's0', (sM0W, self.X1A[c]), [('v1', 0), ('v1', 1024)], f'm{c}', sc1=True)
    def dma_w4(self, n, slot0):
        self.e(f"s_add_u32 s0, {sROT}, {4*n}\ns_sub_u32 s1, s0, 43\ns_cmp_lt_u32 s0, 43\ns_cselect_b32 s0, s0, s1\ns_lshl_b32 s0, s0, 15")
        if n == 10: self.e(f"s_cmp_eq_u32 {sW}, 3\ns_cselect_b32 s0, {hex(OOB)}, s0")
        self.dmag(SRD_W4, 's0', ('s98', slot0*4096), self.W4V, f'w4_{n}')

    def w3_reads(self, c):
        def base(addr, regs): return regs[addr >> 16], addr & 0xffff
        par = c % 2
        for u in range(2):
            for rl in range(4):
                b = 40 + par*32 + u*16 + rl*4
                r, o = base(self.X1A[c] + (rl*2+u)*1024, ('v1', 'v110'))
                self.e(f"ds_read_b128 v[{b}:{b+3}], {r} offset:{o}", tag=f'mr{c}')
            for q in range(3):
                b = 192 + par*24 + u*12 + q*4
                for h in range(2):
                    r, o = base(self.W3A[c] + q*8192 + u*4096 + h*2048, ('v108', 'v109', 'v111'))
                    self.e(f"ds_read_b64_tr_b16 v[{b+2*h}:{b+2*h+1}], {r} offset:{o}", tag=f'mr{c}')
    def w3_mfma(self, c):
        par = c % 2
        for u in range(2):
            for q in range(3):
                wb = 192 + par*24 + u*12 + q*4
                for rl in range(4):
                    acc = 128 + (q*4+rl)*4; xbb = 40 + par*32 + u*16 + rl*4
                    self.mf(acc, f"v[{wb}:{wb+3}]", f"v[{xbb}:{xbb+3}]", c == 0 and u == 0)
                self.mf(176+4*q, f"v[{wb}:{wb+3}]", "v[20:23]", c == 0 and u == 0)

    def phase_w3(self):
        e = self.e; k = self.k; o = self.opt
        SC = 152*1024; XCH = 128*1024
        e("v_mov_b32 v112, v62\nv_mov_b32 v113, v61")
        e(f"s_lshl_b32 {sT0}, {sW}, 5\nv_xor_b32 v108, {sT0}, v14\nv_add_u32 v109, 0x10000, v108\nv_add_u32 v110, 0x10000, v1\nv_add_u32 v111, 0x20000, v108")
        e(f"""s_lshl_b32 {sT0}, {sW}, 7
v_lshlrev_b32 v104, 3, v2
v_add_u32 v104, {SC+1024}, v104
v_add_u32 v105, {sT0}, v104""")
        self.poll('v112', 'v185', 64)
        self.stamp('x1 ready')
        self.load_stats(2048, 'stx')
        for c in range(2): self.dma_x1(c)
        self.reduce_stats('stx', 106, 107)
        e("ds_write_b64 v105, v[106:107]", tag='s3w')
        k.wait_lg('s3w')
        k.wait_vm('m0'); e("s_barrier")
        for rl in range(4): e(f"ds_read_b64 v[{240+2*rl}:{241+2*rl}], v104 offset:{rl*128}", tag='s3r')
        self.w3_reads(0)
        for c in range(8):
            if c < 7:
                k.wait_vm(f'm{c+1}'); e("s_barrier")
            k.wait_lg(f'mr{c}')
            main = self.cap(self.w3_mfma, c)
            rd = self.cap(self.w3_reads, c+1) if c < 7 else []
            def dmf():
                if c == 0: self.dma_x1(2); self.dma_x1(3)
                if 1 <= c <= 3: self.dma_x1(c+3); self.dma_w3(c+4)
                if c == 4: self.dma_x1(7)
                if c == 5: self.prewarm_issue('pwB', 'v114')
            self.weave(main, (rd, 0.8), (self.cap(dmf), 0.9))
        self.stamp('w3 gemm')
        e("s_barrier")
        k.wait_lg('s3r')
        e(f"""s_lshr_b32 {sT0}, {sW}, 1
s_lshl_b32 {sT0}, {sT0}, 10
s_and_b32 {sT1}, {sW}, 1
s_lshl_b32 {sT1}, {sT1}, 3
s_add_u32 {sT0}, {sT0}, {sT1}
s_add_u32 {sT0}, {sT0}, {XCH}
v_add_u32 v104, {sT0}, v1
s_mul_i32 {sT0}, {sW}, 6144
s_add_u32 {sT0}, {sT0}, {XCH}
v_add_u32 v105, {sT0}, v1
s_lshr_b32 {sT0}, {sF0}, 5
s_add_u32 {sT0}, {sT0}, 43
s_sub_u32 {sT0}, {sT0}, s19""")
        for uu in range(6):
            e(f"s_add_u32 s{8+uu}, {sT0}, {uu}\ns_sub_u32 {sT1}, s{8+uu}, 43\ns_cmp_lt_u32 s{8+uu}, 43\ns_cselect_b32 s{8+uu}, s{8+uu}, {sT1}\ns_lshl_b32 s{8+uu}, s{8+uu}, 10")
        e(f"s_cmp_eq_u32 {sFW}, 8\ns_cselect_b32 s13, s13, {hex(OOB)}")
        self.fetch('hid_st', 'v106')
        def epi():
            for q in range(3):
                for rl in range(4):
                    acc = 128 + (q*4+rl)*4; cs = 176 + 4*q; m = 240 + 2*rl
                    for p in range(2):
                        e(f"v_pk_fma_f32 v[{acc+2*p}:{acc+2*p+1}], v[{cs+2*p}:{cs+2*p+1}], v[{m}:{m+1}], v[{acc+2*p}:{acc+2*p+1}] op_sel_hi:[1,0,1] neg_lo:[1,0,0] neg_hi:[1,0,0]")
                for rl in range(4):
                    acc = 128 + (q*4+rl)*4; m = 240 + 2*rl
                    for p in range(2):
                        e(f"v_pk_mul_f32 v[{acc+2*p}:{acc+2*p+1}], v[{acc+2*p}:{acc+2*p+1}], v[{m}:{m+1}] op_sel:[0,1] op_sel_hi:[1,1]")
                self.gelu_pairs([128 + q*16 + 2*i for i in range(8)], 40)
                for rl in range(4):
                    acc = 128 + (q*4+rl)*4
                    e(f"v_cvt_pk_bf16_f32 v{72+8*q+2*rl}, v{acc}, v{acc+1}\nv_cvt_pk_bf16_f32 v{73+8*q+2*rl}, v{acc+2}, v{acc+3}")
                for rl in range(4):
                    e(f"ds_write_b64 v104, v[{72+8*q+2*rl}:{73+8*q+2*rl}] offset:{(rl*6 + 2*q)*1024}", tag='hidw')
        n1 = o.get('w4_n1', 5)
        ep_l = self.cap(epi); dm_l = self.cap(lambda: [self.dma_w4(n, 4*n) for n in range(n1)])
        self.mix(ep_l, dm_l, len(ep_l)/len(dm_l)*0.9)
        k.wait_lg('hidw')
        e("s_barrier")
        self.stamp('gelu done')
        for uu in range(6): e(f"ds_read_b128 v[{40+4*uu}:{43+4*uu}], v105 offset:{uu*1024}", tag='hidr')
        k.wait_lg('hidr')
        lines = [f"buffer_store_dwordx4 v[{40+4*uu}:{43+4*uu}], v106, {WS}, s{8+uu} offen" for uu in range(6)]
        self.pub(lines, tag='hids')
        self.flag('v113', 96, wait_tag='hids')
        for n in range(n1, 8): self.dma_w4(n, 4*n)
        e("s_barrier")
        self.dma_w4(8, 32)

    def phase_w4(self):
        e = self.e; k = self.k
        for ct in range(4):
            e(f"v_mov_b32 v{176+ct}, v{14+ct}\nv_add_u32 v{180+ct}, 0x10000, v{14+ct}\nv_add_u32 v{184+ct}, 0x20000, v{14+ct}")
        self.fetch('hid_ld', 'v225'); self.fetch('out_st', 'v224')
        self.poll('v112', 'v189', 96)
        self.stamp('hid ready')
        e("s_barrier")
        NK = 43
        def slot(t): return t if t < 36 else t - 36
        def ard(t):
            ad = slot(t)*4096
            self.a_reads(t, 176 + 4*(ad >> 16), ad & 0xffff, 'a4')
        def bld(t):
            if t % 4 == 0: e(f"s_mov_b32 {sT5}, {t*1024}")
            b = 64 + 4*(t % 16)
            e(f"buffer_load_dwordx4 v[{b}:{b+3}], v225, {WS}, {sT5} offen offset:{(t%4)*1024} sc1", tag=f'b4{t}')
        D = self.opt.get('bdepth4', 6)
        for t in range(D): bld(t)
        for t in range(3): ard(t)
        for t in range(NK):
            if t == 8: e("s_barrier")
            if t == 31:
                k.wait_vm('w4_10'); e("s_barrier")
            k.wait_lg(f'a4{t}')
            k.wait_vm(f'b4{t}')
            buf = 128 + (t % 3)*16; b = 64 + 4*(t % 16)
            def mm():
                for ct in range(4):
                    self.mf(240+4*ct, f"v[{buf+4*ct}:{buf+4*ct+3}]", f"v[{b}:{b+3}]", ag=True)
            def side():
                if t + 3 < NK: ard(t+3)
            def side2():
                if t + D < NK: bld(t+D)
                if t == 8: self.dma_w4(9, 0)
                if t == 12: self.dma_w4(10, 4)
            self.weave(self.cap(mm), (self.cap(side2), 1), (self.cap(side), 2))
        self.stamp('w4 gemm')
        for q in range(16): e(f"v_accvgpr_read_b32 v{40+q}, a{240+q}")
        for q in range(8): e(f"v_cvt_pk_bf16_f32 v{56+q}, v{40+2*q}, v{41+2*q}")
        for pp in range(2):
            b = 56 + 4*pp
            e(f"v_permlane16_swap_b32 v{b}, v{b+2}\nv_permlane16_swap_b32 v{b+1}, v{b+3}")
        for pp in range(2):
            b = 56 + 4*pp
            e(f"buffer_store_dwordx4 v[{b}:{b+3}], v224, {srd(SRD_OUT)}, 0 offen offset:{pp*64}")

    def epoch_update(self):
        e = self.e
        e(f"""s_or_b32 {sT0}, s2, {sW}
s_cmp_eq_u32 {sT0}, 0
s_cselect_b32 {sT0}, {EPOCH}, {hex(OOB)}
s_mov_b64 exec, 1
buffer_store_dword v9, off, {WS}, {sT0} sc1
s_mov_b64 exec, -1""")

    def finish(self):
        e = self.e
        if self.debug:
            e(f"""s_lshl_b32 {sT0}, s2, 10
s_lshl_b32 {sT1}, {sW}, 8
s_add_u32 {sT0}, {sT0}, {sT1}
s_add_u32 {sT0}, {sT0}, {DBG}
s_memrealtime s[84:85]
s_waitcnt lgkmcnt(0)
s_sub_u32 s84, s84, s90
v_writelane_b32 v19, s84, 61
v_writelane_b32 v19, s90, 60
v_writelane_b32 v19, {sTO}, 62
v_writelane_b32 v19, {sFAST}, 63
v_lshlrev_b32 v18, 2, v0
buffer_store_dword v19, v18, {WS}, {sT0} offen""")
        if self.opt.get('dbgout'):
            e(f"""s_memtime s[66:67]
s_memrealtime s[62:63]
s_waitcnt lgkmcnt(0)
s_mov_b32 s12, s84
s_mov_b32 s13, s85
s_mov_b32 s14, 256
s_mov_b32 s15, 0x20000
s_sub_u32 s66, s66, s86
s_sub_u32 s62, s62, s90
v_mov_b32 v40, s66
v_mov_b32 v41, s62
s_and_b32 s64, s2, 7
s_lshl_b32 s64, s64, 3
s_lshr_b32 s65, s2, 3
s_or_b32 s65, s65, {sW}
s_cmp_eq_u32 s65, 0
s_cselect_b32 s64, s64, {hex(OOB)}
s_mov_b64 exec, 1
buffer_store_dwordx2 v[40:41], off, s[12:15], s64
s_mov_b64 exec, -1""")
        e("s_waitcnt vmcnt(0)")
        e("L_end:\ns_endpgm")
        for blk in self.ool: e(blk)

    def build(self):
        k = self.k; e = self.e
        self.prologue()
        self.stamp('prologue')
        k.raw('@PAGESTART')
        self.pass_k(); self.ids_check(); self.stamp('pass k')
        self.pass_v(); self.stamp('pass v')
        self.kv_publish(); self.stamp('kv1 pub')
        self.pass_q(); self.stamp('pass q')
        e("s_barrier")
        k.push(); self.reduce1a(); k.pop()
        self.stamp('reduce1')
        qf = self.cap(self.qfeat)
        cut = int(len(qf)*self.opt.get('qcut', 70)/100)
        k.L += qf[:cut]
        k.push(); self.reduce1b(); k.pop()
        k.L += qf[cut:]
        self.touches(list(range(4, 16)))
        self.setup_addr(1)
        self.mlp_setup()
        e(f"s_cmp_eq_u32 {sW}, 0\ns_cbranch_scc1 L_qd\ns_barrier")
        k.push()
        e(f"s_sub_u32 {sT0}, {sW}, 1\ns_mul_i32 {sT0}, {sT0}, 6\ns_lshl_b32 {sT1}, {sI}, 2\ns_add_u32 {sT0}, {sT0}, {sT1}")
        for n in range(6):
            if n == 4:
                e(f"s_cmp_eq_u32 {sW}, 3\n~s_cbranch_scc1 L_w1d")
            e(f"s_add_u32 s0, {sT0}, {n}\ns_and_b32 s0, s0, 15\ns_lshl_b32 s1, s0, 15\ns_lshl_b32 s0, s0, 12")
            self.dmag(SRD_W1, 's1', ('s0', 0x10000), self.W4V, 'w1')
        e("~L_w1d:")
        k.pop()
        e("L_qd:")
        self.setup_shift()
        self.stamp('qfeat')
        self.final_kv_and_o(); self.stamp('o pub')
        self.phase_wo(); self.epoch_update(); self.stamp('h pub')
        self.phase_w1(); self.stamp('hh pub')
        self.phase_w2(); self.stamp('x1 pub')
        self.phase_w3(); self.stamp('hid pub')
        self.phase_w4(); self.stamp('end')
        self.finish()
        body = k.finalize()
        lds = 160*1024
        hdr = open('cdna_kernels/' + NAME[:-7] + '.s.ref').read().split('\n')
        top = [l for l in hdr if l.startswith(';') and '@launch' not in l and 'Override' not in l and 'grid=ceil' not in l]
        txt = '\n'.join(top) + '\n'
        txt += f"; @launch grid=(256,1,1) block=(256,1,1) lds={lds}\n"
        txt += f""".amdgcn_target "amdgcn-amd-amdhsa--gfx950"
.text
.globl {NAME}
.p2align 8
.type {NAME},@function
{NAME}:
{body}
.section .rodata,"a"
.p2align 6
.amdhsa_kernel {NAME}
  .amdhsa_next_free_vgpr 512
  .amdhsa_next_free_sgpr 102
  .amdhsa_accum_offset 256
  .amdhsa_group_segment_fixed_size 0
  .amdhsa_kernarg_size 96
  .amdhsa_user_sgpr_count 2
  .amdhsa_user_sgpr_kernarg_segment_ptr 1
  .amdhsa_system_sgpr_workgroup_id_x 1
  .amdhsa_float_denorm_mode_32 3
.end_amdhsa_kernel
"""
        return txt

def generate(debug=True, opt=None):
    g = G(debug=debug, npages=0, opt=opt); g.build(); n = g.k.npages
    n2 = n if not (opt or {}).get('notouch') else 0
    g = G(debug=debug, npages=n2, opt=opt); txt = g.build()
    if g.k.npages != n:
        n = g.k.npages
        g = G(debug=debug, npages=n, opt=opt); txt = g.build()
    return txt, g

if __name__ == '__main__':
    debug = '--nodebug' not in sys.argv
    opt = {}
    for a in sys.argv[1:]:
        if '=' in a and not a.startswith('/'): kk, v = a.split('='); opt[kk.lstrip('-')] = int(v)
    txt, g = generate(debug, opt)
    out = sys.argv[1] if len(sys.argv) > 1 and not sys.argv[1].startswith('--') and '=' not in sys.argv[1] else 'k4.s'
    open(out, 'w').write(txt)
    open('stamps.txt', 'w').write('\n'.join(g.stamp_names))
    print('wrote', out, len(txt), 'bytes', txt.count('\n'), 'lines; pages', g.k.npages)
```

```python
import sys, struct, os
from asmgen import Kern, Ins

NAME = 'sequential_preLN__linear_kernel_hedgehog__mixer_s_mlp__prompt_kernel'
def f2u(x): return struct.unpack('<I', struct.pack('<f', x))[0]

EPOCH = 0
IDS   = 0x1000
F_KV2 = 0x2000
F_KV1 = 0x4000
F_HALO= 0x6000
FLG   = 0x8000
DBG   = 0x10000
KV1Z  = 0x60000
KV2K  = 0xA0000
KV2Z  = 0xE0000
ST    = 0x100000
HALO  = 0x180000
OB    = 0x200000
HHB   = 0x200000
HB    = 0x400000
X1B   = 0x400000
HIDB  = 0x600000
HIDS  = 44*1024
WS_BYTES = 0x10000000
OOB   = 0x40000000
INC   = 0x9E3779B0

SRD_X, SRD_WQKV, SRD_WPHI, SRD_WO, SRD_W1, SRD_W2, SRD_W3, SRD_W4, SRD_OUT, SRD_WS = [8+4*i for i in range(10)]
def srd(b): return f's[{b}:{b+3}]'
WS = srd(SRD_WS)
sX, sI, sJ, sR, sW, sA, sB, sT, sFAST, sTO, sXCC, sRHO = [f's{i}' for i in range(48, 60)]
sM0W = 's60'; sCNT = 's61'
sT0, sT1, sT2, sT3, sT4, sT5 = 's62','s63','s64','s65','s66','s67'
sMK1, sMK2, sMK3, sMKD = 's[68:69]','s[70:71]','s[72:73]','s[74:75]'
sS0 = 's[76:77]'; sLL = 's[78:79]'
sEPS = 's82'; sINV = 's83'; sTS = 's[84:85]'; sTS0 = 's86'; sF0 = 's87'; sFW = 's88'; sU0 = 's89'
sD = 's3'
sROT = 's89'
c4K, c8K, c12K, c16K = 's4', 's5', 's6', 's7'
CQ = ['0', c4K, c8K, c12K]
MF = 'v_mfma_f32_16x16x32_bf16'

STASH = ['kv1d','kv1z','kv1f','r_poll','r_kv','r_z','kv2d','kv2z','kv2f','k_poll','k_kv','k_z','o_st','o_fl','o_poll',
         'tile','flag','fpoll','st_st','st_ld','b_o','b_h','hh_st','hh_halo','hh_haloflag','hh_poll','hh_ld0','hh_ld1','hh_ld2','hh_ld3','hid_st','hid_ld','out_st','pwA','pwB','pwC','pf32','pfqkv','pf96','pf96b','selJ0','selJ1','o_st1']
AST = {n: 128+i for i, n in enumerate(STASH)}

class G:
    def __init__(self, debug=True, npages=0, opt=None):
        self.k = Kern(); self.k.paged = True
        self.debug = debug; self.npages = npages
        self.nstamp = 0; self.stamp_names = []
        self.opt = opt or {}
        self.ool = []

    def e(self, t, tag=None, nocount=False): self.k.e(t, tag, nocount)
    def cap(self, fn, *a, **kw):
        prev = self.k.capture(); fn(*a, **kw); return self.k.end_capture(prev)
    def stash(self, n, v): self.e(f"v_accvgpr_write_b32 a{AST[n]}, {v}")
    def fetch(self, n, v): self.e(f"v_accvgpr_read_b32 {v}, a{AST[n]}")

    def weave(self, main, *sides):
        k = self.k
        pos = [0]*len(sides); acc = [0.0]*len(sides)
        for ins in main:
            k.L.append(ins)
            if ins.kind == 'i' and ins.text.startswith('v_mfma'):
                for si, (lst, per) in enumerate(sides):
                    acc[si] += per
                    while acc[si] >= 1 and pos[si] < len(lst):
                        k.L.append(lst[pos[si]]); pos[si] += 1
                        if lst[pos[si]-1].kind == 'i': acc[si] -= 1
        for si, (lst, per) in enumerate(sides): k.L += lst[pos[si]:]

    def mix(self, a, b, ratio):
        k = self.k; pb = 0; cnt = 0.0
        for ins in a:
            k.L.append(ins)
            if ins.kind == 'i':
                cnt += 1
                while cnt >= ratio and pb < len(b):
                    k.L.append(b[pb]); pb += 1
                    if b[pb-1].kind == 'i': cnt -= ratio
        k.L += b[pb:]

    def stamp(self, name):
        if not self.debug: return
        n = self.nstamp; self.nstamp += 1; self.stamp_names.append(name)
        self.e(f"""s_memtime {sTS}
s_waitcnt lgkmcnt(0)
s_sub_u32 s84, s84, {sTS0}
v_writelane_b32 v19, s84, {n}""")

    def poll(self, vaddr, vtmp, off=0):
        k = self.k
        Lp = k.label('Lpoll'); Ld = k.label('Lpd')
        self.e(f"""s_movk_i32 {sCNT}, 1
s_cmp_lg_u32 {sTO}, 0
~s_cbranch_scc1 {Lp}
s_mov_b32 {sCNT}, 0x8000
~{Lp}:
buffer_load_dword {vtmp}, {vaddr}, {WS}, 0 offen offset:{off} sc1""", nocount=True)
        self.e(f"""s_waitcnt vmcnt(0)
v_cmp_ne_u32 vcc, {sT}, {vtmp}
~s_cbranch_vccz {Ld}
s_sub_u32 {sCNT}, {sCNT}, 1
s_cmp_lg_u32 {sCNT}, 0
~s_cbranch_scc1 {Lp}
s_mov_b32 {sTO}, 1
~{Ld}:""")

    def pub(self, lines, force_sc1=False, tag=None):
        k = self.k
        if force_sc1:
            for l in lines: self.e(l + ' sc1', tag=tag)
            return
        Ls = k.label('Lslow'); Ld = k.label('Lpub')
        self.e(f"s_cmp_eq_u32 {sFAST}, 0\n~s_cbranch_scc1 {Ls}")
        for l in lines: self.e(l, tag=tag)
        self.e(f"~s_branch {Ld}\n~{Ls}:")
        for l in lines: self.e(l + ' sc1', nocount=True)
        self.e(f"~{Ld}:")

    def flag(self, vaddr, offs, force_sc1=False, wait_tag=None):
        if wait_tag is None: self.e("s_waitcnt vmcnt(0)")
        else: self.k.wait_vm(wait_tag)
        if not isinstance(offs, list): offs = [offs]
        self.e("s_mov_b64 exec, 1")
        self.pub([f"buffer_store_dword v9, {vaddr}, {WS}, 0 offen offset:{o}" for o in offs], force_sc1)
        self.e("s_mov_b64 exec, -1")

    def allred(self, pairs, op):
        e = self.e
        for A, B in pairs: e(f"v_permlane32_swap_b32 {A}, {B}")
        for A, B in pairs: e(f"{op} {A}, {A}, {B}")
        for A, B in pairs: e(f"v_mov_b32 {B}, {A}")
        for A, B in pairs: e(f"v_permlane16_swap_b32 {A}, {B}")
        for A, B in pairs: e(f"{op} {A}, {A}, {B}")
        for A, B in pairs: e(f"v_mov_b32 {B}, {A}")
        for A, B in pairs: e(f"v_permlane32_swap_b32 {A}, {B}")

    def mf(self, acc, A, B, first=False, ag=False):
        r = 'a' if ag else 'v'
        self.e(f"{MF} {r}[{acc}:{acc+3}], {A}, {B}, " + ("0" if first else f"{r}[{acc}:{acc+3}]"))

    def dmag(self, srdb, soff, m0, loads, tag, sc1=False):
        self.e(f"s_add_u32 m0, {m0[0]}, {m0[1]}")
        if isinstance(soff, tuple):
            self.e(f"s_add_u32 {sD}, {soff[0]}, {soff[1]}"); so = sD
        else: so = soff
        for v, imm in loads:
            if self.opt.get('x_now') and srdb in (SRD_WO, SRD_W1, SRD_W2, SRD_W3, SRD_W4):
                self.e(f"buffer_load_dwordx4 {v}, {srd(srdb)}, {c16K} offen offset:{imm} lds", tag=tag) if self.opt['x_now'] == 2 else self.e("s_nop 0\nbuffer_load_dword a200, off, " + WS + ", 0", tag=tag)
                continue
            self.e(f"buffer_load_dwordx4 {v}, {srd(srdb)}, {so} offen offset:{imm}{' sc1' if sc1 else ''} lds", tag=tag)
    def rot_chunk(self, c):
        self.e(f"s_add_u32 s0, {sROT}, {c}\ns_and_b32 s0, s0, 7\ns_mul_i32 s1, s0, {64*3072}\ns_lshl_b32 s0, s0, 7")
    def dma_wqkv(self, c, part, ldsbase, tag, rot=True):
        if rot: self.rot_chunk(c)
        self.dmag(SRD_WQKV, ('s1', part*1024) if part else 's1', (sM0W, ldsbase), [('v6', 0), ('v7', 1024)], tag)
    def dma_k(self, c):
        self.rot_chunk(c)
        self.dmag(SRD_X, 's0', (sM0W, c*8192), [('v4', 0), ('v5', 1024)], f'k{c}')
        self.dma_wqkv(c, 1, 65536 + c*8192, f'k{c}', rot=False)
    W4V = [('v8', 0), ('v10', 1024), ('v11', 2048), ('v255', 3072)]
    def dma_w64(self, srdb, ldsbase, tag, groups):
        for g in groups:
            self.e(f"s_add_u32 s0, {sI}, {g}\ns_and_b32 s0, s0, 3\ns_lshl_b32 s1, s0, 15\ns_add_u32 s1, s1, s97\ns_lshl_b32 s0, s0, 12\ns_add_u32 s0, s0, s96")
            self.dmag(srdb, 's1', ('s0', ldsbase), self.W4V, tag)

    def dma_w64_3w(self, srdw, base, nm, ns):
        e = self.e
        e(f"s_lshl_b32 {sT1}, {sI}, 2\ns_add_u32 {sT0}, {sT1}, {sW}\ns_sub_u32 {sT0}, {sT0}, 1")
        for kk in ns:
            e(f"s_add_u32 s0, {sT0}, {3*kk}\ns_and_b32 s0, s0, 15\ns_lshl_b32 s1, s0, 15\ns_lshl_b32 s0, s0, 12")
            if kk == 5:
                L = self.k.label('Lw3s')
                e(f"s_cmp_lg_u32 {sW}, 1\n~s_cbranch_scc1 {L}")
            self.dmag(srdw, 's1', ('s0', base), self.W4V, nm)
            if kk == 5: e(f"~{L}:")

    def touches(self, pages):
        e = self.e; k = self.k
        if not self.npages: return
        pc = k.label('Lpc')
        e(f"s_getpc_b64 s[92:93]\n{pc}:")
        for w in range(4):
            mine = [p for p in pages[w::4] if p < self.npages]
            if not mine: continue
            L = k.label('Ltouch')
            e(f"s_cmp_eq_u32 {sW}, {w}\ns_cbranch_scc0 {L}")
            for p in mine:
                e(f"s_add_u32 s98, s92, Lpg_{p}-{pc}\ns_addc_u32 s99, s93, 0\ns_swappc_b64 s[100:101], s[98:99]")
            e(f"{L}:")

    PTRS = [(SRD_X,0,0x200000),(SRD_WQKV,8,0x180000),(SRD_WS,88,WS_BYTES),(SRD_WPHI,16,0x4000),(SRD_WO,24,0x80000),
            (SRD_W1,40,0x80000),(SRD_W2,48,0x80000),(SRD_W3,56,512*1376*2),(SRD_W4,64,1376*512*2),(SRD_OUT,72,0x200000)]

    def prologue(self):
        e = self.e; k = self.k; o = self.opt
        e(f"s_cmp_ge_u32 s2, 256\ns_cbranch_scc1 L_end")
        e(f"s_load_dwordx4 s[8:11], s[0:1], 0")
        if self.debug or o.get('dbgout'): e(f"s_memtime s[86:87]\ns_memrealtime s[90:91]")
        e(f"""
v_lshrrev_b32 v2, 6, v0
v_and_b32 v0, 63, v0
s_and_b32 {sX}, s2, 7
s_lshr_b32 {sT0}, s2, 3
v_readfirstlane_b32 {sW}, v2
s_and_b32 {sJ}, {sT0}, 7
s_lshr_b32 {sI}, {sT0}, 3
s_lshl_b32 {sR}, {sX}, 2
s_add_u32 {sR}, {sR}, {sI}
v_lshrrev_b32 v3, 4, v0
v_lshrrev_b32 v10, 3, v0
v_and_b32 v11, 7, v0
v_lshlrev_b32 v13, 10, v10
v_xor_b32 v14, v11, v3
v_mul_u32_u24 v15, 3072, v10
v_and_b32 v16, 2, v10
v_xor_b32 v16, v11, v16
s_lshl_b32 {sM0W}, {sW}, 11
s_lshl_b32 {sT0}, {sR}, 16
s_lshl_b32 {sT1}, {sW}, 14
s_add_u32 {sT0}, {sT0}, {sT1}
s_mul_i32 {sT2}, {sW}, {16*3072}
s_lshl_b32 {sT1}, {sJ}, 7
s_add_u32 {sT2}, {sT2}, {sT1}
v_add_u32 v13, {sT0}, v13
v_add_u32 v15, {sT2}, v15
v_lshl_add_u32 v4, v14, 4, v13
v_lshl_add_u32 v6, v16, 4, v15
v_xor_b32 v14, 4, v14
v_xor_b32 v16, 4, v16
v_lshl_add_u32 v5, v14, 4, v13
v_lshl_add_u32 v7, v16, 4, v15
v_add_u32 v5, 0x1c00, v5
v_add_u32 v7, {8*3072-1024}, v7
s_lshl_b32 {sROT}, {sI}, 1
s_add_u32 {sROT}, {sROT}, {sJ}
s_waitcnt lgkmcnt(0)
s_mov_b32 s12, s10
s_mov_b32 s13, s11
s_mov_b32 s{SRD_X+2}, 0x200000
s_mov_b32 s{SRD_X+3}, 0x20000
s_mov_b32 s{SRD_WQKV+2}, 0x180000
s_mov_b32 s{SRD_WQKV+3}, 0x20000
""")
        if o.get('prstamp'): self.stamp('  pr karg')
        for b,off,sz in self.PTRS[2:]: e(f"s_load_dwordx2 s[{b}:{b+1}], s[0:1], {off}")
        if o.get('dbgout'): e("s_load_dwordx2 s[84:85], s[0:1], 80")
        self.D1 = o.get('pk_depth', 4)
        def setups():
            if self.npages:
                e(f"""s_getpc_b64 s[92:93]
~L_cpc:
s_lshr_b32 {sT0}, s2, 3
s_lshl_b32 {sT0}, {sT0}, 2
s_add_u32 {sT0}, {sT0}, {sW}
s_lshl_b32 {sT0}, {sT0}, 9
v_and_b32 v18, 3, v0
v_lshlrev_b32 v18, 7, v18
v_add_u32 v18, {sT0}, v18
s_add_u32 s92, s92, Lpg_0-L_cpc
s_addc_u32 s93, s93, 0
v_min_u32 v18, {self.npages*4096 - 128}, v18
global_load_dword a200, v18, s[92:93]""", tag='cpf')
            e(f"""
v_and_b32 v2, 15, v0
s_lshr_b32 {sA}, {sW}, 1
s_and_b32 {sB}, {sW}, 1
v_lshlrev_b32 v1, 4, v0
s_lshl_b32 {sRHO}, {sR}, 2
s_add_u32 {sRHO}, {sRHO}, {sW}
s_mov_b32 {sTO}, 0
s_getreg_b32 {sXCC}, hwreg(HW_REG_XCC_ID, 0, 4)
s_lshl_b32 s96, {sW}, 14
s_lshl_b32 s97, {sW}, 17
s_movk_i32 {c4K}, 0x1000
s_movk_i32 {c8K}, 0x2000
s_movk_i32 {c12K}, 0x3000
s_movk_i32 {c16K}, 0x4000
v_lshrrev_b32 v13, 1, v2
v_xor_b32 v13, v13, v3
v_and_b32 v13, 7, v13
v_lshlrev_b32 v13, 4, v13
v_lshl_add_u32 v13, v2, 7, v13
s_lshl_b32 {sT0}, {sA}, 12
s_lshl_b32 {sT1}, {sB}, 11
s_add_u32 {sT0}, {sT0}, {sT1}
v_add_u32 v10, {sT0}, v13
v_xor_b32 v11, 64, v10
v_xor_b32 v248, 0x800, v10
v_xor_b32 v249, 0x800, v11
v_lshrrev_b32 v13, 2, v2
v_and_b32 v14, 2, v13
v_and_b32 v15, 1, v3
v_lshl_or_b32 v14, v15, 2, v14
v_bfe_u32 v15, v2, 1, 1
v_xor_b32 v14, v14, v15
v_lshlrev_b32 v14, 4, v14
v_and_b32 v15, 1, v2
v_lshl_add_u32 v14, v15, 3, v14
v_lshl_add_u32 v15, v3, 3, v13
v_lshl_add_u32 v16, v15, 7, v14
v_lshl_add_u32 v15, v3, 2, v13
v_lshl_add_u32 v17, v15, 7, v14
s_lshl_b32 {sT0}, {sB}, 6
v_xor_b32 v12, {sT0}, v16
v_xor_b32 v13, 32, v12
v_add_u32 v34, 0x10000, v12
v_add_u32 v35, 0x10000, v13
v_lshrrev_b32 v30, 2, v2
v_lshl_add_u32 v30, v3, 2, v30
v_lshlrev_b32 v30, 5, v30
v_and_b32 v31, 3, v2
v_lshl_add_u32 v30, v31, 3, v30
v_mov_b32 v14, v17
v_xor_b32 v15, 32, v17
v_xor_b32 v16, 64, v17
v_xor_b32 v17, 0x60, v17
v_mov_b32 v20, 0x3f803f80
v_mov_b32 v21, 0x3f803f80
v_mov_b32 v22, 0x3f803f80
v_mov_b32 v23, 0x3f803f80
""")
        st = self.cap(setups)
        d0 = self.cap(lambda: (self.dma_k(0), self.rot_chunk(1), self.dma_wqkv(1, 1, 65536 + 8192, 'k1w', rot=False)))
        k.L += d0
        k.L += st
        if o.get('prstamp'): self.stamp('  pr ess')
        e("s_waitcnt lgkmcnt(0)")
        for b,off,sz in self.PTRS[2:]: e(f"s_mov_b32 s{b+2}, {hex(sz)}\ns_mov_b32 s{b+3}, 0x20000")
        e(f"s_load_dword {sT}, s[{SRD_WS}:{SRD_WS+1}], {EPOCH}")
        self.setup_b()
        self.setup_addr(0)
        self.prewarm()
        if o.get('prstamp'): self.stamp('  pr setups')
        self.rot_chunk(1)
        self.dmag(SRD_X, 's0', (sM0W, 8192), [('v4', 0), ('v5', 1024)], 'k1')
        for c in range(2, self.D1): self.dma_k(c)
        e("s_waitcnt lgkmcnt(0)")
        self.setup_ids()

    def setup_ids(self):
        e = self.e
        L = 1.4426950408889634; c0 = -2.0*L*0.7978845608028654
        e(f"""
s_add_u32 {sT}, {sT}, {hex(INC)}
v_mov_b32 v9, {sT}
s_add_u32 {sT0}, {sT}, {sXCC}
v_mov_b32 v18, {sT0}
s_lshl_b32 {sT1}, {sX}, 7
s_lshl_b32 {sT2}, {sI}, 5
s_add_u32 {sT1}, {sT1}, {sT2}
s_lshl_b32 {sT2}, {sJ}, 2
s_add_u32 {sT1}, {sT1}, {sT2}
s_add_u32 {sT1}, {sT1}, {IDS}
s_cmp_lg_u32 {sW}, 0
s_cselect_b32 {sT1}, {hex(OOB)}, {sT1}
v_mov_b32 v36, {sT1}
v_mov_b32 v37, {hex(OOB)}
v_cmp_eq_u32 vcc, 0, v0
v_cndmask_b32 v36, v37, v36, vcc
buffer_store_dword v18, v36, {WS}, 0 offen sc1
s_mov_b32 s78, {hex(f2u(L))}
s_mov_b32 s79, {hex(f2u(-L))}
s_mov_b32 s80, {hex(f2u(c0))}
s_mov_b32 s81, {hex(f2u(c0*0.044715))}
s_mov_b32 {sEPS}, {hex(f2u(1e-5))}
s_mov_b32 {sINV}, {hex(f2u(1.0/512))}
s_mov_b32 s94, 1.0
s_mov_b32 s95, 1.0
""")

    def setup_b(self):
        e = self.e
        e(f"""
v_and_b32 v36, 3, v2
v_cmp_eq_u32 {sMK1}, 1, v36
v_cmp_eq_u32 {sMK2}, 2, v36
v_cmp_eq_u32 {sMK3}, 3, v36
v_lshrrev_b32 v37, 2, v2
v_cmp_eq_u32 {sMKD}, v37, v3
v_cmp_eq_u32 {sS0}, 0, v2
v_and_b32 v36, 1, v2
v_lshlrev_b32 v36, 4, v36
v_mov_b32 v37, 0x3f80
v_lshlrev_b32 v37, v36, v37
v_and_b32 v36, 2, v2
v_cmp_eq_u32 vcc, 0, v36
v_cndmask_b32 v38, 0, v37, vcc
v_cndmask_b32 v39, v37, 0, vcc
v_accvgpr_write_b32 a{AST['selJ0']}, v38
v_accvgpr_write_b32 a{AST['selJ1']}, v39
v_cndmask_b32 v37, 0, v37, {sMKD}
v_mov_b32 v24, 0
v_mov_b32 v25, 0
v_mov_b32 v28, 0
v_mov_b32 v29, 0
v_cndmask_b32 v26, 0, v37, vcc
v_cndmask_b32 v27, v37, 0, vcc
v_lshrrev_b32 v18, 3, v0
v_and_b32 v36, 6, v18
v_and_b32 v8, 7, v0
v_xor_b32 v8, v8, v36
v_lshlrev_b32 v8, 4, v8
v_lshl_add_u32 v8, v18, 10, v8
s_lshl_b32 {sT0}, {sJ}, 7
v_add_u32 v8, {sT0}, v8
""")

    def setup_addr(self, part):
        e0 = self.e
        if part == 0: R = {'v36':'v36','v37':'v37','v38':'v38','v39':'v39'}
        elif part == 2: R = {'v36':'v232','v37':'v233','v38':'v234','v39':'v235'}
        else: R = {'v36':'v248','v37':'v249','v38':'v250','v39':'v251'}
        def e(t):
            for a, b in R.items(): t = t.replace(a, b)
            e0(t)
        def st(n, v): self.stash(n, R[v])
        e(f"v_and_b32 v38, 7, v0\nv_lshlrev_b32 v38, 2, v38\nv_lshlrev_b32 v39, 4, v3")
        if part == 1: return self.setup_addr_late(e, st)
        if part == 2:
            e(f"""s_mul_i32 {sT2}, {sX}, {16*HIDS}
s_add_u32 {sT2}, {sT2}, {HIDB}
s_lshl_b32 {sT4}, {sX}, 5""")
            return self.setup_addr_red(e, st)
        e(f"""s_lshl_b32 {sT0}, {sJ}, 2
s_lshl_b32 {sT1}, {sB}, 1
s_add_u32 {sT0}, {sT0}, {sT1}
s_lshl_b32 {sT1}, {sI}, 1
s_add_u32 {sT1}, {sT1}, {sA}
s_mul_i32 {sT2}, {sX}, {16*HIDS}
s_add_u32 {sT2}, {sT2}, {HIDB}
s_lshl_b32 {sT3}, {sT0}, 13
s_add_u32 {sT3}, {sT3}, {sT2}
s_lshl_b32 {sT4}, {sT1}, 10
s_add_u32 {sT3}, {sT3}, {sT4}
v_add_u32 v36, {sT3}, v1""")
        st('kv1d', 'v36')
        e(f"""s_lshl_b32 {sT4}, {sX}, 5
s_add_u32 {sT0}, {sT0}, {sT4}
s_lshl_b32 {sT3}, {sT0}, 10
s_lshl_b32 {sT5}, {sT1}, 7
s_add_u32 {sT3}, {sT3}, {sT5}
s_add_u32 {sT3}, {sT3}, {KV1Z}
v_add_u32 v36, {sT3}, v39""")
        st('kv1z', 'v36')
        e(f"""s_lshl_b32 {sT3}, {sT0}, 5
s_lshl_b32 {sT1}, {sT1}, 2
s_add_u32 {sT3}, {sT3}, {sT1}
s_add_u32 {sT3}, {sT3}, {F_KV1}
v_mov_b32 v36, {sT3}""")
        st('kv1f', 'v36')
        if part == 0: return

    def setup_addr_red(self, e, st):
        e(f"""s_lshl_b32 {sT0}, {sJ}, 2
s_add_u32 {sT0}, {sT0}, {sI}
s_add_u32 {sT1}, {sT4}, {sT0}
s_lshl_b32 {sT3}, {sT1}, 5
s_add_u32 {sT3}, {sT3}, {F_KV1}
v_add_u32 v36, {sT3}, v38""")
        st('r_poll', 'v36')
        e(f"""s_lshl_b32 {sT3}, {sT0}, 13
s_add_u32 {sT3}, {sT3}, {sT2}
v_add_u32 v36, {sT3}, v1""")
        st('r_kv', 'v36')
        e(f"""v_lshrrev_b32 v37, 2, v0
v_lshlrev_b32 v37, 7, v37
v_and_b32 v36, 3, v0
v_lshl_add_u32 v37, v36, 4, v37
v_mov_b32 v36, {hex(OOB)}
v_cmp_gt_u32 vcc, 32, v0
v_cndmask_b32 v37, v36, v37, vcc
s_lshl_b32 {sT3}, {sT1}, 10
s_add_u32 {sT3}, {sT3}, {KV1Z}
v_add_u32 v36, {sT3}, v37""")
        st('r_z', 'v36')
        e(f"""s_lshl_b32 {sT1}, {sT0}, 3
s_add_u32 {sT1}, {sT1}, {sX}
s_lshl_b32 {sT3}, {sT1}, 10
s_add_u32 {sT3}, {sT3}, {KV2K}
v_add_u32 v36, {sT3}, v1""")
        st('kv2d', 'v36')
        e(f"""s_lshl_b32 {sT3}, {sT1}, 7
s_add_u32 {sT3}, {sT3}, {KV2Z}
v_add_u32 v36, {sT3}, v1""")
        st('kv2z', 'v36')
        e(f"""s_lshl_b32 {sT3}, {sT0}, 7
s_lshl_b32 {sT1}, {sX}, 2
s_add_u32 {sT3}, {sT3}, {sT1}
s_add_u32 {sT3}, {sT3}, {F_KV2}
v_mov_b32 v36, {sT3}""")
        st('kv2f', 'v36')
        e(f"""s_lshl_b32 {sT0}, {sJ}, 2
s_add_u32 {sT0}, {sT0}, {sW}
s_lshl_b32 {sT3}, {sT0}, 7
s_add_u32 {sT3}, {sT3}, {F_KV2}
v_add_u32 v36, {sT3}, v38""")
        st('k_poll', 'v36')
        e(f"""s_lshl_b32 {sT3}, {sT0}, 13
s_add_u32 {sT3}, {sT3}, {KV2K}
v_add_u32 v36, {sT3}, v1""")
        st('k_kv', 'v36')
        e(f"""s_lshl_b32 {sT3}, {sT0}, 10
s_add_u32 {sT3}, {sT3}, {KV2Z}
v_add_u32 v36, {sT3}, v37""")
        st('k_z', 'v36')

    def setup_addr_late(self, e, st):
        e(f"""s_lshl_b32 {sT0}, {sR}, 2
s_lshl_b32 {sT1}, {sA}, 1
s_add_u32 {sT0}, {sT0}, {sT1}
s_lshl_b32 {sT1}, {sJ}, 1
s_add_u32 {sT1}, {sT1}, {sB}
s_lshl_b32 {sT3}, {sT0}, 14
s_lshl_b32 {sT4}, {sT1}, 10
s_add_u32 {sT3}, {sT3}, {sT4}
s_add_u32 {sT3}, {sT3}, {OB}
s_lshl_b32 {sT4}, {sB}, 14
s_add_u32 {sT5}, {sT3}, {sT4}
v_add_u32 v36, {sT5}, v1""")
        st('o_st', 'v36')
        e(f"""s_xor_b32 {sT4}, {sT4}, 0x4000
s_add_u32 {sT5}, {sT3}, {sT4}
v_add_u32 v36, {sT5}, v1""")
        st('o_st1', 'v36')
        e(f"""s_lshl_b32 {sT3}, {sT0}, 8
s_add_u32 {sT3}, {sT3}, {FLG+128}
s_lshl_b32 {sT4}, {sT1}, 2
s_add_u32 {sT4}, {sT4}, {sT3}
v_mov_b32 v36, {sT4}""")
        st('o_fl', 'v36')
        e(f"v_lshlrev_b32 v36, 2, v2\nv_add_u32 v36, {sT3}, v36")
        st('o_poll', 'v36')
        e(f"""s_lshl_b32 {sT0}, {sRHO}, 14
s_lshl_b32 {sT1}, {sJ}, 11
s_add_u32 {sT3}, {sT0}, {sT1}
s_add_u32 {sT3}, {sT3}, {HB}
v_add_u32 v36, {sT3}, v1""")
        st('tile', 'v36')
        e(f"""s_lshl_b32 {sT2}, {sRHO}, 8
s_add_u32 {sT2}, {sT2}, {FLG}
s_lshl_b32 {sT3}, {sJ}, 2
s_add_u32 {sT3}, {sT3}, {sT2}
v_mov_b32 v36, {sT3}""")
        st('flag', 'v36')
        e(f"v_add_u32 v36, {sT2}, v38")
        st('fpoll', 'v36')
        e(f"""s_lshl_b32 {sT3}, {sRHO}, 12
s_add_u32 {sT3}, {sT3}, {ST}
v_lshlrev_b32 v37, 6, v2
v_add_u32 v37, {sT3}, v37
v_add_u32 v36, v39, v37""")
        st('st_ld', 'v36')
        e(f"s_lshl_b32 {sT3}, {sJ}, 3\nv_add_u32 v36, {sT3}, v37")
        st('st_st', 'v36')
        e(f"s_add_u32 {sT3}, {sT0}, {OB}\nv_add_u32 v36, {sT3}, v1")
        st('b_o', 'v36')
        e(f"s_add_u32 {sT3}, {sT0}, {HB}\nv_add_u32 v36, {sT3}, v1")
        st('b_h', 'v36')
        e(f"""s_mul_i32 {sT3}, {sRHO}, {HIDS}
s_add_u32 {sT3}, {sT3}, {HIDB}
v_add_u32 v36, {sT3}, v1""")
        st('hid_ld', 'v36')
        st('hid_st', 'v36')
        e(f"""s_lshl_b32 {sT0}, {sRHO}, 14
s_lshl_b32 {sT1}, {sJ}, 7
s_add_u32 {sT0}, {sT0}, {sT1}
v_and_b32 v36, 1, v3
v_lshlrev_b32 v36, 5, v36
v_lshrrev_b32 v37, 1, v3
v_lshl_add_u32 v36, v37, 4, v36
v_lshl_add_u32 v36, v2, 10, v36
v_add_u32 v36, {sT0}, v36""")
        st('out_st', 'v36')

    def setup_shift(self):
        e = self.e; st = self.stash
        e(f"""s_lshr_b32 {sT0}, {sJ}, 2
s_add_u32 {sT0}, {sT0}, 1
s_bitcmp1_b32 {sJ}, 1
s_cselect_b32 {sT1}, -1, 1
s_mul_i32 {sT0}, {sT0}, {sT1}
{'s_mov_b32 ' + sT0 + ', 0' if self.opt.get('x_noshift') else ''}
s_lshl_b32 {sT1}, {sRHO}, 4
s_add_u32 {sT1}, {sT1}, {sT0}
v_add_u32 v36, {sT1}, v2
v_lshrrev_b32 v37, 4, v36
v_lshlrev_b32 v37, 14, v37
v_and_b32 v38, 15, v36
v_lshl_add_u32 v38, v3, 4, v38
v_lshlrev_b32 v38, 4, v38
v_add_u32 v37, v37, v38
s_lshl_b32 {sT1}, {sJ}, 11
s_add_u32 {sT2}, {sT1}, {HHB}
v_add_u32 v37, {sT2}, v37
s_lshl_b32 {sT2}, {sX}, 8
v_subrev_u32 v36, {sT2}, v36
v_cmp_lt_u32 vcc, 0xff, v36
v_mov_b32 v36, {hex(OOB)}
v_cndmask_b32 v37, v37, v36, vcc
s_mov_b64 s[68:69], vcc""")
        st('hh_st', 'v37')
        e(f"""s_lshl_b32 {sT2}, {sX}, 1
s_add_u32 {sT3}, {sT2}, 2
s_sub_u32 {sT2}, {sT2}, 1
s_cmp_gt_i32 {sT0}, 0
s_cselect_b32 {sT2}, {sT3}, {sT2}
s_lshl_b32 {sT3}, {sT2}, 14
s_add_u32 {sT3}, {sT3}, {sT1}
s_add_u32 {sT3}, {sT3}, {HALO}
v_add_u32 v36, {sT3}, v38""")
        st('hh_halo', 'v36')
        e(f"""s_lshl_b32 {sT3}, {sT2}, 5
s_lshl_b32 {sT1}, {sJ}, 2
s_add_u32 {sT3}, {sT3}, {sT1}
s_add_u32 {sT3}, {sT3}, {F_HALO}
v_mov_b32 v36, {sT3}
s_cmp_lt_u32 {sT2}, 16
s_cselect_b64 s[68:69], s[68:69], 0""")
        st('hh_haloflag', 'v36')
        e(f"""s_lshl_b32 {sT0}, {sRHO}, 8
s_add_u32 {sT0}, {sT0}, {FLG+32}
v_and_b32 v38, 7, v0
v_lshlrev_b32 v38, 2, v38
v_add_u32 v39, {sT0}, v38
s_and_b32 {sT1}, {sRHO}, 15
s_sub_u32 {sT2}, {sT0}, 256
s_cmp_eq_u32 {sT1}, 0
s_cselect_b32 {sT2}, {sT0}, {sT2}
s_add_u32 {sT4}, {sT0}, 256
s_cmp_eq_u32 {sT1}, 15
s_cselect_b32 {sT4}, {sT0}, {sT4}
s_cselect_b32 s93, 1, 0
v_lshrrev_b32 v36, 3, v0
v_bfe_u32 v37, v0, 1, 1
v_lshl_or_b32 v36, v36, 1, v37
v_add_u32 v37, {sT2}, v38
v_cmp_eq_u32 vcc, 2, v36
v_cndmask_b32 v39, v39, v37, vcc
v_add_u32 v37, {sT4}, v38
v_cmp_eq_u32 vcc, 5, v36
v_cndmask_b32 v39, v39, v37, vcc""")
        st('hh_poll', 'v39')
        e(f"""s_lshl_b32 s70, {sX}, 6
s_add_u32 s70, s70, {F_HALO}
s_lshl_b32 {sT2}, s93, 5
s_add_u32 s70, s70, {sT2}
s_cmp_eq_u32 {sT1}, 0
s_cselect_b32 s71, 1, 0
s_cmp_eq_u32 {sT1}, 15
s_cselect_b32 s71, 2, s71
s_cmp_eq_u32 {sRHO}, 0
s_cselect_b32 s71, 0, s71
s_cmp_eq_u32 {sRHO}, 127
s_cselect_b32 s71, 0, s71
s_lshl_b32 {sT2}, {sX}, 15
s_add_u32 {sT2}, {sT2}, {HALO}
s_add_u32 {sT3}, {sT2}, 16384
s_cmp_eq_u32 {sRHO}, 0
s_cselect_b32 {sT2}, {hex(OOB)}, {sT2}
s_cmp_eq_u32 {sRHO}, 127
s_cselect_b32 {sT3}, {hex(OOB)}, {sT3}
s_lshl_b32 {sT0}, {sRHO}, 14
s_add_u32 {sT0}, {sT0}, {OB}
v_add_u32 v36, {sT0}, v1
v_add_u32 v37, {sT2}, v1
v_add_u32 v38, {sT3}, v1
s_cmp_eq_u32 {sT1}, 0
s_cselect_b32 {sT4}, 1, 0
s_mov_b32 {sT5}, s93""")
        for q, (mag, lo) in enumerate(((1, True), (1, False), (2, True), (2, False))):
            d = f'v{248+q}'
            if lo: e(f"s_mul_i32 {sT0}, {sT4}, {mag}\nv_cmp_gt_u32 vcc, {sT0}, v2\nv_cndmask_b32 {d}, v36, v37, vcc")
            else:  e(f"s_mul_i32 {sT0}, {sT5}, {mag}\ns_sub_u32 {sT0}, 15, {sT0}\nv_cmp_lt_u32 vcc, {sT0}, v2\nv_cndmask_b32 {d}, v36, v38, vcc")
            if q: e(f"v_add_u32 {d}, {q*4096}, {d}")
        e(f"s_cmp_eq_u32 s93, 1\ns_cselect_b64 s[72:73], -1, 0")
        for pg, (qh, ql) in enumerate(((0,1),(2,3),(1,0),(3,2))):
            e(f"v_cndmask_b32 v39, v{248+ql}, v{248+qh}, s[72:73]")
            st(f'hh_ld{pg}', 'v39')

    def prewarm(self):
        e = self.e
        e(f"""s_lshl_b32 {sT0}, {sRHO}, 14
s_lshl_b32 {sT1}, {sJ}, 11
s_add_u32 {sT0}, {sT0}, {sT1}
v_and_b32 v36, 15, v0
v_lshlrev_b32 v36, 7, v36                ; (l&15)*128
s_add_u32 {sT1}, {sT0}, {OB}
v_add_u32 v37, {sT1}, v36                ; lanes 0-15: O
s_add_u32 {sT1}, {sT0}, {HB}
v_add_u32 v38, {sT1}, v36                ; lanes 16-31: H
v_cmp_lt_u32 vcc, 15, v0
v_cndmask_b32 v37, v37, v38, vcc""")
        self.fetch('kv1d', 'v38')
        e(f"""v_and_b32 v39, 7, v0
v_lshlrev_b32 v39, 7, v39
v_readfirstlane_b32 {sT1}, v38
v_bfe_u32 v38, v0, 3, 1
v_lshlrev_b32 v38, 13, v38
v_add_u32 v39, v39, v38
v_add_u32 v39, {sT1}, v39
v_cmp_lt_u32 vcc, 31, v0
v_cndmask_b32 v37, v37, v39, vcc""")
        self.fetch('kv1z', 'v38')
        e(f"""v_and_b32 v39, 1, v0
v_readfirstlane_b32 {sT1}, v38
v_lshlrev_b32 v39, 10, v39
v_add_u32 v39, {sT1}, v39                ; z lines (+0,+1024)
s_lshl_b32 {sT2}, {sRHO}, 12
s_lshl_b32 {sT3}, {sJ}, 7
s_add_u32 {sT2}, {sT2}, {sT3}
s_add_u32 {sT2}, {sT2}, {ST}
v_and_b32 v38, 1, v0
v_lshlrev_b32 v38, 11, v38
v_add_u32 v38, {sT2}, v38
v_cmp_lt_u32 vcc, 55, v0
v_cndmask_b32 v39, v39, v38, vcc
v_cmp_lt_u32 vcc, 47, v0
v_cndmask_b32 v37, v37, v39, vcc
v_accvgpr_write_b32 a{AST['pwA']}, v37
s_mul_i32 {sT1}, {sRHO}, {HIDS}
s_mul_i32 {sT2}, {sJ}, 192
s_mul_i32 {sT3}, {sJ}, 160
s_add_u32 {sT3}, {sT3}, 96
s_cmp_lt_u32 {sJ}, 3
s_cselect_b32 {sF0}, {sT2}, {sT3}
s_cselect_b32 {sFW}, 8, 4
s_mul_i32 {sT2}, {sJ}, 6144
s_add_u32 {sT1}, {sT1}, {sT2}
s_add_u32 {sT1}, {sT1}, {HIDB}
v_min_u32 v38, 47, v0
v_lshlrev_b32 v38, 7, v38
v_add_u32 v38, {sT1}, v38
v_accvgpr_write_b32 a{AST['pwB']}, v38
s_lshl_b32 {sT0}, {sRHO}, 14
s_lshl_b32 {sT1}, {sJ}, 7
s_add_u32 {sT0}, {sT0}, {sT1}
v_lshlrev_b32 v36, 3, v36                ; (l&15)*1024
v_add_u32 v36, {sT0}, v36
v_accvgpr_write_b32 a{AST['pwC']}, v36
s_lshr_b32 {sT0}, s2, 3
s_lshl_b32 {sT0}, {sT0}, 2
s_add_u32 {sT0}, {sT0}, {sW}
s_lshl_b32 {sT1}, {sT0}, 5
v_and_b32 v36, 31, v0
v_add_u32 v36, {sT1}, v36
v_lshlrev_b32 v37, 7, v36
v_accvgpr_write_b32 a{AST['pf32']}, v37
v_lshrrev_b32 v37, 3, v36
v_mul_u32_u24 v37, 3072, v37
v_and_b32 v36, 7, v36
v_lshl_add_u32 v37, v36, 7, v37
v_accvgpr_write_b32 a{AST['pfqkv']}, v37
s_mul_i32 {sT1}, {sT0}, 96
v_add_u32 v36, {sT1}, v0
v_lshlrev_b32 v36, 7, v36
v_accvgpr_write_b32 a{AST['pf96']}, v36
v_and_b32 v37, 31, v0
v_add_u32 v37, {sT1}, v37
v_lshlrev_b32 v37, 7, v37
v_add_u32 v37, 0x2000, v37
v_accvgpr_write_b32 a{AST['pf96b']}, v37""")

    def pf(self, what, vt):
        e = self.e
        if not self.opt.get('pf'): return
        if what in ('wv', 'wq'):
            self.fetch('pfqkv', vt)
            e(f"s_movk_i32 {sD}, {2048 if what == 'wv' else 0}\nbuffer_load_dword a200, {vt}, {srd(SRD_WQKV)}, {sD} offen", tag='pf')
        elif what in ('wo', 'w1', 'w2'):
            self.fetch('pf32', vt)
            e(f"buffer_load_dword a200, {vt}, {srd({'wo': SRD_WO, 'w1': SRD_W1, 'w2': SRD_W2}[what])}, 0 offen", tag='pf')
        else:
            sr = srd(SRD_W3 if what[:2] == 'w3' else SRD_W4)
            self.fetch('pf96' if what[2] == 'a' else 'pf96b', vt)
            e(f"buffer_load_dword a200, {vt}, {sr}, 0 offen", tag='pf')

    def prewarm_issue(self, which, vt):
        self.fetch(which, vt)
        self.e(f"buffer_load_dword a200, {vt}, {WS}, 0 offen", tag='pw')

    def xa(self, ee, t): return f"a[{(ee*16+t)*4}:{(ee*16+t)*4+3}]"
    def wreads(self, c, off, tagp, withx=False):
        buf = 128 + (c % 2)*16
        for u in range(2):
            t = 2*c+u
            if withx:
                for ee in range(2):
                    self.e(f"ds_read_b128 {self.xa(ee,t)}, v{(10 if ee == 0 else 248)+u} offset:{c*8192}", tag=f'{tagp}{c}')
            for ep in range(2):
                wb = buf + (u*2+ep)*4
                for h in range(2):
                    self.e(f"ds_read_b64_tr_b16 v[{wb+2*h}:{wb+2*h+1}], v{34+ep} offset:{off + u*4096 + h*512}", tag=f'{tagp}{c}')
    def mfma_k(self, c):
        buf = 128 + (c % 2)*16
        for u in range(2):
            t = 2*c+u
            for ep in range(2):
                wb = buf + (u*2+ep)*4
                for ee in range(2): self.mf(40 + (ep*2+ee)*4, f"v[{wb}:{wb+3}]", self.xa(ee,t), t == 0)
                self.mf(56+ep*4, f"v[{wb}:{wb+3}]", "v[20:23]", t == 0)
            self.mf(64, "v[20:23]", self.xa(0,t), t == 0)
            self.mf(72, self.xa(0,t), self.xa(0,t), t == 0)
    def mfma_vq(self, c, which):
        buf = 128 + (c % 2)*16
        for u in range(2):
            t = 2*c+u
            for ep in range(2):
                wb = buf + (u*2+ep)*4
                for ee in range(2):
                    if which == 'v': self.mf(80 + (ee*2+ep)*4, self.xa(ee,t), f"v[{wb}:{wb+3}]", t == 0)
                    else: self.mf(104 + (ep*2+ee)*4, f"v[{wb}:{wb+3}]", self.xa(ee,t), t == 0)
                if which == 'v': self.mf(96+ep*4, "v[20:23]", f"v[{wb}:{wb+3}]", t == 0)
                else: self.mf(120+ep*4, f"v[{wb}:{wb+3}]", "v[20:23]", t == 0)

    def ids_issue(self):
        self.e(f"""s_lshl_b32 s92, {sX}, 7
s_add_u32 s92, s92, {IDS}
v_and_b32 v250, 31, v0
v_lshlrev_b32 v250, 2, v250
v_add_u32 v250, s92, v250""")
        self.e(f"buffer_load_dword v251, v250, {WS}, 0 offen sc1", tag='ids')
    def ids_check(self):
        e = self.e; k = self.k
        Lp = k.label('Lid'); Ld = k.label('Lidd')
        k.wait_vm('ids')
        e(f"""s_mov_b32 {sCNT}, 0x8000
~{Lp}:
v_subrev_u32 v252, {sT}, v251
v_cmp_lt_u32 vcc, 7, v252
~s_cbranch_vccz {Ld}""")
        k.push()
        e(f"buffer_load_dword v251, v250, {WS}, 0 offen sc1", nocount=True)
        e(f"""s_waitcnt vmcnt(0)
s_sub_u32 {sCNT}, {sCNT}, 1
s_cmp_lg_u32 {sCNT}, 0
~s_cbranch_scc1 {Lp}
s_mov_b32 {sTO}, 1""")
        k.pop()
        e(f"""~{Ld}:
v_cmp_ne_u32 vcc, {sXCC}, v252
s_cmp_eq_u64 vcc, 0
s_cselect_b32 {sFAST}, {0 if self.opt.get('forceslow') else 1}, 0""")

    def pass_k(self):
        e = self.e; k = self.k; D = self.D1
        q = [('k', c) for c in range(D, 8)] + [('v', c) for c in range(6)]
        def issue(item):
            kind, c = item
            if kind == 'k':
                self.dma_k(c)
            else:
                self.dma_wqkv(c, 2, (131072 + c*8192) if c < 4 else (c-4)*8192, f'v{c}')
        sides = {}
        k.wait_vm('k0'); e("s_barrier")
        self.wreads(0, 0, 'kr', withx=True)
        qi = 0
        for c in range(8):
            if c in (0, 2, 4): k.wait_vm(f'k{c+2}'); e("s_barrier")
            if c == 6: k.wait_vm('k7'); e("s_barrier")
            k.wait_lg(f'kr{c}')
            if self.opt.get('pkstamp') and c in (0, 2, 4, 6): self.stamp(f'  pk c{c}')
            main = self.cap(self.mfma_k, c)
            rd = self.cap(self.wreads, c+1, (c+1)*8192, 'kr', True) if c < 7 else []
            items = []
            while qi < len(q) and len(items) < 4:
                kind, cc = q[qi]
                cost = 4 if kind == 'k' else 2
                if sum(4 if a == 'k' else 2 for a, _ in items) + cost > 4: break
                items.append(q[qi]); qi += 1
            dm = self.cap(lambda: [issue(it) for it in items])
            if self.opt.get('x_pk') == 1: dm = [x for x in dm if not x.text.startswith('buffer_load')] + [x for x in dm if x.text.startswith('buffer_load')][:0] + self.cap(lambda: [self.e("s_nop 0\nbuffer_load_dword a200, off, " + WS + ", 0", tag=f'{kk}{cc}') for kk, cc in items])
            if self.opt.get('x_pk') == 2: main = main[:4]
            if c == 3: dm = self.cap(self.ids_issue) + dm
            sd = []
            if c == 7:
                def wp():
                    e(f"s_lshl_b32 {sT0}, {sJ}, 2\ns_lshl_b32 {sT1}, {sB}, 1\ns_add_u32 {sT0}, {sT0}, {sT1}\ns_lshl_b32 {sT0}, {sT0}, 9\ns_lshl_b32 {sT1}, {sW}, 10")
                    self.dmag(SRD_WPHI, sT0, (sT1, 5*8192), [('v1', 0)], 'wphi')
                    e(f"v_add_u32 v30, {sT1}, v30")
                sd = self.cap(wp)
            self.weave(main, (dm, 1), (rd, 0.7), (sd, 1.5))
        assert qi == len(q), (qi, len(q))

    def stats1(self):
        e = self.e
        ST1 = 4*8192
        e(f"""v_cndmask_b32 v160, v72, v73, {sMK1}
v_cndmask_b32 v160, v160, v74, {sMK2}
v_cndmask_b32 v160, v160, v75, {sMK3}
v_cndmask_b32 v160, 0, v160, {sMKD}
v_mul_f32 v36, {sINV}, v64
v_mov_b32 v161, v160""")
        self.allred([('v160','v161')], 'v_add_f32')
        e(f"""v_mul_f32 v160, {sINV}, v160
v_fma_f32 v160, -v36, v36, v160
v_max_f32 v160, 0, v160
v_add_f32 v160, {sEPS}, v160
v_rsq_f32 v38, v160
s_lshl_b32 {sT0}, {sA}, 7
s_lshl_b32 {sT1}, {sB}, 6
s_add_u32 {sT0}, {sT0}, {sT1}
v_lshlrev_b32 v253, 2, v2
v_add_u32 v253, {sT0}, v253
v_lshlrev_b32 v254, 4, v3
v_add_u32 v254, {sT0}, v254
v_xor_b32 v251, 64, v253
v_xor_b32 v252, 64, v254""")
        e(f"ds_write_b32 v253, v36 offset:{ST1}", tag='st1w')
        e(f"ds_write_b32 v253, v38 offset:{ST1 + 256}", tag='st1w')
    def stats1b(self):
        ST1 = 4*8192
        self.e(f"ds_read_b32 v37, v251 offset:{ST1}", tag='st1p')
        self.e(f"ds_read_b32 v39, v251 offset:{ST1 + 256}", tag='st1p')
        self.k.wait_lg('st1p')

    def features(self, tiles, T):
        e = self.e
        n = len(tiles)
        def each(fn):
            for i, tl in enumerate(tiles): fn(T + 16*i, *tl)
        def sel(r): return f"v[{r&~1}:{(r&~1)+1}]", r & 1
        def s1(t, acc, cs, m, rs, wp, out):
            mp, ms = sel(m)
            for p in range(2):
                e(f"v_pk_fma_f32 v[{t+2*p}:{t+2*p+1}], v[{cs+2*p}:{cs+2*p+1}], {mp}, v[{acc+2*p}:{acc+2*p+1}] op_sel:[0,{ms},0] op_sel_hi:[1,{ms},1] neg_lo:[1,0,0] neg_hi:[1,0,0]")
        def s2(t, acc, cs, m, rs, wp, out):
            rp, rsl = sel(rs)
            for p in range(2):
                e(f"v_pk_mul_f32 v[{t+2*p}:{t+2*p+1}], v[{t+2*p}:{t+2*p+1}], {rp} op_sel:[0,{rsl}] op_sel_hi:[1,{rsl}]")
        each(s1); each(s2)
        each(lambda t,*a: e(f"v_cvt_pk_bf16_f32 v{t+4}, v{t}, v{t+1}\nv_cvt_pk_bf16_f32 v{t+5}, v{t+2}, v{t+3}"))
        each(lambda t,acc,cs,m,rs,wp,out: e(f"v_mfma_f32_16x16x16_bf16 v[{t}:{t+3}], v[{wp}:{wp+1}], v[{t+4}:{t+5}], 0"))
        each(lambda t,*a: e(f"v_max3_f32 v{t+4}, v{t}, v{t+1}, v{t+2}\nv_max3_f32 v{t+5}, -v{t}, -v{t+1}, -v{t+2}"))
        each(lambda t,*a: e(f"v_max_f32 v{t+4}, v{t+4}, v{t+3}\nv_max_f32_e64 v{t+5}, v{t+5}, -v{t+3}"))
        self.allred([(f'v{T+16*i+4}', f'v{T+16*i+5}') for i in range(n)], 'v_max_f32')
        each(lambda t,*a: e(f"v_pk_mul_f32 v[{t+4}:{t+5}], v[{t+4}:{t+5}], {sLL} op_sel_hi:[1,0]"))
        for r in range(4):
            each(lambda t,*a: e(f"v_pk_fma_f32 v[{t+8+2*r}:{t+9+2*r}], v[{t+(r&~1)}:{t+(r&~1)+1}], {sLL}, v[{t+4}:{t+5}] op_sel:[{r&1},0,0] op_sel_hi:[{r&1},1,1] neg_lo:[0,0,1] neg_hi:[0,0,1]"))
        for i8 in range(8): each(lambda t,*a: e(f"v_exp_f32 v{t+8+i8}, v{t+8+i8}"))
        each(lambda t,*a: e(f"v_pk_add_f32 v[{t}:{t+1}], v[{t+8}:{t+9}], v[{t+10}:{t+11}]\nv_pk_add_f32 v[{t+2}:{t+3}], v[{t+12}:{t+13}], v[{t+14}:{t+15}]"))
        each(lambda t,*a: e(f"v_pk_add_f32 v[{t}:{t+1}], v[{t}:{t+1}], v[{t+2}:{t+3}]"))
        self.allred([(f'v{T+16*i}', f'v{T+16*i+1}') for i in range(n)], 'v_add_f32')
        each(lambda t,*a: e(f"v_rcp_f32 v{t}, v{t}\nv_rcp_f32 v{t+1}, v{t+1}"))
        for r in range(4):
            each(lambda t,*a: e(f"v_pk_mul_f32 v[{t+8+2*r}:{t+9+2*r}], v[{t+8+2*r}:{t+9+2*r}], v[{t}:{t+1}]"))
        each(lambda t,acc,cs,m,rs,wp,out: e(f"""v_cvt_pk_bf16_f32 v{out}, v{t+8}, v{t+10}
v_cvt_pk_bf16_f32 v{out+1}, v{t+12}, v{t+14}
v_cvt_pk_bf16_f32 v{out+2}, v{t+9}, v{t+11}
v_cvt_pk_bf16_f32 v{out+3}, v{t+13}, v{t+15}"""))

    def ksideA(self):
        e = self.e; k = self.k
        self.stats1()
        k.wait_vm('wphi')
        e(f"ds_read_b64_tr_b16 v[32:33], v30 offset:{5*8192+512}", tag='wpr')
        e(f"ds_read_b64_tr_b16 v[30:31], v30 offset:{5*8192}", tag='wpr')
        k.wait_lg('wpr')
    def ksideB(self):
        e = self.e; k = self.k
        self.stats1b()
        tiles = [(40 + (ep*2+ee)*4, 56 + ep*4, 36+ee, 38+ee, 30+2*ep, 224 + (ep*2+ee)*4) for ep in range(2) for ee in range(2)]
        self.features(tiles, 160)
        for i in range(4):
            for sg in range(2):
                o = 224 + 4*i + 2*sg
                e(f"v_mfma_f32_16x16x16_bf16 v[{160+8*i+4*sg}:{163+8*i+4*sg}], v[{o}:{o+1}], v[26:27], 0")
        for ep in range(2):
            for ee in range(2):
                i = ep*2+ee
                for sg in range(2):
                    d = 192 + 8*ep + 4*sg + 2*ee; s = 160 + 8*i + 4*sg
                    e(f"v_cvt_pk_bf16_f32 v{d}, v{s}, v{s+1}\nv_cvt_pk_bf16_f32 v{d+1}, v{s+2}, v{s+3}")
        self.fetch('kv1d', 'v248'); self.fetch('kv1z', 'v249'); self.fetch('kv1f', 'v250')

    def pass_v(self):
        e = self.e; k = self.k
        sideA = self.cap(self.ksideA); side = self.cap(self.ksideB)
        e("v_add_u32 v34, 0x20000, v12\nv_add_u32 v35, 0x20000, v13")
        k.wait_vm('v1'); e("s_barrier")
        self.wreads(0, 0, 'vr')
        chunk = (len(side) + 6)//7
        q0 = self.opt.get('q0', 4)
        for c in range(8):
            if c in (1, 3, 5):
                k.wait_vm(f'v{c+2}'); e("s_barrier")
            k.wait_lg(f'vr{c}')
            if c == 3: e("v_mov_b32 v34, v12\nv_mov_b32 v35, v13")
            main = self.cap(self.mfma_vq, c, 'v')
            if c < 7:
                off = (c+1)*8192 if c+1 < 4 else (c+1-4)*8192
                rd = self.cap(self.wreads, c+1, off, 'vr')
            else: rd = []
            def dm():
                if c == 0:
                    for cc in (6, 7): self.dma_wqkv(cc, 2, (cc-4)*8192, f'v{cc}')
                    self.prewarm_issue('pwA', 'v236')
                if q0 <= c < q0 + 4:
                    for cc in (2*(c-q0), 2*(c-q0)+1): self.dma_wqkv(cc, 0, 65536 + cc*8192, f'q{cc}')
                if c == self.opt.get('pf2_at', 5): self.pf('wo', 'v236'); self.pf('w1', 'v237')
            sd = sideA if c == 0 else side[(c-1)*chunk:c*chunk]
            self.weave(main, (rd, 0.7), (self.cap(dm), 1.0), (sd, len(sd)/12.0))

    def kv_publish(self):
        e = self.e; k = self.k
        ST1 = 4*8192
        for ee in range(2):
            e(f"ds_read_b128 v[{128+8*ee}:{131+8*ee}], {'v254' if ee == 0 else 'v252'} offset:{ST1}", tag='st1r')
            e(f"ds_read_b128 v[{132+8*ee}:{135+8*ee}], {'v254' if ee == 0 else 'v252'} offset:{ST1 + 256}", tag='st1r')
        k.wait_lg('st1r')
        T = 160
        tl = [(ee, ep) for ee in range(2) for ep in range(2)]
        for i, (ee, ep) in enumerate(tl):
            M = 128 + 8*ee; acc = 80 + (ee*2+ep)*4; cs = 96 + ep*4; t = T + 4*i
            for p in range(2):
                e(f"v_pk_fma_f32 v[{t+2*p}:{t+2*p+1}], v[{M+2*p}:{M+2*p+1}], v[{cs}:{cs+1}], v[{acc+2*p}:{acc+2*p+1}] op_sel_hi:[1,0,1] neg_lo:[1,0,0] neg_hi:[1,0,0]")
        for i, (ee, ep) in enumerate(tl):
            RS = 132 + 8*ee; t = T + 4*i
            for p in range(2):
                e(f"v_pk_mul_f32 v[{t+2*p}:{t+2*p+1}], v[{t+2*p}:{t+2*p+1}], v[{RS+2*p}:{RS+2*p+1}]")
        for i, (ee, ep) in enumerate(tl):
            t = T + 4*i; d = 208 + 4*ep + 2*ee
            e(f"v_cvt_pk_bf16_f32 v{d}, v{t}, v{t+1}\nv_cvt_pk_bf16_f32 v{d+1}, v{t+2}, v{t+3}")
        for ep in range(2):
            for sg in range(2):
                pa = 192 + 8*ep + 4*sg
                e(f"{MF} v[{40+8*ep+4*sg}:{43+8*ep+4*sg}], v[{pa}:{pa+3}], v[{208+4*ep}:{211+4*ep}], 0")
        for ep in range(2):
            for sg in range(2):
                pa = 192 + 8*ep + 4*sg
                e(f"{MF} v[{56+8*ep+4*sg}:{59+8*ep+4*sg}], v[{pa}:{pa+3}], v[20:23], 0")
        for ep in range(2):
            for q in range(4): e(f"v_cvt_pk_bf16_f32 v{72+8*ep+q}, v{40+8*ep+2*q}, v{41+8*ep+2*q}")
        self.pub([f"buffer_store_dwordx4 v[72:75], v248, {WS}, 0 offen",
                  f"buffer_store_dwordx4 v[80:83], v248, {WS}, {c8K} offen"], tag='kv1s')
        for ep in range(2):
            for q in range(4): e(f"v_cvt_pk_bf16_f32 v{76+8*ep+q}, v{56+8*ep+2*q}, v{57+8*ep+2*q}")
        e(f"s_mov_b64 exec, {sS0}")
        self.pub([f"buffer_store_dwordx4 v[76:79], v249, {WS}, 0 offen",
                  f"buffer_store_dwordx4 v[84:87], v249, {WS}, 0 offen offset:1024"], tag='kv1s')
        e("s_mov_b64 exec, -1")
        e("v_add_u32 v34, 0x10000, v12\nv_add_u32 v35, 0x10000, v13")
        self.flag('v250', [0, 32], wait_tag='kv1s')

    def pass_q(self):
        e = self.e; k = self.k
        e("v_add_u32 v10, 7168, v8\nv_add_u32 v11, 14336, v8\nv_add_u32 v255, 21504, v8")
        k.wait_vm('q7'); e("s_barrier")
        self.wreads(0, 0, 'qr')
        sa = self.cap(self.setup_addr, 2); na = (len(sa) + 3)//4
        def rx():
            e(f"s_lshl_b32 {sT2}, {sRHO}, 14\ns_lshl_b32 {sT1}, {sJ}, 7\ns_add_u32 {sT2}, {sT2}, {sT1}\nv_lshlrev_b32 v236, 10, v2\nv_lshl_add_u32 v236, v3, 3, v236")
            for ct in range(4):
                e(f"buffer_load_dwordx2 v[{240+2*ct}:{241+2*ct}], v236, {srd(SRD_X)}, {sT2} offen offset:{ct*32}", tag='resx')
        cmid = self.opt.get('red_at', 4)
        for c in range(8):
            if c == cmid:
                k.push(); self.reduce1a(); k.pop()
                self.stamp('reduce1')
            k.wait_lg(f'qr{c}')
            main = self.cap(self.mfma_vq, c, 'q')
            rd = self.cap(self.wreads, c+1, (c+1)*8192, 'qr') if c < 7 else []
            sd = []
            if c < 4: sd = sa[c*na:(c+1)*na]
            if c == 3: sd = sd + self.cap(lambda: (self.fetch('r_poll', 'v248'), self.fetch('r_kv', 'v249'), self.fetch('r_z', 'v250')))
            if c == 7: sd = self.cap(rx)
            self.weave(main, (rd, 0.7), (sd, max(0.5, len(sd)/11)))

    def sum8(self, vkv, vz, tagp, after_loads=None):
        e = self.e; k = self.k
        e(f"buffer_load_dwordx4 v[208:211], {vz}, {WS}, 0 offen sc1", tag=f'{tagp}z')
        for x in range(8):
            e(f"buffer_load_dwordx4 v[{176+4*x}:{179+4*x}], {vkv}, {WS}, {CQ[x>>2]} offen offset:{(x&3)*1024} sc1", tag=f'{tagp}{x}')
        self.fetch('selJ0', 'v214'); self.fetch('selJ1', 'v215')
        for r in (212, 213, 216, 217): e(f"v_mov_b32 v{r}, 0")
        k.wait_vm(f'{tagp}z')
        self.mf(48, "v[214:217]", "v[208:211]", True)
        self.mf(52, "v[212:215]", "v[208:211]", True)
        for x in range(8):
            k.wait_vm(f'{tagp}{x}')
            if x == 7 and after_loads: after_loads()
            self.mf(40, "v[26:29]", f"v[{176+4*x}:{179+4*x}]", x == 0)
            self.mf(44, "v[24:27]", f"v[{176+4*x}:{179+4*x}]", x == 0)
            if x == 1:
                for q in range(8): e(f"v_add_f32_dpp v{48+q}, v{48+q}, v{48+q} row_ror:4 row_mask:0xf bank_mask:0xf")
            if x == 3:
                for q in range(8): e(f"v_add_f32_dpp v{48+q}, v{48+q}, v{48+q} row_ror:8 row_mask:0xf bank_mask:0xf")
            if x == 5:
                for q in range(4): e(f"v_cvt_pk_bf16_f32 v{60+q}, v{48+2*q}, v{49+2*q}")
        for q in range(4): e(f"v_cvt_pk_bf16_f32 v{56+q}, v{40+2*q}, v{41+2*q}")

    def reduce1a(self):
        e = self.e; k = self.k
        Lskip = k.label('Lred')
        e(f"s_cmp_lg_u32 {sW}, 0\ns_cbranch_scc1 {Lskip}")
        self.poll('v248', 'v161')
        self.fetch('kv2d', 'v251'); self.fetch('kv2z', 'v252'); self.fetch('kv2f', 'v253')
        self.sum8('v249', 'v250', 'r', after_loads=lambda: e('s_barrier'))
        e(f"""buffer_store_dwordx4 v[56:59], v251, {WS}, 0 offen sc1
s_mov_b64 exec, 15
buffer_store_dwordx4 v[60:63], v252, {WS}, 0 offen sc1
s_mov_b64 exec, -1""", nocount=True)
        e(f"{Lskip}:")
    def reduce1b(self):
        e = self.e; k = self.k
        Lskip = k.label('Lred')
        e(f"s_cmp_lg_u32 {sW}, 0\ns_cbranch_scc1 {Lskip}")
        self.flag('v253', 0, force_sc1=True)
        e(f"{Lskip}:")

    def qfeat(self):
        tiles = [(104 + (ep*2+ee)*4, 120 + ep*4, 36+ee, 38+ee, 30+2*ep, 128 + 8*ep + 4*ee) for ep in range(2) for ee in range(2)]
        self.features(tiles, 160)

    def final_kv_and_o(self):
        e = self.e; k = self.k
        SC = 152*1024
        self.fetch('k_poll', 'v248'); self.fetch('k_kv', 'v249'); self.fetch('k_z', 'v250')
        self.fetch('o_st', 'v253'); self.fetch('o_fl', 'v254'); self.fetch('o_st1', 'v152')
        e(f"""s_lshl_b32 {sT0}, {sW}, 10
v_add_u32 v251, {sT0}, v1
v_add_u32 v251, {SC}, v251
s_lshl_b32 {sT0}, {sB}, 11
v_add_u32 v252, {sT0}, v1
v_add_u32 v252, {SC}, v252
s_lshl_b32 {sT0}, {sW}, 6
v_add_u32 v150, {sT0}, v1
v_add_u32 v150, {SC+4096}, v150
s_lshl_b32 {sT0}, {sB}, 7
v_lshlrev_b32 v151, 4, v3
v_add_u32 v151, {sT0}, v151
v_add_u32 v151, {SC+4096}, v151""")
        self.poll('v248', 'v161')
        self.stamp('kv2 ready')
        self.sum8('v249', 'v250', 'kv')
        if self.opt.get('ostamp'): self.stamp('  sum8 done')
        e("ds_write_b128 v251, v[56:59]", tag='kvw')
        e("s_mov_b64 exec, 15")
        e("ds_write_b128 v150, v[60:63]", tag='kvw')
        e("s_mov_b64 exec, -1")
        k.wait_lg('kvw')
        e("s_barrier")
        for ep in range(2):
            e(f"ds_read_b128 v[{40+8*ep}:{43+8*ep}], v252 offset:{ep*1024}", tag='kvr')
            e(f"ds_read_b128 v[{44+8*ep}:{47+8*ep}], v151 offset:{ep*64}", tag='kvr')
        k.wait_lg('kvr')
        if self.opt.get('ostamp'): self.stamp('  kv xchg')
        tl = [(ee, ep) for ee in range(2) for ep in range(2)]
        for i, (ee, ep) in enumerate(tl):
            pq = 128 + 8*ep + 4*ee; n = 176 + i*8
            e(f"{MF} v[{n}:{n+3}], v[{40+8*ep}:{43+8*ep}], v[{pq}:{pq+3}], 0")
            e(f"{MF} v[{n+4}:{n+7}], v[{44+8*ep}:{47+8*ep}], v[{pq}:{pq+3}], 0")
        for i in range(4): n = 176 + i*8; e(f"v_add_f32 v{n+4}, 0x358637bd, v{n+4}")
        for i in range(4): n = 176 + i*8; e(f"v_rcp_f32 v{n+4}, v{n+4}")
        for i in range(4):
            n = 176 + i*8
            e(f"v_pk_mul_f32 v[{n}:{n+1}], v[{n}:{n+1}], v[{n+4}:{n+5}] op_sel_hi:[1,0]\nv_pk_mul_f32 v[{n+2}:{n+3}], v[{n+2}:{n+3}], v[{n+4}:{n+5}] op_sel_hi:[1,0]")
        for i, (ee, ep) in enumerate(tl):
            n = 176 + i*8
            e(f"v_cvt_pk_bf16_f32 v{72+4*ee+2*ep}, v{n}, v{n+1}\nv_cvt_pk_bf16_f32 v{72+4*ee+2*ep+1}, v{n+2}, v{n+3}")
        self.pub([f"buffer_store_dwordx4 v[72:75], v253, {WS}, 0 offen",
                  f"buffer_store_dwordx4 v[76:79], v152, {WS}, 0 offen"], tag='os')
        if self.opt.get('ostamp'): self.stamp('  o stored')
        self.flag('v254', 0, wait_tag='os')

    PLACE = {'w1_0': 'O', 'w1_r': 'A', 'w2_0': 'B', 'w2_r': 'C', 'w3_2': 'A', 'w3_1': 'D', 'w3_0': 'F', 'w3_3': 'G', 'w3_4': 'G'}
    def slot_dmas(self, slot):
        pl = dict(self.PLACE); pl.update(self.opt.get('place', {}))
        def f():
            for item in ('w1_0', 'w1_r', 'w2_0', 'w2_r', 'w3_2', 'w3_1', 'w3_0', 'w3_3', 'w3_4'):
                if pl[item] != slot: continue
                if item == 'w1_0': self.dma_w64(SRD_W1, 0x10000, 'w1', [0])
                if item == 'w1_r': self.dma_w64(SRD_W1, 0x10000, 'w1', [1, 2, 3])
                if item == 'w2_0': self.dma_w64(SRD_W2, 0, 'w2', [0])
                if item == 'w2_r': self.dma_w64(SRD_W2, 0, 'w2', [1, 2, 3])
                if item.startswith('w3_'): self.dma_w3(int(item[3]))
        return self.cap(f)

    def phase_regs(self):
        e = self.e
        for ct in range(4): e(f"v_add_u32 v{56+ct}, 0x10000, v{14+ct}")
        self.fetch('tile', 'v60'); self.fetch('flag', 'v61'); self.fetch('fpoll', 'v62'); self.fetch('st_st', 'v63'); self.fetch('st_ld', 'v224')

    def unpack16(self, src, dst):
        for q in range(8):
            self.e(f"v_lshlrev_b32 v{dst+2*q}, 16, v{src+q}\nv_and_b32 v{dst+2*q+1}, 0xffff0000, v{src+q}")

    def a_reads(self, t, basereg, imm, tagp):
        buf = 128 + (t % 3)*16
        for ct in range(4):
            for h in range(2):
                self.e(f"ds_read_b64_tr_b16 v[{buf+4*ct+2*h}:{buf+4*ct+2*h+1}], v{basereg+ct} offset:{imm + h*2048}", tag=f'{tagp}{t}')

    def gemm64_pre(self, base, tagp):
        for t in range(3): self.a_reads(t, base, t*4096, tagp)

    def bload(self, t, btag, vaddr=None):
        va = 'v225' if vaddr is None else vaddr(t)
        self.e(f"buffer_load_dwordx4 v[{64+4*t}:{67+4*t}], {va}, {WS}, {CQ[t//4]} offen offset:{(t%4)*1024} sc1", tag=f'{btag}{t}')

    def gemm64_main(self, base, tagp, btag, first_zero=False, mid=None, late=(), pre_step=None, vaddr=None):
        k = self.k
        late = list(late)
        D = self.opt.get('bdepth', 6)
        for t in range(D): self.bload(t, btag, vaddr)
        midl = self.cap(mid) if mid else []
        nm = (len(midl) + 7)//8
        for t in range(16):
            k.wait_lg(f'{tagp}{t}')
            k.wait_vm(f'{btag}{t}')
            if self.opt.get('gstamp') and t in (0, 4, 8, 12): self.stamp(f'  {btag} t{t}')
            if pre_step: pre_step(t)
            buf = 128 + (t % 3)*16
            def mm():
                for ct in range(4):
                    self.mf(40+4*ct, f"v[{buf+4*ct}:{buf+4*ct+3}]", f"v[{64+4*t}:{67+4*t}]", first_zero and t == 0)
            rd = self.cap(self.a_reads, t+3, base, (t+3)*4096, tagp) if t + 3 < 16 else []
            bl = self.cap(self.bload, t+D, btag, vaddr) if t + D < 16 else []
            if t + D >= 16 and late:
                bl = late[:6]; late = late[6:]
            sd = midl[(t-4)*nm:(t-3)*nm] if 4 <= t < 12 else []
            self.weave(self.cap(mm), (bl, 1.5), (rd, 2), (sd, 1.5))
        self.k.L += late

    def row_stats(self):
        e = self.e
        e("v_pk_add_f32 v[180:181], v[40:41], v[42:43]\nv_pk_mul_f32 v[182:183], v[40:41], v[40:41]")
        e("v_pk_add_f32 v[184:185], v[44:45], v[46:47]\nv_pk_mul_f32 v[186:187], v[44:45], v[44:45]")
        e("v_pk_fma_f32 v[182:183], v[42:43], v[42:43], v[182:183]\nv_pk_fma_f32 v[186:187], v[46:47], v[46:47], v[186:187]")
        for q in range(4, 8, 2):
            e(f"v_pk_add_f32 v[180:181], v[180:181], v[{40+2*q}:{41+2*q}]\nv_pk_add_f32 v[184:185], v[184:185], v[{42+2*q}:{43+2*q}]")
            e(f"v_pk_fma_f32 v[182:183], v[{40+2*q}:{41+2*q}], v[{40+2*q}:{41+2*q}], v[182:183]\nv_pk_fma_f32 v[186:187], v[{42+2*q}:{43+2*q}], v[{42+2*q}:{43+2*q}], v[186:187]")
        e("v_pk_add_f32 v[180:181], v[180:181], v[184:185]\nv_pk_add_f32 v[182:183], v[182:183], v[186:187]")
        e("v_add_f32 v180, v180, v181\nv_add_f32 v181, v182, v183")
        self.allred([('v180','v181')], 'v_add_f32')

    def pack(self, dst):
        for q in range(8): self.e(f"v_cvt_pk_bf16_f32 v{dst+q}, v{40+2*q}, v{41+2*q}")
    def pub_tile(self, pk, tag):
        self.pub([f"buffer_store_dwordx4 v[{pk}:{pk+3}], v60, {WS}, 0 offen",
                  f"buffer_store_dwordx4 v[{pk+4}:{pk+7}], v60, {WS}, 0 offen offset:1024"], tag=tag)
    def pub_stats(self, off, tag):
        self.e("s_mov_b64 exec, 0xffff")
        self.pub([f"buffer_store_dwordx2 v[180:181], v63, {WS}, 0 offen offset:{off}"], tag=tag)
        self.e("s_mov_b64 exec, -1")
    def load_stats(self, off, tag):
        self.e(f"buffer_load_dwordx4 v[188:191], v224, {WS}, 0 offen offset:{off} sc1", tag=tag)

    def reduce_stats(self, tag, m, rs):
        e = self.e
        self.k.wait_vm(tag)
        e("v_pk_add_f32 v[188:189], v[188:189], v[190:191]")
        self.allred([('v188','v189')], 'v_add_f32')
        e(f"""v_mul_f32 v{m}, {sINV}, v188
v_mul_f32 v189, {sINV}, v189
v_fma_f32 v189, -v{m}, v{m}, v189
v_max_f32 v189, 0, v189
v_add_f32 v190, {sEPS}, v189
v_rsq_f32 v{rs}, v190""")

    def gelu_pairs(self, regs, T):
        e = self.e
        P = list(enumerate(regs))
        for i, y in P: e(f"v_pk_mul_f32 v[{T+2*i}:{T+2*i+1}], v[{y}:{y+1}], v[{y}:{y+1}]")
        for i, y in P: e(f"v_pk_fma_f32 v[{T+2*i}:{T+2*i+1}], v[{T+2*i}:{T+2*i+1}], s[80:81], s[80:81] op_sel:[0,1,0] op_sel_hi:[1,1,0]")
        for i, y in P: e(f"v_pk_mul_f32 v[{T+2*i}:{T+2*i+1}], v[{T+2*i}:{T+2*i+1}], v[{y}:{y+1}]")
        for i, y in P: e(f"v_exp_f32 v{T+2*i}, v{T+2*i}\nv_exp_f32 v{T+2*i+1}, v{T+2*i+1}")
        for i, y in P: e(f"v_pk_add_f32 v[{T+2*i}:{T+2*i+1}], v[{T+2*i}:{T+2*i+1}], s[94:95]")
        for i, y in P: e(f"v_rcp_f32 v{T+2*i}, v{T+2*i}\nv_rcp_f32 v{T+2*i+1}, v{T+2*i+1}")
        for i, y in P: e(f"v_pk_mul_f32 v[{y}:{y+1}], v[{y}:{y+1}], v[{T+2*i}:{T+2*i+1}]")

    def cs1(self):
        e = self.e; k = self.k
        SC1 = 154*1024
        e(f"s_lshl_b32 {sT0}, {sW}, 5\nv_xor_b32 v184, {sT0}, v56")
        for t in range(16):
            for h in range(2): e(f"ds_read_b64_tr_b16 v[{64+4*t+2*h}:{64+4*t+2*h+1}], v184 offset:{t*4096 + h*2048}", tag=f'c1_{t}')
        e(f"""s_lshl_b32 {sT0}, {sW}, 6
v_lshlrev_b32 v185, 4, v3
v_add_u32 v185, {SC1}, v185
v_add_u32 v186, {sT0}, v185""")
        for t in range(16):
            if t % 4 == 0: k.wait_lg(f'c1_{t+3}')
            self.mf(188 if t % 2 == 0 else 180, f"v[{64+4*t}:{67+4*t}]", "v[20:23]", t < 2)
        e("v_pk_add_f32 v[188:189], v[188:189], v[180:181]\nv_pk_add_f32 v[190:191], v[190:191], v[182:183]")
        e(f"s_mov_b64 exec, {sS0}")
        e("ds_write_b128 v186, v[188:191]", tag='c1w')
        e("s_mov_b64 exec, -1")
        k.wait_lg('c1w')
        e("s_barrier")
        for ct in range(4): e(f"ds_read_b128 v[{208+4*ct}:{211+4*ct}], v185 offset:{ct*64}", tag='c1r')

    def phase_wo(self):
        e = self.e; k = self.k; o = self.opt
        self.k.L += self.slot_dmas('O')
        self.phase_regs()
        self.gemm64_pre(14, 'ao')
        k.wait_vm('resx')
        self.unpack16(240, 40)
        self.fetch('o_poll', 'v184'); self.fetch('b_o', 'v225')
        self.poll('v184', 'v185')
        self.stamp('o ready')
        self.gemm64_main(14, 'ao', 'bo', late=self.slot_dmas('A'))
        self.stamp('wo gemm')
        self.pack(232)
        self.pub_tile(232, 'hs')
        self.row_stats()
        self.pub_stats(0, 'hs2')
        self.flag('v61', 0, wait_tag='hs2')

    def phase_w1(self):
        e = self.e; k = self.k; o = self.opt
        e("s_barrier")
        self.k.L += self.slot_dmas('B')
        self.cs1()
        self.gemm64_pre(56, 'a1')
        self.fetch('b_h', 'v225'); self.fetch('hh_st', 'v200'); self.fetch('hh_halo', 'v201'); self.fetch('hh_haloflag', 'v202')
        self.poll('v62', 'v185', 0)
        self.stamp('h ready')
        self.load_stats(0, 'sth')
        def mid():
            self.reduce_stats('sth', 230, 231)
            e(f"""v_mul_f32 v190, v231, v231
v_mul_f32 v190, v189, v190
v_add_f32 v190, {sEPS}, v190
v_rsq_f32 v190, v190
v_mul_f32 v228, v231, v190""")
        w2 = self.slot_dmas('C')
        nl = 36
        self.gemm64_main(56, 'a1', 'b1', first_zero=True, mid=mid, late=w2[:nl] )
        self.stamp('w1 gemm')
        k.wait_lg('c1r')
        def epi():
            for q in range(8):
                e(f"v_pk_fma_f32 v[{40+2*q}:{41+2*q}], v[{208+2*q}:{209+2*q}], v[230:231], v[{40+2*q}:{41+2*q}] op_sel_hi:[1,0,1] neg_lo:[1,0,0] neg_hi:[1,0,0]")
            for q in range(8):
                e(f"v_pk_mul_f32 v[{40+2*q}:{41+2*q}], v[{40+2*q}:{41+2*q}], v[228:229] op_sel_hi:[1,0]")
            self.gelu_pairs([40+2*q for q in range(8)], 64)
            self.pack(192)
        e("s_barrier")
        dl = w2[nl:] + self.slot_dmas('D'); el = self.cap(epi)
        self.mix(el, dl, max(1.0, 0.8*len(el)/max(1, len(dl))))
        self.pub([f"buffer_store_dwordx4 v[192:195], v200, {WS}, 0 offen",
                  f"buffer_store_dwordx4 v[196:199], v200, {WS}, 0 offen offset:1024"], tag='hhs')
        self.flag('v61', 32, wait_tag='hhs')
        Lh = k.label('Lhalo')
        e(f"s_cmp_eq_u64 s[68:69], 0\n~s_cbranch_scc1 {Lh}")
        k.push()
        e(f"""s_mov_b64 exec, s[68:69]
buffer_store_dwordx4 v[192:195], v201, {WS}, 0 offen sc1
buffer_store_dwordx4 v[196:199], v201, {WS}, 0 offen offset:1024 sc1
s_mov_b64 exec, -1""", nocount=True)
        self.flag('v202', 0, force_sc1=True)
        k.pop()
        e(f"~{Lh}:")

    def phase_w2(self):
        e = self.e; k = self.k; o = self.opt
        e("s_barrier")
        self.k.L += self.slot_dmas('E')
        for pg, (qh, ql) in enumerate(((0,1),(2,3),(1,0),(3,2))):
            e(f"s_cmp_eq_u32 s93, 1\ns_cselect_b32 {sT0}, {qh}, {ql}\ns_lshl_b32 {sT0}, {sT0}, 14")
            for ct in range(4): e(f"v_add_u32 v{192+4*pg+ct}, {sT0}, v{14+ct}")
        def ard(t): self.a_reads(t, 192 + 4*(t >> 2), (t & 3)*4096, 'a2')
        for t in range(3): ard(t)
        self.unpack16(232, 40)
        e("v_mul_f32 v229, v230, v231")
        for q in range(8):
            e(f"v_pk_fma_f32 v[{40+2*q}:{41+2*q}], v[{40+2*q}:{41+2*q}], v[230:231], v[228:229] op_sel:[0,1,1] op_sel_hi:[1,1,1] neg_lo:[0,0,1] neg_hi:[0,0,1]")
        self.fetch('hh_poll', 'v185')
        for q in range(4): self.fetch(f'hh_ld{q}', f'v{244+q}')
        self.poll('v185', 'v186')
        self.stamp('hh ready')
        def bl(t): e(f"buffer_load_dwordx4 v[{64+4*t}:{67+4*t}], v{244 + (t >> 2)}, {WS}, 0 offen offset:{(t&3)*1024} sc1", tag=f'b2{t}')
        for t in range(6): bl(t)
        late = self.slot_dmas('F')
        sched = {0: [6], 1: [7], 4: [8, 9], 5: [10, 11], 6: [12, 13], 7: [14, 15]}
        for t in range(16):
            if t == 4:
                Lh = k.label('Lhw'); Lp = k.label('Lhp'); Lq = k.label('Lhq')
                e(f"s_cmp_eq_u32 s71, 0\n~s_cbranch_scc1 {Lh}")
                k.push()
                e(f"""s_mov_b32 {sCNT}, 0x8000
{Lp}:
s_load_dwordx8 s[8:15], s[{SRD_WS}:{SRD_WS+1}], s70 glc
s_waitcnt lgkmcnt(0)
s_cmp_eq_u32 s71, 1
s_cselect_b32 s8, s8, s10
s_cselect_b32 s9, s9, s11
s_cselect_b32 s10, s12, s14
s_cselect_b32 s11, s13, s15
s_xor_b32 s8, s8, {sT}
s_xor_b32 s9, s9, {sT}
s_xor_b32 s10, s10, {sT}
s_xor_b32 s11, s11, {sT}
s_or_b32 s8, s8, s9
s_or_b32 s10, s10, s11
s_or_b32 s8, s8, s10
s_cmp_eq_u32 s8, 0
s_cbranch_scc1 {Lq}
s_sub_u32 {sCNT}, {sCNT}, 1
s_cmp_lg_u32 {sCNT}, 0
s_cbranch_scc1 {Lp}
s_mov_b32 {sTO}, 1
{Lq}:""")
                k.pop()
                e(f"~{Lh}:")
            k.wait_lg(f'a2{t}')
            k.wait_vm(f'b2{t}')
            if self.opt.get('gstamp') and t in (0, 4, 8, 12): self.stamp(f'  b2 t{t}')
            buf = 128 + (t % 3)*16
            def mm():
                for ct in range(4): self.mf(40+4*ct, f"v[{buf+4*ct}:{buf+4*ct+3}]", f"v[{64+4*t}:{67+4*t}]")
            rd = self.cap(ard, t+3) if t + 3 < 16 else []
            blx = self.cap(lambda: [bl(u) for u in sched.get(t, [])])
            if t >= 9 and late:
                blx = late[:6]; late = late[6:]
            self.weave(self.cap(mm), (blx, 1.5), (rd, 2))
        self.k.L += late
        self.stamp('w2 gemm')
        e("s_barrier")
        self.pack(192)
        self.pub_tile(192, 'x1s')
        self.row_stats()
        self.pub_stats(2048, 'x1s2')
        if self.opt.get('ostamp'): self.stamp('  x1 stored')
        self.flag('v61', 64, wait_tag='x1s2')
        if self.opt.get('ostamp'): self.stamp('  x1 flagged')
        def hx():
            self.unpack16(232, 208)
            for q in range(8):
                e(f"v_pk_add_f32 v[{208+2*q}:{209+2*q}], v[{208+2*q}:{209+2*q}], v[{40+2*q}:{41+2*q}]")
            for q in range(16): e(f"v_accvgpr_write_b32 a{240+q}, v{208+q}")
        self.mix(self.cap(hx), self.slot_dmas('G'), 1.3)

    def mlp_setup(self):
        e = self.e
        e(f"""v_lshrrev_b32 v18, 3, v0
v_and_b32 v5, 6, v18
v_and_b32 v6, 7, v0
v_xor_b32 v6, v6, v5
v_mul_u32_u24 v4, 2752, v18
v_lshl_add_u32 v4, v6, 4, v4
s_lshl_b32 {sT0}, {sF0}, 1
s_mul_i32 {sT1}, {sW}, {16*2752}
s_add_u32 {sT0}, {sT0}, {sT1}
v_add_u32 v4, {sT0}, v4
v_add_u32 v7, {8*2752-1024}, v4
v_cmp_gt_u32 vcc, {sFW}, v6
v_mov_b32 v12, {hex(OOB)}
v_cndmask_b32 v5, v12, v4, vcc
v_cndmask_b32 v12, v12, v7, vcc
s_lshl_b32 s98, {sW}, 12
s_lshl_b32 s99, {sRHO}, 14
s_add_u32 s99, s99, {X1B}
s_mul_i32 s19, {sI}, 11
s_add_u32 {sROT}, s19, {sW}""")

    G4S = [4, 8, 12, 16, 20, 24, 28, 0, 32, 4, 8]
    W3A = [65536, 65536+24576, 131072, 16384, 40960, 65536, 65536+24576, 131072]
    X1A = [114688, 122880, 0, 8192, 114688, 122880, 0, 8192]
    def dma_w3(self, c):
        self.e(f"s_lshl_b32 s0, {sI}, 1\ns_add_u32 s0, s0, {c}\ns_and_b32 s0, s0, 7\ns_mul_i32 s1, s0, {64*2752}")
        for q in range(3):
            self.dmag(SRD_W3, ('s1', q*128) if q else 's1', (sM0W, self.W3A[c] + q*8192), [('v4', 0), ('v7', 1024)] if q < 2 else [('v5', 0), ('v12', 1024)], f'm{c}')
    def dma_x1(self, c):
        self.e(f"s_lshl_b32 s0, {sI}, 1\ns_add_u32 s0, s0, {c}\ns_and_b32 s0, s0, 7\ns_lshl_b32 s0, s0, 11\ns_add_u32 s0, s0, s99")
        self.dmag(SRD_WS, 's0', (sM0W, self.X1A[c]), [('v1', 0), ('v1', 1024)], f'm{c}', sc1=True)
    def dma_w4(self, n, slot0):
        self.e(f"s_add_u32 s0, {sROT}, {4*n}\ns_sub_u32 s1, s0, 43\ns_cmp_lt_u32 s0, 43\ns_cselect_b32 s0, s0, s1\ns_lshl_b32 s0, s0, 15")
        if n == 10: self.e(f"s_cmp_eq_u32 {sW}, 3\ns_cselect_b32 s0, {hex(OOB)}, s0")
        self.dmag(SRD_W4, 's0', ('s98', slot0*4096), self.W4V, f'w4_{n}')

    def w3_reads(self, c):
        def base(addr, regs): return regs[addr >> 16], addr & 0xffff
        par = c % 2
        for u in range(2):
            for rl in range(4):
                b = 40 + par*32 + u*16 + rl*4
                r, o = base(self.X1A[c] + (rl*2+u)*1024, ('v1', 'v110'))
                self.e(f"ds_read_b128 v[{b}:{b+3}], {r} offset:{o}", tag=f'mr{c}')
            for q in range(3):
                b = 192 + par*24 + u*12 + q*4
                for h in range(2):
                    r, o = base(self.W3A[c] + q*8192 + u*4096 + h*2048, ('v108', 'v109', 'v111'))
                    self.e(f"ds_read_b64_tr_b16 v[{b+2*h}:{b+2*h+1}], {r} offset:{o}", tag=f'mr{c}')
    def w3_mfma(self, c):
        par = c % 2
        for u in range(2):
            for q in range(3):
                wb = 192 + par*24 + u*12 + q*4
                for rl in range(4):
                    acc = 128 + (q*4+rl)*4; xbb = 40 + par*32 + u*16 + rl*4
                    self.mf(acc, f"v[{wb}:{wb+3}]", f"v[{xbb}:{xbb+3}]", c == 0 and u == 0)
                self.mf(176+4*q, f"v[{wb}:{wb+3}]", "v[20:23]", c == 0 and u == 0)

    def phase_w3(self):
        e = self.e; k = self.k; o = self.opt
        SC = 152*1024; XCH = 128*1024
        e("v_mov_b32 v112, v62\nv_mov_b32 v113, v61")
        e(f"s_lshl_b32 {sT0}, {sW}, 5\nv_xor_b32 v108, {sT0}, v14\nv_add_u32 v109, 0x10000, v108\nv_add_u32 v110, 0x10000, v1\nv_add_u32 v111, 0x20000, v108")
        e(f"""s_lshl_b32 {sT0}, {sW}, 7
v_lshlrev_b32 v104, 3, v2
v_add_u32 v104, {SC+1024}, v104
v_add_u32 v105, {sT0}, v104""")
        self.poll('v112', 'v185', 64)
        self.stamp('x1 ready')
        self.dma_x1(0)
        self.load_stats(2048, 'stx')
        self.dma_x1(1)
        def statside():
            self.reduce_stats('stx', 106, 107)
            e("ds_write_b64 v105, v[106:107]", tag='s3w')
        k.wait_vm('m0'); e("s_barrier")
        if self.opt.get('ostamp'): self.stamp('  x1(0) in')
        self.w3_reads(0)
        G4S = self.G4S
        self.g4at = {0: [4, 6, 7], 1: [4, 5, 6, 6, 7, 7], 2: [4, 7], 3: [5]}[o.get('g4', 0)]
        for c in range(8):
            if c < 7:
                k.wait_vm(f'm{c+1}')
                if c == 1: k.wait_lg('s3w')
                e("s_barrier")
            else: e("s_barrier")
            k.wait_lg(f'mr{c}')
            main = self.cap(self.w3_mfma, c)
            rd = self.cap(self.w3_reads, c+1) if c < 7 else []
            def dmf():
                if c == 0: self.dma_x1(2); self.dma_x1(3)

                if 1 <= c <= 3: self.dma_x1(c+3); self.dma_w3(c+4)
                if c == 4: self.dma_x1(7)
                for n, cc in enumerate(self.g4at):
                    if cc == c: self.dma_w4(n, G4S[n])
                if c == o.get('pwb_at', 7): self.prewarm_issue('pwB', 'v114')
            sd = self.cap(statside) if c == 0 else []
            if c == 2: sd = self.cap(lambda: [e(f"ds_read_b64 v[{240+2*rl}:{241+2*rl}], v104 offset:{rl*128}", tag='s3r') for rl in range(4)])
            self.weave(main, (rd, 0.8), (self.cap(dmf), 0.9), (sd, 1.2))
        self.stamp('w3 gemm')
        e("s_barrier")
        k.wait_lg('s3r')
        e(f"""s_lshr_b32 {sT0}, {sW}, 1
s_lshl_b32 {sT0}, {sT0}, 10
s_and_b32 {sT1}, {sW}, 1
s_lshl_b32 {sT1}, {sT1}, 3
s_add_u32 {sT0}, {sT0}, {sT1}
s_add_u32 {sT0}, {sT0}, {XCH}
v_add_u32 v104, {sT0}, v1
s_mul_i32 {sT0}, {sW}, 6144
s_add_u32 {sT0}, {sT0}, {XCH}
v_add_u32 v105, {sT0}, v1
s_lshr_b32 {sT0}, {sF0}, 5
s_add_u32 {sT0}, {sT0}, 43
s_sub_u32 {sT0}, {sT0}, s19""")
        for uu in range(6):
            e(f"s_add_u32 s{8+uu}, {sT0}, {uu}\ns_sub_u32 {sT1}, s{8+uu}, 43\ns_cmp_lt_u32 s{8+uu}, 43\ns_cselect_b32 s{8+uu}, s{8+uu}, {sT1}\ns_lshl_b32 s{8+uu}, s{8+uu}, 10")
        e(f"s_cmp_eq_u32 {sFW}, 8\ns_cselect_b32 s13, s13, {hex(OOB)}")
        self.fetch('hid_st', 'v106')
        def epi():
            for q in range(3):
                for rl in range(4):
                    acc = 128 + (q*4+rl)*4; cs = 176 + 4*q; m = 240 + 2*rl
                    for p in range(2):
                        e(f"v_pk_fma_f32 v[{acc+2*p}:{acc+2*p+1}], v[{cs+2*p}:{cs+2*p+1}], v[{m}:{m+1}], v[{acc+2*p}:{acc+2*p+1}] op_sel_hi:[1,0,1] neg_lo:[1,0,0] neg_hi:[1,0,0]")
                for rl in range(4):
                    acc = 128 + (q*4+rl)*4; m = 240 + 2*rl
                    for p in range(2):
                        e(f"v_pk_mul_f32 v[{acc+2*p}:{acc+2*p+1}], v[{acc+2*p}:{acc+2*p+1}], v[{m}:{m+1}] op_sel:[0,1] op_sel_hi:[1,1]")
                self.gelu_pairs([128 + q*16 + 2*i for i in range(8)], 40)
                for rl in range(4):
                    acc = 128 + (q*4+rl)*4
                    e(f"v_cvt_pk_bf16_f32 v{72+8*q+2*rl}, v{acc}, v{acc+1}\nv_cvt_pk_bf16_f32 v{73+8*q+2*rl}, v{acc+2}, v{acc+3}")
                for rl in range(4):
                    e(f"ds_write_b64 v104, v[{72+8*q+2*rl}:{73+8*q+2*rl}] offset:{(rl*6 + 2*q)*1024}", tag='hidw')
        ep_l = self.cap(epi); dm_l = self.cap(lambda: [self.dma_w4(n, self.G4S[n]) for n in range(len(self.g4at), 8)])
        self.mix(ep_l, dm_l, len(ep_l)/len(dm_l)*0.5)
        k.wait_lg('hidw')
        e("s_barrier")
        self.stamp('gelu done')
        for uu in range(6): e(f"ds_read_b128 v[{40+4*uu}:{43+4*uu}], v105 offset:{uu*1024}", tag='hidr')
        k.wait_lg('hidr')
        lines = [f"buffer_store_dwordx4 v[{40+4*uu}:{43+4*uu}], v106, {WS}, s{8+uu} offen" for uu in range(6)]
        self.pub(lines, tag='hids')
        self.flag('v113', 96, wait_tag='hids')
        e("s_barrier")
        self.dma_w4(8, self.G4S[8])

    def phase_w4(self):
        e = self.e; k = self.k
        for ct in range(4):
            e(f"v_mov_b32 v{176+ct}, v{14+ct}\nv_add_u32 v{180+ct}, 0x10000, v{14+ct}\nv_add_u32 v{184+ct}, 0x20000, v{14+ct}")
        self.fetch('hid_ld', 'v225'); self.fetch('out_st', 'v224')
        self.poll('v112', 'v189', 96)
        self.stamp('hid ready')
        e("s_barrier")
        NK = 43
        def slot(t): return self.G4S[t >> 2] + (t & 3)
        def ard(t):
            ad = slot(t)*4096
            self.a_reads(t, 176 + 4*(ad >> 16), ad & 0xffff, 'a4')
        def bld(t):
            if t % 4 == 0: e(f"s_mov_b32 {sT5}, {t*1024}")
            b = 64 + 4*(t % 16)
            e(f"buffer_load_dwordx4 v[{b}:{b+3}], v225, {WS}, {sT5} offen offset:{(t%4)*1024} sc1", tag=f'b4{t}')
        D = self.opt.get('bdepth4', 6)
        for t in range(D): bld(t)
        for t in range(3): ard(t)
        for t in range(NK):
            if t == 8: e("s_barrier")
            if t == 31:
                k.wait_vm('w4_10'); e("s_barrier")
            k.wait_lg(f'a4{t}')
            k.wait_vm(f'b4{t}')
            buf = 128 + (t % 3)*16; b = 64 + 4*(t % 16)
            def mm():
                for ct in range(4):
                    self.mf(240+4*ct, f"v[{buf+4*ct}:{buf+4*ct+3}]", f"v[{b}:{b+3}]", ag=True)
            def side():
                if t + 3 < NK: ard(t+3)
            def side2():
                if t + D < NK: bld(t+D)
                if t == 8: self.dma_w4(9, self.G4S[9])
                if t == 11: self.dma_w4(10, self.G4S[10])
            self.weave(self.cap(mm), (self.cap(side2), 1), (self.cap(side), 2))
        self.stamp('w4 gemm')
        for q in range(16): e(f"v_accvgpr_read_b32 v{40+q}, a{240+q}")
        for q in range(8): e(f"v_cvt_pk_bf16_f32 v{56+q}, v{40+2*q}, v{41+2*q}")
        for pp in range(2):
            b = 56 + 4*pp
            e(f"v_permlane16_swap_b32 v{b}, v{b+2}\nv_permlane16_swap_b32 v{b+1}, v{b+3}")
        for pp in range(2):
            b = 56 + 4*pp
            e(f"buffer_store_dwordx4 v[{b}:{b+3}], v224, {srd(SRD_OUT)}, 0 offen offset:{pp*64}")

    def epoch_update(self):
        e = self.e
        e(f"""s_or_b32 {sT0}, s2, {sW}
s_cmp_eq_u32 {sT0}, 0
s_cselect_b32 {sT0}, {EPOCH}, {hex(OOB)}
s_mov_b64 exec, 1
buffer_store_dword v9, off, {WS}, {sT0} sc1
s_mov_b64 exec, -1""")

    def finish(self):
        e = self.e
        if self.debug:
            e(f"""s_lshl_b32 {sT0}, s2, 10
s_lshl_b32 {sT1}, {sW}, 8
s_add_u32 {sT0}, {sT0}, {sT1}
s_add_u32 {sT0}, {sT0}, {DBG}
s_memrealtime s[84:85]
s_waitcnt lgkmcnt(0)
s_sub_u32 s84, s84, s90
v_writelane_b32 v19, s84, 61
v_writelane_b32 v19, s90, 60
v_writelane_b32 v19, {sTO}, 62
v_writelane_b32 v19, {sFAST}, 63
v_lshlrev_b32 v18, 2, v0
buffer_store_dword v19, v18, {WS}, {sT0} offen""")
        if self.opt.get('dbgout'):
            e(f"""s_memtime s[66:67]
s_memrealtime s[62:63]
s_waitcnt lgkmcnt(0)
s_mov_b32 s12, s84
s_mov_b32 s13, s85
s_mov_b32 s14, 256
s_mov_b32 s15, 0x20000
s_sub_u32 s66, s66, s86
s_sub_u32 s62, s62, s90
v_mov_b32 v40, s66
v_mov_b32 v41, s62
s_and_b32 s64, s2, 7
s_lshl_b32 s64, s64, 3
s_lshr_b32 s65, s2, 3
s_or_b32 s65, s65, {sW}
s_cmp_eq_u32 s65, 0
s_cselect_b32 s64, s64, {hex(OOB)}
s_mov_b64 exec, 1
buffer_store_dwordx2 v[40:41], off, s[12:15], s64
s_mov_b64 exec, -1""")
        e("s_waitcnt vmcnt(0)")
        e("L_end:\ns_endpgm")
        for blk in self.ool: e(blk)

    def build(self):
        k = self.k; e = self.e
        self.prologue()
        self.stamp('prologue')
        k.raw('@PAGESTART')
        self.pass_k(); self.ids_check(); self.stamp('pass k')
        self.pass_v(); self.stamp('pass v')
        self.kv_publish(); self.stamp('kv1 pub')
        self.pass_q(); self.stamp('pass q')
        e(f"s_cmp_eq_u32 {sW}, 0\ns_cbranch_scc1 L_q0\ns_barrier")
        k.push()
        self.dma_w64_3w(SRD_WO, 0, 'wo', [0])
        k.pop()
        e("L_q0:")
        qf = self.cap(self.qfeat)
        cut = int(len(qf)*self.opt.get('qcut', 20)/100)
        k.L += qf[:cut]
        k.push(); self.reduce1b(); k.pop()
        if self.opt.get('pf3', 1): self.pf('w3a', 'v237')
        k.L += qf[cut:]
        e(f"s_cmp_eq_u32 {sW}, 0\ns_cbranch_scc1 L_qd")
        k.push()
        e("s_waitcnt vmcnt(0)")
        self.dma_w64_3w(SRD_WO, 0, 'wo', [1, 2, 3, 4, 5])
        k.pop()
        e("L_qd:")
        self.touches(list(range(3, 16)))
        self.setup_addr(1)
        self.mlp_setup()
        self.setup_shift()
        self.stamp('qfeat')
        self.final_kv_and_o(); self.stamp('o pub')
        self.phase_wo(); self.epoch_update(); self.stamp('h pub')
        self.phase_w1(); self.stamp('hh pub')
        self.phase_w2(); self.stamp('x1 pub')
        self.phase_w3(); self.stamp('hid pub')
        self.phase_w4(); self.stamp('end')
        self.finish()
        body = k.finalize()
        lds = 160*1024
        hdr = open('cdna_kernels/' + NAME[:-7] + '.s.ref').read().split('\n')
        top = [l for l in hdr if l.startswith(';') and '@launch' not in l and 'Override' not in l and 'grid=ceil' not in l]
        txt = '\n'.join(top) + '\n'
        txt += f"; @launch grid=(256,1,1) block=(256,1,1) lds={lds}\n"
        txt += f""".amdgcn_target "amdgcn-amd-amdhsa--gfx950"
.text
.globl {NAME}
.p2align 8
.type {NAME},@function
{NAME}:
{body}
.section .rodata,"a"
.p2align 6
.amdhsa_kernel {NAME}
  .amdhsa_next_free_vgpr 512
  .amdhsa_next_free_sgpr 102
  .amdhsa_accum_offset 256
  .amdhsa_group_segment_fixed_size 0
  .amdhsa_kernarg_size 96
  .amdhsa_user_sgpr_count 2
  .amdhsa_user_sgpr_kernarg_segment_ptr 1
  .amdhsa_system_sgpr_workgroup_id_x 1
  .amdhsa_float_denorm_mode_32 3
.end_amdhsa_kernel
"""
        return txt

def generate(debug=True, opt=None):
    g = G(debug=debug, npages=0, opt=opt); g.build(); n = g.k.npages
    n2 = n if not (opt or {}).get('notouch') else 0
    g = G(debug=debug, npages=n2, opt=opt); txt = g.build()
    if g.k.npages != n:
        n = g.k.npages
        g = G(debug=debug, npages=n, opt=opt); txt = g.build()
    return txt, g

if __name__ == '__main__':
    debug = '--nodebug' not in sys.argv
    opt = {}
    for a in sys.argv[1:]:
        if '=' in a and not a.startswith('/'):
            kk, v = a.split('=')
            if kk == 'place': opt['place'] = dict(x.split(':') for x in v.split(','))
            else: opt[kk.lstrip('-')] = int(v)
    txt, g = generate(debug, opt)
    out = sys.argv[1] if len(sys.argv) > 1 and not sys.argv[1].startswith('--') and '=' not in sys.argv[1] else 'k4.s'
    open(out, 'w').write(txt)
    open('stamps.txt', 'w').write('\n'.join(g.stamp_names))
    print('wrote', out, len(txt), 'bytes', txt.count('\n'), 'lines; pages', g.k.npages)
```

```python
import re

TRANS = ('v_exp_f32','v_log_f32','v_rcp_f32','v_rsq_f32','v_sqrt_f32','v_sin_f32','v_cos_f32')

class Ins:
    __slots__ = ('text','kind','tag','nocount','op','wr','rd','cls','passes','srcC','comment')
    def __init__(self, text, kind='i', tag=None, nocount=False):
        self.text = text; self.kind = kind; self.tag = tag; self.nocount = nocount; self.comment = None

REG_RE = re.compile(r'\b([vas])(?:(\d+)|\[(\d+):(\d+)\])')
def regs_of(tok):
    out = []
    for m in REG_RE.finditer(tok):
        t = m.group(1)
        if m.group(2) is not None: out.append((t, int(m.group(2))))
        else: out += [(t, i) for i in range(int(m.group(3)), int(m.group(4))+1)]
    if re.search(r'\bvcc\b', tok): out += [('s','vcc')]
    if re.search(r'\bexec\b', tok): out += [('s','exec')]
    if re.search(r'\bm0\b', tok): out += [('s','m0')]
    return out

def split_ops(s):
    ops = []; depth = 0; cur = ''
    for ch in s:
        if ch == '[': depth += 1
        if ch == ']': depth -= 1
        if ch == ',' and depth == 0: ops.append(cur.strip()); cur = ''
        else: cur += ch
    if cur.strip(): ops.append(cur.strip())
    return ops

def analyze(ins):
    t = ins.text.split(';')[0].strip()
    parts = t.split(None, 1)
    op = parts[0]; rest = parts[1] if len(parts) > 1 else ''
    ins.op = op; ins.wr = []; ins.rd = []; ins.cls = 'other'; ins.passes = 0; ins.srcC = []
    ops = split_ops(rest)
    if op.startswith('v_mfma'):
        ins.cls = 'mfma'
        ins.passes = 8 if '32x32' in op else 4
        ins.wr = regs_of(ops[0]); ins.rd = regs_of(ops[1]) + regs_of(ops[2]) + regs_of(ops[3].split()[0])
        ins.srcC = regs_of(ops[3].split()[0])
    elif op.startswith('v_'):
        base = op.replace('_e32','').replace('_e64','').replace('_dpp','').replace('_sdwa','')
        ins.cls = 'valu'
        if base in TRANS: ins.cls = 'trans'
        mods = ops[-1] if ops else ''
        if 'row_' in t or 'quad_perm' in t or '_dpp' in op or 'wave_' in t: ins.cls = 'dpp'
        if base.startswith('v_permlane'):
            ins.cls = 'permlane'; ins.wr = regs_of(ops[0]) + regs_of(ops[1]); ins.rd = list(ins.wr)
        elif base.startswith('v_cmp'):
            ins.wr = regs_of(ops[0]); ins.rd = sum((regs_of(o.split()[0]) for o in ops[1:]), [])
            if base.startswith('v_cmpx'): ins.wr += [('s','exec')]
        elif base in ('v_readfirstlane_b32','v_readlane_b32'):
            ins.cls = 'readlane'; ins.wr = regs_of(ops[0]); ins.rd = sum((regs_of(o.split()[0]) for o in ops[1:]), [])
        elif base == 'v_writelane_b32':
            ins.cls = 'writelane'; ins.wr = regs_of(ops[0]); ins.rd = sum((regs_of(o.split()[0]) for o in ops[1:]), []) + ins.wr
        elif base in ('v_add_co_u32','v_sub_co_u32','v_addc_co_u32','v_subb_co_u32'):
            ins.wr = regs_of(ops[0]) + regs_of(ops[1]); ins.rd = sum((regs_of(o.split()[0]) for o in ops[2:]), [])
        else:
            ins.wr = regs_of(ops[0]); ins.rd = sum((regs_of(o.split()[0]) for o in ops[1:]), [])
            if base in ('v_fmac_f32','v_dot2c_f32_bf16','v_pk_fmac_f16'): ins.rd += ins.wr
            if base == 'v_cndmask_b32' and len(ops) == 3: ins.rd += [('s','vcc')]
    elif op.startswith('buffer_') or op.startswith('global_'):
        ins.cls = 'vmem'
        islds = re.search(r'\blds\b', t) is not None
        if 'load' in op and not islds:
            ins.wr = regs_of(ops[0]); ins.rd = sum((regs_of(o.split()[0]) for o in ops[1:]), [])
        else:
            ins.rd = sum((regs_of(o.split()[0]) for o in ops), [])
            if islds: ins.rd += [('s','m0')]
            if 'store' in op: ins.cls = 'vstore'
    elif op.startswith('ds_'):
        ins.cls = 'ds'
        if op.startswith('ds_read') or 'permute' in op or 'swizzle' in op:
            ins.wr = regs_of(ops[0]); ins.rd = sum((regs_of(o.split()[0]) for o in ops[1:]), [])
        else:
            ins.rd = sum((regs_of(o.split()[0]) for o in ops), [])
    elif op.startswith('s_'):
        ins.cls = 'salu'
        if op in ('s_waitcnt','s_nop','s_barrier','s_branch','s_endpgm','s_sleep','s_setprio') or op.startswith('s_cbranch'):
            pass
        elif op.startswith('s_cmp') or op.startswith('s_bitcmp'):
            ins.rd = sum((regs_of(o.split()[0]) for o in ops), [])
        elif op in ('s_setpc_b64',):
            ins.rd = regs_of(ops[0])
        else:
            ins.wr = regs_of(ops[0]); ins.rd = sum((regs_of(o.split()[0]) for o in ops[1:]), [])
            if 'saveexec' in op: ins.wr += [('s','exec')]; ins.rd += [('s','exec')]
    return ins

def nstates(ins):
    if ins.op == 's_nop': return int(ins.text.split()[1].split(';')[0]) + 1
    return 1

def need(p, c):
    n = 0
    pw = set(p.wr); cr = set(c.rd); cw = set(c.wr)
    isvalu = lambda i: i.cls in ('valu','trans','dpp','permlane','readlane','writelane')
    vw = set(r for r in pw if r[0] in 'va')
    sw = set(r for r in pw if r[0] == 's')
    if p.cls == 'mfma':
        D = vw
        if c.cls == 'mfma':
            C = set(c.srcC); AB = cr - C if False else set(c.rd[:len(c.rd)-len(c.srcC)])
            if AB & D: n = max(n, {4:8, 8:12}[p.passes])
            if C & D:
                if C == D and c.passes == p.passes: pass
                else: n = max(n, {4:6, 8:10}[p.passes])
            if (cw & D) and not (C & D): n = max(n, {4:8, 8:12}[p.passes])
        elif isvalu(c) or c.cls in ('vmem','vstore','ds'):
            if (cr | cw) & D: n = max(n, {4:8, 8:12}[p.passes])
        if isvalu(c) and (cw & set(p.srcC)): n = max(n, {4:3, 8:7}[p.passes])
    if isvalu(p):
        if c.cls == 'mfma' and (cr & vw): n = max(n, 2)
        if c.cls in ('dpp',) and (cr & vw): n = max(n, 2)
        if c.cls == 'permlane' and (cr & vw): n = max(n, 2)
        if c.cls == 'readlane' and (cr & vw): n = max(n, 1)
        if p.cls == 'trans' and isvalu(c) and c.cls != 'trans' and (cr & vw): n = max(n, 1)
        if p.cls == 'trans' and c.cls == 'trans' and (cr & vw): n = max(n, 1)
        if sw:
            if isvalu(c) and (cr & sw): n = max(n, 2)
            if c.cls in ('readlane','writelane') and (cr & sw): n = max(n, 4)
            if c.cls in ('vmem','vstore') and (cr & sw): n = max(n, 5)
            if ('s','exec') in sw and (isvalu(c) or c.cls == 'mfma'): n = max(n, 5)
            if c.op.startswith('s_cbranch_vcc') and ('s','vcc') in sw: n = max(n, 0)
            if c.cls == 'salu' and (cr & sw): n = max(n, 1)
    if p.cls == 'vstore' and ('x4' in p.op or 'x3' in p.op):
        data = set(r for r in p.rd if r[0] in 'va')
        if (cw & data): n = max(n, 2)
    if p.cls == 'salu' and ('s','m0') in pw and c.cls in ('vmem',) and ('s','m0') in cr: n = max(n, 1)
    if p.cls == 'salu' and ('s','exec') in pw and c.cls == 'mfma': n = max(n, 4)
    return n

class Kern:
    def __init__(self):
        self.L = []
        self.lbl = 0
    def e(self, text, tag=None, nocount=False):
        for line in text.strip().split('\n'):
            line = line.strip()
            if not line or line.startswith(';'): continue
            np_ = line.startswith('~')
            if np_: line = line[1:]
            if line.endswith(':'): self.L.append(Ins(line, 'label_np' if np_ else 'label'))
            else:
                i = Ins(line, 'i', tag, nocount); i.comment = 'np' if np_ else None; self.L.append(i)
    def wait_vm(self, tag): self.L.append(Ins('', 'wvm', tag))
    def wait_lg(self, tag): self.L.append(Ins('', 'wlg', tag))
    def wait_vm_all(self): self.L.append(Ins('s_waitcnt vmcnt(0)', 'i'))
    def wait_lg_all(self): self.L.append(Ins('s_waitcnt lgkmcnt(0)', 'i'))
    def label(self, p='L'):
        self.lbl += 1; return f'{p}_{self.lbl}'
    def push(self): self.L.append(Ins('', 'push'))
    def pop(self): self.L.append(Ins('', 'pop'))
    def raw(self, text): self.L.append(Ins(text, 'raw'))
    def capture(self):
        prev = self.L; self.L = []; return prev
    def end_capture(self, prev):
        got = self.L; self.L = prev; return got
    def extend(self, lst): self.L += lst

    def finalize(self):
        out = []
        vmq = []; lgq = []
        done_vm = set(); done_lg = set()
        stack = []
        hist = []
        def flush_hist(n):
            pass
        def emit(ins):
            analyze(ins)
            if ins.op == 's_waitcnt' and out and out[-1].kind == 'i' and out[-1].text.startswith('s_waitcnt'):
                a, b = out[-1].text, ins.text
                def g(t, n):
                    m = re.search(n + r'\((\d+)\)', t); return int(m.group(1)) if m else None
                parts = []
                for n in ('vmcnt', 'lgkmcnt'):
                    vals = [v for v in (g(a, n), g(b, n)) if v is not None]
                    if vals: parts.append(f'{n}({min(vals)})')
                out[-1].text = 's_waitcnt ' + ' '.join(parts)
                return
            reqn = 0; dist = 0
            for p in reversed(hist):
                nd = need(p, ins)
                if nd - dist > reqn: reqn = nd - dist
                dist += nstates(p)
                if dist > 20: break
            while reqn > 0:
                k = min(reqn, 16)
                nop = Ins(f's_nop {k-1}'); analyze(nop); out.append(nop); hist.append(nop); reqn -= k
            out.append(ins); hist.append(ins)
            if len(hist) > 40: del hist[:-30]
        def pad_worst():
                worst = 0; dist = 0
                for p in reversed(hist):
                    w = 0
                    if p.cls == 'mfma': w = {4:8, 8:12}[p.passes]
                    elif p.cls in ('valu','trans','dpp','permlane','readlane','writelane'):
                        w = 5 if any(r[0]=='s' for r in p.wr) else 2
                    elif p.cls == 'vstore': w = 2
                    elif p.cls == 'salu' and (('s','m0') in p.wr): w = 1
                    if w - dist > worst: worst = w - dist
                    dist += nstates(p)
                    if dist > 20: break
                while worst > 0:
                    k = min(worst, 16)
                    nop = Ins(f's_nop {k-1}'); analyze(nop); out.append(nop); hist.append(nop); worst -= k
        for ins in self.L:
            if ins.kind == 'raw':
                out.append(ins); continue
            if ins.kind == 'label_np':
                out.append(ins); continue
            if ins.kind == 'label':
                pad_worst()
                out.append(ins); del hist[:]
                continue
            if ins.kind == 'i' and getattr(ins, 'comment', None) != 'np' and (ins.text.startswith('s_branch') or ins.text.startswith('s_cbranch') or ins.text.startswith('s_swappc') or ins.text.startswith('s_setpc')):
                pad_worst()
            if ins.kind == 'push':
                stack.append((list(vmq), list(lgq), set(done_vm), set(done_lg))); continue
            if ins.kind == 'pop':
                vmq, lgq, done_vm, done_lg = stack.pop(); continue
            if ins.kind == 'wvm':
                if ins.tag in done_vm: continue
                assert ins.tag in vmq, f'wait_vm unknown tag {ins.tag}'
                idx = len(vmq) - 1 - vmq[::-1].index(ins.tag)
                n = len(vmq) - 1 - idx
                w = Ins(f's_waitcnt vmcnt({min(n,63)})'); emit(w)
                keep = min(n, 63)
                for t in vmq[:len(vmq)-keep]: done_vm.add(t)
                vmq = vmq[len(vmq)-keep:] if keep else []
                continue
            if ins.kind == 'wlg':
                if ins.tag in done_lg: continue
                assert ins.tag in lgq, f'wait_lg unknown tag {ins.tag}'
                idx = len(lgq) - 1 - lgq[::-1].index(ins.tag)
                n = len(lgq) - 1 - idx
                w = Ins(f's_waitcnt lgkmcnt({min(n,15)})'); emit(w)
                keep = min(n, 15)
                for t in lgq[:len(lgq)-keep]: done_lg.add(t)
                lgq = lgq[len(lgq)-keep:] if keep else []
                continue
            emit(ins)
            if ins.op == 's_waitcnt':
                m = re.search(r'vmcnt\((\d+)\)', ins.text)
                if m:
                    keep = int(m.group(1))
                    for t in vmq[:len(vmq)-keep] if keep else vmq: done_vm.add(t)
                    vmq = vmq[len(vmq)-keep:] if keep else []
                m = re.search(r'lgkmcnt\((\d+)\)', ins.text)
                if m:
                    keep = int(m.group(1))
                    for t in lgq[:len(lgq)-keep] if keep else lgq: done_lg.add(t)
                    lgq = lgq[len(lgq)-keep:] if keep else []
            elif not ins.nocount:
                if ins.cls in ('vmem','vstore'):
                    tag = ins.tag if ins.tag is not None else object()
                    vmq.append(tag); done_vm.discard(tag)
                elif ins.cls == 'ds' or ins.op.startswith('s_load') or ins.op in ('s_memtime','s_memrealtime'):
                    tag = ins.tag if ins.tag is not None else object()
                    lgq.append(tag); done_lg.discard(tag)
        return self.paginate(out)

    @staticmethod
    def sizes(out):
        import subprocess
        txt = '\n'.join(i.text for i in out if not (i.kind == 'raw' and i.text.startswith('@'))) + '\n'
        r = subprocess.run(['llvm-mc', '-arch=amdgcn', '-mcpu=gfx950', '-show-encoding'], input=txt, capture_output=True, text=True)
        assert r.returncode == 0, r.stderr[:2000]
        sz = [len(m.group(1).split(',')) for m in re.finditer(r'encoding: \[([^\]]*)\]', r.stdout)]
        return sz
    PROMO = ('v_mov_b32','v_add_f32','v_sub_f32','v_mul_f32','v_max_f32','v_min_f32','v_exp_f32','v_rcp_f32','v_rsq_f32','v_add_u32','v_and_b32',
             'v_or_b32','v_xor_b32','v_lshlrev_b32','v_lshrrev_b32','v_cndmask_b32','v_subrev_u32','v_sub_u32','v_min_u32','v_cmp_eq_u32','v_cmp_ne_u32',
             'v_cmp_lt_u32','v_cmp_gt_u32','v_mul_u32_u24')
    def paginate(self, out):
        paged = getattr(self, 'paged', False); align = getattr(self, 'align', 0)
        szl = self.sizes(out)
        it = iter(szl)
        items = []
        for ins in out:
            if ins.kind == 'raw' and ins.text.startswith('@'): items.append([ins, 0]); continue
            items.append([ins, next(it) if ins.kind not in ('label','label_np','raw') else 0])
        lines = []; size = 0; page = 0; started = False
        off = 0
        n = len(items)
        lastreal = None
        for idx, (ins, sz) in enumerate(items):
            if ins.kind == 'raw' and ins.text == '@PAGESTART':
                if paged:
                    lines.append('s_branch Lpg_0_n\n.p2align 12\nLpg_0:\ns_setpc_b64 s[100:101]\ns_nop 0\nLpg_0_n:'); started = True; size = 8; page = 1; off = 0; lastreal = None
                continue
            if paged and started and size + sz > 4096 - 16 and getattr(ins, 'op', '') not in ('s_nop',) and ins.kind not in ('label','label_np'):
                lines.append(f's_branch Lpg_{page}_n\n.p2align 12\nLpg_{page}:\ns_setpc_b64 s[100:101]\ns_nop 0\nLpg_{page}_n:'); size = 8; page += 1; off = 0; lastreal = None
            if align and sz == 8 and off % 8 == 4:
                run = 0
                for j in range(idx, min(n, idx + 12)):
                    i2, s2 = items[j]
                    if s2 == 0 and i2.kind in ('label','label_np'): continue
                    if s2 != 8 or i2.text.startswith('v_mfma'): break
                    run += 1
                promoted = False
                if lastreal is not None:
                    li, lins, lsz = lastreal
                    op = lins.text.split()[0]
                    if lsz == 4 and op in self.PROMO:
                        lines[li] = lins.text.replace(op, op + '_e64', 1); off += 4; size += 4; promoted = True
                if not promoted and run >= align:
                    lines.append('s_nop 0'); off += 4; size += 4
            lines.append(ins.text)
            if sz: lastreal = (len(lines)-1, ins, sz)
            elif ins.kind in ('label',): lastreal = None
            off += sz; size += sz
        self.npages = page
        return '\n'.join(lines) + '\n'
```

```python
import sys, struct, os
from asmgen import Kern, Ins

NAME = 'sequential_preLN__linear_kernel_hedgehog__mixer_s_mlp__prompt_kernel'
def f2u(x): return struct.unpack('<I', struct.pack('<f', x))[0]

EPOCH = 0
IDS   = 0x1000
F_KV2 = 0x2000
F_KV1 = 0x4000
F_HALO= 0x6000
FLG   = 0x8000
DBG   = 0x10000
KV1Z  = 0x60000
KV2K  = 0xA0000
KV2Z  = 0xE0000
ST    = 0x100000
HALO  = 0x180000
OB    = 0x200000
HHB   = 0x200000
HB    = 0x400000
X1B   = 0x400000
HIDB  = 0x600000
HIDS  = 44*1024
WS_BYTES = 0x10000000
OOB   = 0x40000000
INC   = 0x9E3779B0

SRD_X, SRD_WQKV, SRD_WPHI, SRD_WO, SRD_W1, SRD_W2, SRD_W3, SRD_W4, SRD_OUT, SRD_WS = [8+4*i for i in range(10)]
def srd(b): return f's[{b}:{b+3}]'
WS = srd(SRD_WS)
sX, sI, sJ, sR, sW, sA, sB, sT, sFAST, sTO, sXCC, sRHO = [f's{i}' for i in range(48, 60)]
sM0W = 's60'; sCNT = 's61'
sT0, sT1, sT2, sT3, sT4, sT5 = 's62','s63','s64','s65','s66','s67'
sMK1, sMK2, sMK3, sMKD = 's[68:69]','s[70:71]','s[72:73]','s[74:75]'
sS0 = 's[76:77]'; sLL = 's[78:79]'
sEPS = 's82'; sINV = 's83'; sTS = 's[84:85]'; sTS0 = 's86'; sF0 = 's87'; sFW = 's88'; sU0 = 's89'
sD = 's3'
sROT = 's89'
c4K, c8K, c12K, c16K = 's4', 's5', 's6', 's7'
CQ = ['0', c4K, c8K, c12K]
MF = 'v_mfma_f32_16x16x32_bf16'

STASH = ['kv1d','kv1z','kv1f','r_poll','r_kv','r_z','kv2d','kv2z','kv2f','k_poll','k_kv','k_z','o_st','o_fl','o_poll',
         'tile','flag','fpoll','st_st','st_ld','b_o','b_h','hh_st','hh_halo','hh_haloflag','hh_poll','hh_ld0','hh_ld1','hh_ld2','hh_ld3','hid_st','hid_ld','out_st','pwA','pwB','pwC','pf32','pfqkv','pf96','pf96b','selJ0','selJ1','o_st1']
AST = {n: 128+i for i, n in enumerate(STASH)}

class G:
    def __init__(self, debug=True, npages=0, opt=None):
        self.k = Kern(); self.k.paged = True; self.k.align = (opt or {}).get('align', 0)
        self.debug = debug; self.npages = npages
        self.nstamp = 0; self.stamp_names = []
        self.opt = opt or {}
        self.ool = []

    def e(self, t, tag=None, nocount=False): self.k.e(t, tag, nocount)
    def cap(self, fn, *a, **kw):
        prev = self.k.capture(); fn(*a, **kw); return self.k.end_capture(prev)
    def stash(self, n, v): self.e(f"v_accvgpr_write_b32 a{AST[n]}, {v}")
    def fetch(self, n, v): self.e(f"v_accvgpr_read_b32 {v}, a{AST[n]}")

    def weave(self, main, *sides):
        k = self.k
        pos = [0]*len(sides); acc = [0.0]*len(sides)
        for ins in main:
            k.L.append(ins)
            if ins.kind == 'i' and ins.text.startswith('v_mfma'):
                for si, (lst, per) in enumerate(sides):
                    acc[si] += per
                    while acc[si] >= 1 and pos[si] < len(lst):
                        k.L.append(lst[pos[si]]); pos[si] += 1
                        if lst[pos[si]-1].kind == 'i': acc[si] -= 1
        for si, (lst, per) in enumerate(sides): k.L += lst[pos[si]:]

    def mix(self, a, b, ratio):
        k = self.k; pb = 0; cnt = 0.0
        for ins in a:
            k.L.append(ins)
            if ins.kind == 'i':
                cnt += 1
                while cnt >= ratio and pb < len(b):
                    k.L.append(b[pb]); pb += 1
                    if b[pb-1].kind == 'i': cnt -= ratio
        k.L += b[pb:]

    def stamp(self, name):
        if not self.debug: return
        n = self.nstamp; self.nstamp += 1; self.stamp_names.append(name)
        self.e(f"""s_memtime {sTS}
s_waitcnt lgkmcnt(0)
s_sub_u32 s84, s84, {sTS0}
v_writelane_b32 v19, s84, {n}""")

    def poll(self, vaddr, vtmp, off=0):
        k = self.k
        Lp = k.label('Lpoll'); Ld = k.label('Lpd')
        self.e(f"""s_movk_i32 {sCNT}, 1
s_cmp_lg_u32 {sTO}, 0
~s_cbranch_scc1 {Lp}
s_mov_b32 {sCNT}, 0x8000
~{Lp}:
buffer_load_dword {vtmp}, {vaddr}, {WS}, 0 offen offset:{off} sc1""", nocount=True)
        self.e(f"""s_waitcnt vmcnt(0)
v_cmp_ne_u32 vcc, {sT}, {vtmp}
~s_cbranch_vccz {Ld}
{'s_sleep 1' if self.opt.get('psleep') else ''}
s_sub_u32 {sCNT}, {sCNT}, 1
s_cmp_lg_u32 {sCNT}, 0
~s_cbranch_scc1 {Lp}
s_mov_b32 {sTO}, 1
~{Ld}:""")

    def pub(self, lines, force_sc1=False, tag=None):
        k = self.k
        if force_sc1:
            for l in lines: self.e(l + ' sc1', tag=tag)
            return
        Ls = k.label('Lslow'); Ld = k.label('Lpub')
        self.e(f"s_cmp_eq_u32 {sFAST}, 0\n~s_cbranch_scc1 {Ls}")
        for l in lines: self.e(l, tag=tag)
        self.e(f"~s_branch {Ld}\n~{Ls}:")
        for l in lines: self.e(l + ' sc1', nocount=True)
        self.e(f"~{Ld}:")

    def flag(self, vaddr, offs, force_sc1=False, wait_tag=None):
        if wait_tag is None: self.e("s_waitcnt vmcnt(0)")
        else: self.k.wait_vm(wait_tag)
        if not isinstance(offs, list): offs = [offs]
        self.e("s_mov_b64 exec, 1")
        self.pub([f"buffer_store_dword v9, {vaddr}, {WS}, 0 offen offset:{o}" for o in offs], force_sc1)
        self.e("s_mov_b64 exec, -1")

    def allred(self, pairs, op):
        e = self.e
        for A, B in pairs: e(f"v_permlane32_swap_b32 {A}, {B}")
        for A, B in pairs: e(f"{op} {A}, {A}, {B}")
        for A, B in pairs: e(f"v_mov_b32 {B}, {A}")
        for A, B in pairs: e(f"v_permlane16_swap_b32 {A}, {B}")
        for A, B in pairs: e(f"{op} {A}, {A}, {B}")
        for A, B in pairs: e(f"v_mov_b32 {B}, {A}")
        for A, B in pairs: e(f"v_permlane32_swap_b32 {A}, {B}")

    def mf(self, acc, A, B, first=False, ag=False):
        r = 'a' if ag else 'v'
        self.e(f"{MF} {r}[{acc}:{acc+3}], {A}, {B}, " + ("0" if first else f"{r}[{acc}:{acc+3}]"))

    def dmag(self, srdb, soff, m0, loads, tag, sc1=False):
        self.e(f"s_add_u32 m0, {m0[0]}, {m0[1]}")
        if isinstance(soff, tuple):
            self.e(f"s_add_u32 {sD}, {soff[0]}, {soff[1]}"); so = sD
        else: so = soff
        for v, imm in loads:
            if self.opt.get('x_now') and srdb in (SRD_WO, SRD_W1, SRD_W2, SRD_W3, SRD_W4):
                self.e(f"buffer_load_dwordx4 {v}, {srd(srdb)}, {c16K} offen offset:{imm} lds", tag=tag) if self.opt['x_now'] == 2 else self.e("s_nop 0\nbuffer_load_dword a200, off, " + WS + ", 0", tag=tag)
                continue
            self.e(f"buffer_load_dwordx4 {v}, {srd(srdb)}, {so} offen offset:{imm}{' sc1' if sc1 else ''} lds", tag=tag)
    def rot_chunk(self, c):
        self.e(f"s_add_u32 s0, {sROT}, {c}\ns_and_b32 s0, s0, 7\ns_mul_i32 s1, s0, {64*3072}\ns_lshl_b32 s0, s0, 7")
    def dma_wqkv(self, c, part, ldsbase, tag, rot=True):
        if rot: self.rot_chunk(c)
        self.dmag(SRD_WQKV, ('s1', part*1024) if part else 's1', (sM0W, ldsbase), [('v6', 0), ('v7', 1024)], tag)
    def dma_k(self, c):
        self.rot_chunk(c)
        self.dmag(SRD_X, 's0', (sM0W, c*8192), [('v4', 0), ('v5', 1024)], f'k{c}')
        self.dma_wqkv(c, 1, 65536 + c*8192, f'k{c}', rot=False)
    W4V = [('v8', 0), ('v10', 1024), ('v11', 2048), ('v255', 3072)]
    def dma_w64(self, srdb, ldsbase, tag, groups):
        for g in groups:
            self.e(f"s_add_u32 s0, {sI}, {g}\ns_and_b32 s0, s0, 3\ns_lshl_b32 s1, s0, 15\ns_add_u32 s1, s1, s97\ns_lshl_b32 s0, s0, 12\ns_add_u32 s0, s0, s96")
            self.dmag(srdb, 's1', ('s0', ldsbase), self.W4V, tag)

    def dma_w64_3w(self, srdw, base, nm, ns):
        e = self.e
        e(f"s_lshl_b32 {sT1}, {sI}, 2\ns_add_u32 {sT0}, {sT1}, {sW}\ns_sub_u32 {sT0}, {sT0}, 1")
        for kk in ns:
            e(f"s_add_u32 s0, {sT0}, {3*kk}\ns_and_b32 s0, s0, 15\ns_lshl_b32 s1, s0, 15\ns_lshl_b32 s0, s0, 12")
            if kk == 5:
                L = self.k.label('Lw3s')
                e(f"s_cmp_lg_u32 {sW}, 1\n~s_cbranch_scc1 {L}")
            self.dmag(srdw, 's1', ('s0', base), self.W4V, nm)
            if kk == 5: e(f"~{L}:")

    def touches(self, pages, waves=(0, 1, 2, 3)):
        e = self.e; k = self.k
        if not self.npages: return
        pc = k.label('Lpc')
        e(f"s_getpc_b64 s[92:93]\n{pc}:")
        for wi, w in enumerate(waves):
            mine = [p for p in pages[wi::len(waves)] if p < self.npages]
            if not mine: continue
            L = k.label('Ltouch')
            e(f"s_cmp_eq_u32 {sW}, {w}\ns_cbranch_scc0 {L}")
            for p in mine:
                e(f"s_add_u32 s98, s92, Lpg_{p}-{pc}\ns_addc_u32 s99, s93, 0\ns_swappc_b64 s[100:101], s[98:99]")
            e(f"{L}:")

    PTRS = [(SRD_X,0,0x200000),(SRD_WQKV,8,0x180000),(SRD_WS,88,WS_BYTES),(SRD_WPHI,16,0x4000),(SRD_WO,24,0x80000),
            (SRD_W1,40,0x80000),(SRD_W2,48,0x80000),(SRD_W3,56,512*1376*2),(SRD_W4,64,1376*512*2),(SRD_OUT,72,0x200000)]

    def prologue(self):
        e = self.e; k = self.k; o = self.opt
        e(f"s_cmp_ge_u32 s2, 256\ns_cbranch_scc1 L_end")
        e(f"s_load_dwordx4 s[8:11], s[0:1], 0")
        if self.debug or o.get('dbgout'): e(f"s_memtime s[86:87]\ns_memrealtime s[90:91]")
        e(f"""
v_lshrrev_b32 v2, 6, v0
v_and_b32 v0, 63, v0
s_and_b32 {sX}, s2, 7
s_lshr_b32 {sT0}, s2, 3
v_readfirstlane_b32 {sW}, v2
s_and_b32 {sJ}, {sT0}, 7
s_lshr_b32 {sI}, {sT0}, 3
s_lshl_b32 {sR}, {sX}, 2
s_add_u32 {sR}, {sR}, {sI}
v_lshrrev_b32 v3, 4, v0
v_lshrrev_b32 v10, 3, v0
v_and_b32 v11, 7, v0
v_lshlrev_b32 v13, 10, v10
v_xor_b32 v14, v11, v3
v_mul_u32_u24 v15, 3072, v10
v_and_b32 v16, 2, v10
v_xor_b32 v16, v11, v16
s_lshl_b32 {sM0W}, {sW}, 11
s_lshl_b32 {sT0}, {sR}, 16
s_lshl_b32 {sT1}, {sW}, 14
s_add_u32 {sT0}, {sT0}, {sT1}
s_mul_i32 {sT2}, {sW}, {16*3072}
s_lshl_b32 {sT1}, {sJ}, 7
s_add_u32 {sT2}, {sT2}, {sT1}
v_add_u32 v13, {sT0}, v13
v_add_u32 v15, {sT2}, v15
v_lshl_add_u32 v4, v14, 4, v13
v_lshl_add_u32 v6, v16, 4, v15
v_xor_b32 v14, 4, v14
v_xor_b32 v16, 4, v16
v_lshl_add_u32 v5, v14, 4, v13
v_lshl_add_u32 v7, v16, 4, v15
v_add_u32 v5, 0x1c00, v5
v_add_u32 v7, {8*3072-1024}, v7
s_lshl_b32 {sROT}, {sI}, 1
s_add_u32 {sROT}, {sROT}, {sJ}
s_waitcnt lgkmcnt(0)
s_mov_b32 s12, s10
s_mov_b32 s13, s11
s_mov_b32 s{SRD_X+2}, 0x200000
s_mov_b32 s{SRD_X+3}, 0x20000
s_mov_b32 s{SRD_WQKV+2}, 0x180000
s_mov_b32 s{SRD_WQKV+3}, 0x20000
""")
        if o.get('prstamp'): self.stamp('  pr karg')
        for b,off,sz in self.PTRS[2:]: e(f"s_load_dwordx2 s[{b}:{b+1}], s[0:1], {off}")
        if o.get('dbgout'): e("s_load_dwordx2 s[84:85], s[0:1], 80")
        self.D1 = o.get('pk_depth', 4)
        def setups():
            if self.npages:
                e(f"""s_getpc_b64 s[92:93]
~L_cpc:
s_lshr_b32 {sT0}, s2, 3
s_lshl_b32 {sT0}, {sT0}, 2
s_add_u32 {sT0}, {sT0}, {sW}
s_lshl_b32 {sT0}, {sT0}, 9
v_and_b32 v18, 3, v0
v_lshlrev_b32 v18, 7, v18
v_add_u32 v18, {sT0}, v18
s_add_u32 s92, s92, Lpg_0-L_cpc
s_addc_u32 s93, s93, 0
v_min_u32 v18, {self.npages*4096 - 128}, v18
global_load_dword a200, v18, s[92:93]""", tag='cpf')
            e(f"""
v_and_b32 v2, 15, v0
s_lshr_b32 {sA}, {sW}, 1
s_and_b32 {sB}, {sW}, 1
v_lshlrev_b32 v1, 4, v0
s_lshl_b32 {sRHO}, {sR}, 2
s_add_u32 {sRHO}, {sRHO}, {sW}
s_mov_b32 {sTO}, 0
s_getreg_b32 {sXCC}, hwreg(HW_REG_XCC_ID, 0, 4)
s_lshl_b32 s96, {sW}, 14
s_lshl_b32 s97, {sW}, 17
s_movk_i32 {c4K}, 0x1000
s_movk_i32 {c8K}, 0x2000
s_movk_i32 {c12K}, 0x3000
s_movk_i32 {c16K}, 0x4000
v_lshrrev_b32 v13, 1, v2
v_xor_b32 v13, v13, v3
v_and_b32 v13, 7, v13
v_lshlrev_b32 v13, 4, v13
v_lshl_add_u32 v13, v2, 7, v13
s_lshl_b32 {sT0}, {sA}, 12
s_lshl_b32 {sT1}, {sB}, 11
s_add_u32 {sT0}, {sT0}, {sT1}
v_add_u32 v10, {sT0}, v13
v_xor_b32 v11, 64, v10
v_xor_b32 v248, 0x800, v10
v_xor_b32 v249, 0x800, v11
v_lshrrev_b32 v13, 2, v2
v_and_b32 v14, 2, v13
v_and_b32 v15, 1, v3
v_lshl_or_b32 v14, v15, 2, v14
v_bfe_u32 v15, v2, 1, 1
v_xor_b32 v14, v14, v15
v_lshlrev_b32 v14, 4, v14
v_and_b32 v15, 1, v2
v_lshl_add_u32 v14, v15, 3, v14
v_lshl_add_u32 v15, v3, 3, v13
v_lshl_add_u32 v16, v15, 7, v14
v_lshl_add_u32 v15, v3, 2, v13
v_lshl_add_u32 v17, v15, 7, v14
s_lshl_b32 {sT0}, {sB}, 6
v_xor_b32 v12, {sT0}, v16
v_xor_b32 v13, 32, v12
v_add_u32 v34, 0x10000, v12
v_add_u32 v35, 0x10000, v13
v_lshrrev_b32 v30, 2, v2
v_lshl_add_u32 v30, v3, 2, v30
v_lshlrev_b32 v30, 5, v30
v_and_b32 v31, 3, v2
v_lshl_add_u32 v30, v31, 3, v30
v_mov_b32 v14, v17
v_xor_b32 v15, 32, v17
v_xor_b32 v16, 64, v17
v_xor_b32 v17, 0x60, v17
v_mov_b32 v20, 0x3f803f80
v_mov_b32 v21, 0x3f803f80
v_mov_b32 v22, 0x3f803f80
v_mov_b32 v23, 0x3f803f80
""")
        st = self.cap(setups)
        d0 = self.cap(lambda: (self.dma_k(0), self.rot_chunk(1), self.dma_wqkv(1, 1, 65536 + 8192, 'k1w', rot=False)))
        k.L += d0
        k.L += st
        if o.get('prstamp'): self.stamp('  pr ess')
        e("s_waitcnt lgkmcnt(0)")
        for b,off,sz in self.PTRS[2:]: e(f"s_mov_b32 s{b+2}, {hex(sz)}\ns_mov_b32 s{b+3}, 0x20000")
        e(f"s_load_dword {sT}, s[{SRD_WS}:{SRD_WS+1}], {EPOCH}")
        self.setup_b()
        self.setup_addr(0)
        self.prewarm()
        if o.get('prstamp'): self.stamp('  pr setups')
        if o.get('ptouch', 0): self.touches([0, 1, 2])
        self.rot_chunk(1)
        self.dmag(SRD_X, 's0', (sM0W, 8192), [('v4', 0), ('v5', 1024)], 'k1')
        for c in range(2, self.D1): self.dma_k(c)
        e("s_waitcnt lgkmcnt(0)")
        self.setup_ids()

    def setup_ids(self):
        e = self.e
        L = 1.4426950408889634; c0 = -2.0*L*0.7978845608028654
        e(f"""
s_add_u32 {sT}, {sT}, {hex(INC)}
v_mov_b32 v9, {sT}
s_add_u32 {sT0}, {sT}, {sXCC}
v_mov_b32 v18, {sT0}
s_lshl_b32 {sT1}, {sX}, 7
s_lshl_b32 {sT2}, {sI}, 5
s_add_u32 {sT1}, {sT1}, {sT2}
s_lshl_b32 {sT2}, {sJ}, 2
s_add_u32 {sT1}, {sT1}, {sT2}
s_add_u32 {sT1}, {sT1}, {IDS}
s_cmp_lg_u32 {sW}, 0
s_cselect_b32 {sT1}, {hex(OOB)}, {sT1}
v_mov_b32 v36, {sT1}
v_mov_b32 v37, {hex(OOB)}
v_cmp_eq_u32 vcc, 0, v0
v_cndmask_b32 v36, v37, v36, vcc
buffer_store_dword v18, v36, {WS}, 0 offen sc1
s_mov_b32 s78, {hex(f2u(L))}
s_mov_b32 s79, {hex(f2u(-L))}
s_mov_b32 s80, {hex(f2u(c0))}
s_mov_b32 s81, {hex(f2u(c0*0.044715))}
s_mov_b32 {sEPS}, {hex(f2u(1e-5))}
s_mov_b32 {sINV}, {hex(f2u(1.0/512))}
s_mov_b32 s94, 1.0
s_mov_b32 s95, 1.0
""")

    def setup_b(self):
        e = self.e
        e(f"""
v_and_b32 v36, 3, v2
v_cmp_eq_u32 {sMK1}, 1, v36
v_cmp_eq_u32 {sMK2}, 2, v36
v_cmp_eq_u32 {sMK3}, 3, v36
v_lshrrev_b32 v37, 2, v2
v_cmp_eq_u32 {sMKD}, v37, v3
v_cmp_eq_u32 {sS0}, 0, v2
v_and_b32 v36, 1, v2
v_lshlrev_b32 v36, 4, v36
v_mov_b32 v37, 0x3f80
v_lshlrev_b32 v37, v36, v37
v_and_b32 v36, 2, v2
v_cmp_eq_u32 vcc, 0, v36
v_cndmask_b32 v38, 0, v37, vcc
v_cndmask_b32 v39, v37, 0, vcc
v_accvgpr_write_b32 a{AST['selJ0']}, v38
v_accvgpr_write_b32 a{AST['selJ1']}, v39
v_cndmask_b32 v37, 0, v37, {sMKD}
v_mov_b32 v24, 0
v_mov_b32 v25, 0
v_mov_b32 v28, 0
v_mov_b32 v29, 0
v_cndmask_b32 v26, 0, v37, vcc
v_cndmask_b32 v27, v37, 0, vcc
v_lshrrev_b32 v18, 3, v0
v_and_b32 v36, 6, v18
v_and_b32 v8, 7, v0
v_xor_b32 v8, v8, v36
v_lshlrev_b32 v8, 4, v8
v_lshl_add_u32 v8, v18, 10, v8
s_lshl_b32 {sT0}, {sJ}, 7
v_add_u32 v8, {sT0}, v8
""")

    def setup_addr(self, part):
        e0 = self.e
        if part == 0: R = {'v36':'v36','v37':'v37','v38':'v38','v39':'v39'}
        elif part == 2: R = {'v36':'v232','v37':'v233','v38':'v234','v39':'v235'}
        else: R = {'v36':'v248','v37':'v249','v38':'v250','v39':'v251'}
        def e(t):
            for a, b in R.items(): t = t.replace(a, b)
            e0(t)
        def st(n, v): self.stash(n, R[v])
        e(f"v_and_b32 v38, 7, v0\nv_lshlrev_b32 v38, 2, v38\nv_lshlrev_b32 v39, 4, v3")
        if part == 1:
            self._late_part = 1; return self.setup_addr_late(e, st)
        if part == 3: return self.setup_addr_late2(e, st)
        if part == 2:
            e(f"""s_mul_i32 {sT2}, {sX}, {16*HIDS}
s_add_u32 {sT2}, {sT2}, {HIDB}
s_lshl_b32 {sT4}, {sX}, 5""")
            return self.setup_addr_red(e, st)
        e(f"""s_lshl_b32 {sT0}, {sJ}, 2
s_lshl_b32 {sT1}, {sB}, 1
s_add_u32 {sT0}, {sT0}, {sT1}
s_lshl_b32 {sT1}, {sI}, 1
s_add_u32 {sT1}, {sT1}, {sA}
s_mul_i32 {sT2}, {sX}, {16*HIDS}
s_add_u32 {sT2}, {sT2}, {HIDB}
s_lshl_b32 {sT3}, {sT0}, 13
s_add_u32 {sT3}, {sT3}, {sT2}
s_lshl_b32 {sT4}, {sT1}, 10
s_add_u32 {sT3}, {sT3}, {sT4}
v_add_u32 v36, {sT3}, v1""")
        st('kv1d', 'v36')
        e(f"""s_lshl_b32 {sT4}, {sX}, 5
s_add_u32 {sT0}, {sT0}, {sT4}
s_lshl_b32 {sT3}, {sT0}, 10
s_lshl_b32 {sT5}, {sT1}, 7
s_add_u32 {sT3}, {sT3}, {sT5}
s_add_u32 {sT3}, {sT3}, {KV1Z}
v_add_u32 v36, {sT3}, v39""")
        st('kv1z', 'v36')
        e(f"""s_lshl_b32 {sT3}, {sT0}, 5
s_lshl_b32 {sT1}, {sT1}, 2
s_add_u32 {sT3}, {sT3}, {sT1}
s_add_u32 {sT3}, {sT3}, {F_KV1}
v_mov_b32 v36, {sT3}""")
        st('kv1f', 'v36')
        if part == 0: return

    def setup_addr_red(self, e, st):
        e(f"""s_lshl_b32 {sT0}, {sJ}, 2
s_add_u32 {sT0}, {sT0}, {sI}
s_add_u32 {sT1}, {sT4}, {sT0}
s_lshl_b32 {sT3}, {sT1}, 5
s_add_u32 {sT3}, {sT3}, {F_KV1}
v_add_u32 v36, {sT3}, v38""")
        st('r_poll', 'v36')
        e(f"""s_lshl_b32 {sT3}, {sT0}, 13
s_add_u32 {sT3}, {sT3}, {sT2}
v_add_u32 v36, {sT3}, v1""")
        st('r_kv', 'v36')
        e(f"""v_lshrrev_b32 v37, 2, v0
v_lshlrev_b32 v37, 7, v37
v_and_b32 v36, 3, v0
v_lshl_add_u32 v37, v36, 4, v37
v_mov_b32 v36, {hex(OOB)}
v_cmp_gt_u32 vcc, 32, v0
v_cndmask_b32 v37, v36, v37, vcc
s_lshl_b32 {sT3}, {sT1}, 10
s_add_u32 {sT3}, {sT3}, {KV1Z}
v_add_u32 v36, {sT3}, v37""")
        st('r_z', 'v36')
        e(f"""s_lshl_b32 {sT1}, {sT0}, 3
s_add_u32 {sT1}, {sT1}, {sX}
s_lshl_b32 {sT3}, {sT1}, 10
s_add_u32 {sT3}, {sT3}, {KV2K}
v_add_u32 v36, {sT3}, v1""")
        st('kv2d', 'v36')
        e(f"""s_lshl_b32 {sT3}, {sT1}, 7
s_add_u32 {sT3}, {sT3}, {KV2Z}
v_add_u32 v36, {sT3}, v1""")
        st('kv2z', 'v36')
        e(f"""s_lshl_b32 {sT3}, {sT0}, 7
s_lshl_b32 {sT1}, {sX}, 2
s_add_u32 {sT3}, {sT3}, {sT1}
s_add_u32 {sT3}, {sT3}, {F_KV2}
v_mov_b32 v36, {sT3}""")
        st('kv2f', 'v36')
        e(f"""s_lshl_b32 {sT0}, {sJ}, 2
s_add_u32 {sT0}, {sT0}, {sW}
s_lshl_b32 {sT3}, {sT0}, 7
s_add_u32 {sT3}, {sT3}, {F_KV2}
v_add_u32 v36, {sT3}, v38""")
        st('k_poll', 'v36')
        e(f"""s_lshl_b32 {sT3}, {sT0}, 13
s_add_u32 {sT3}, {sT3}, {KV2K}
v_add_u32 v36, {sT3}, v1""")
        st('k_kv', 'v36')
        e(f"""s_lshl_b32 {sT3}, {sT0}, 10
s_add_u32 {sT3}, {sT3}, {KV2Z}
v_add_u32 v36, {sT3}, v37""")
        st('k_z', 'v36')

    def setup_addr_late(self, e, st):
        e(f"""s_lshl_b32 {sT0}, {sR}, 2
s_lshl_b32 {sT1}, {sA}, 1
s_add_u32 {sT0}, {sT0}, {sT1}
s_lshl_b32 {sT1}, {sJ}, 1
s_add_u32 {sT1}, {sT1}, {sB}
s_lshl_b32 {sT3}, {sT0}, 14
s_lshl_b32 {sT4}, {sT1}, 10
s_add_u32 {sT3}, {sT3}, {sT4}
s_add_u32 {sT3}, {sT3}, {OB}
s_lshl_b32 {sT4}, {sB}, 14
s_add_u32 {sT5}, {sT3}, {sT4}
v_add_u32 v36, {sT5}, v1""")
        st('o_st', 'v36')
        e(f"""s_xor_b32 {sT4}, {sT4}, 0x4000
s_add_u32 {sT5}, {sT3}, {sT4}
v_add_u32 v36, {sT5}, v1""")
        st('o_st1', 'v36')
        e(f"""s_lshl_b32 {sT3}, {sT0}, 8
s_add_u32 {sT3}, {sT3}, {FLG+128}
s_lshl_b32 {sT4}, {sT1}, 2
s_add_u32 {sT4}, {sT4}, {sT3}
v_mov_b32 v36, {sT4}""")
        st('o_fl', 'v36')
        e(f"v_lshlrev_b32 v36, 2, v2\nv_add_u32 v36, {sT3}, v36")
        st('o_poll', 'v36')
        if getattr(self, '_late_part', 0) == 1: return
        self.setup_addr_late2(e, st)

    def setup_addr_late2(self, e, st):
        e(f"""s_lshl_b32 {sT0}, {sRHO}, 14
s_lshl_b32 {sT1}, {sJ}, 11
s_add_u32 {sT3}, {sT0}, {sT1}
s_add_u32 {sT3}, {sT3}, {HB}
v_add_u32 v36, {sT3}, v1""")
        st('tile', 'v36')
        e(f"""s_lshl_b32 {sT2}, {sRHO}, 8
s_add_u32 {sT2}, {sT2}, {FLG}
s_lshl_b32 {sT3}, {sJ}, 2
s_add_u32 {sT3}, {sT3}, {sT2}
v_mov_b32 v36, {sT3}""")
        st('flag', 'v36')
        e(f"v_add_u32 v36, {sT2}, v38")
        st('fpoll', 'v36')
        e(f"""s_lshl_b32 {sT3}, {sRHO}, 12
s_add_u32 {sT3}, {sT3}, {ST}
v_lshlrev_b32 v37, 6, v2
v_add_u32 v37, {sT3}, v37
v_add_u32 v36, v39, v37""")
        st('st_ld', 'v36')
        e(f"s_lshl_b32 {sT3}, {sJ}, 3\nv_add_u32 v36, {sT3}, v37")
        st('st_st', 'v36')
        e(f"s_add_u32 {sT3}, {sT0}, {OB}\nv_add_u32 v36, {sT3}, v1")
        st('b_o', 'v36')
        e(f"s_add_u32 {sT3}, {sT0}, {HB}\nv_add_u32 v36, {sT3}, v1")
        st('b_h', 'v36')
        e(f"""s_mul_i32 {sT3}, {sRHO}, {HIDS}
s_add_u32 {sT3}, {sT3}, {HIDB}
v_add_u32 v36, {sT3}, v1""")
        st('hid_ld', 'v36')
        st('hid_st', 'v36')
        e(f"""s_lshl_b32 {sT0}, {sRHO}, 14
s_lshl_b32 {sT1}, {sJ}, 7
s_add_u32 {sT0}, {sT0}, {sT1}
v_and_b32 v36, 1, v3
v_lshlrev_b32 v36, 5, v36
v_lshrrev_b32 v37, 1, v3
v_lshl_add_u32 v36, v37, 4, v36
v_lshl_add_u32 v36, v2, 10, v36
v_add_u32 v36, {sT0}, v36""")
        st('out_st', 'v36')

    def setup_shift(self, part=0):
        e = self.e; st = self.stash
        e(f"""s_lshr_b32 {sT0}, {sJ}, 2
s_add_u32 {sT0}, {sT0}, 1
s_bitcmp1_b32 {sJ}, 1
s_cselect_b32 {sT1}, -1, 1
s_mul_i32 {sT0}, {sT0}, {sT1}
{'s_mov_b32 ' + sT0 + ', 0' if self.opt.get('x_noshift') else ''}
s_lshl_b32 {sT1}, {sRHO}, 4
s_add_u32 {sT1}, {sT1}, {sT0}
v_add_u32 v36, {sT1}, v2
v_lshrrev_b32 v37, 4, v36
v_lshlrev_b32 v37, 14, v37
v_and_b32 v38, 15, v36
v_lshl_add_u32 v38, v3, 4, v38
v_lshlrev_b32 v38, 4, v38
v_add_u32 v37, v37, v38
s_lshl_b32 {sT1}, {sJ}, 11
s_add_u32 {sT2}, {sT1}, {HHB}
v_add_u32 v37, {sT2}, v37
s_lshl_b32 {sT2}, {sX}, 8
v_subrev_u32 v36, {sT2}, v36
v_cmp_lt_u32 vcc, 0xff, v36
v_mov_b32 v36, {hex(OOB)}
v_cndmask_b32 v37, v37, v36, vcc
s_mov_b64 s[68:69], vcc""")
        st('hh_st', 'v37')
        e(f"""s_lshl_b32 {sT2}, {sX}, 1
s_add_u32 {sT3}, {sT2}, 2
s_sub_u32 {sT2}, {sT2}, 1
s_cmp_gt_i32 {sT0}, 0
s_cselect_b32 {sT2}, {sT3}, {sT2}
s_lshl_b32 {sT3}, {sT2}, 14
s_add_u32 {sT3}, {sT3}, {sT1}
s_add_u32 {sT3}, {sT3}, {HALO}
v_add_u32 v36, {sT3}, v38""")
        st('hh_halo', 'v36')
        e(f"""s_lshl_b32 {sT3}, {sT2}, 5
s_lshl_b32 {sT1}, {sJ}, 2
s_add_u32 {sT3}, {sT3}, {sT1}
s_add_u32 {sT3}, {sT3}, {F_HALO}
v_mov_b32 v36, {sT3}
s_cmp_lt_u32 {sT2}, 16
s_cselect_b64 s[68:69], s[68:69], 0""")
        st('hh_haloflag', 'v36')
        if part == 0: return
        self.setup_shift_cons()

    def setup_shift_cons(self):
        e = self.e; st = self.stash
        e(f"""s_lshl_b32 {sT0}, {sRHO}, 8
s_add_u32 {sT0}, {sT0}, {FLG+32}
v_and_b32 v38, 7, v0
v_lshlrev_b32 v38, 2, v38
v_add_u32 v39, {sT0}, v38
s_and_b32 {sT1}, {sRHO}, 15
s_sub_u32 {sT2}, {sT0}, 256
s_cmp_eq_u32 {sT1}, 0
s_cselect_b32 {sT2}, {sT0}, {sT2}
s_add_u32 {sT4}, {sT0}, 256
s_cmp_eq_u32 {sT1}, 15
s_cselect_b32 {sT4}, {sT0}, {sT4}
s_cselect_b32 s93, 1, 0
v_lshrrev_b32 v36, 3, v0
v_bfe_u32 v37, v0, 1, 1
v_lshl_or_b32 v36, v36, 1, v37
v_add_u32 v37, {sT2}, v38
v_cmp_eq_u32 vcc, 2, v36
v_cndmask_b32 v39, v39, v37, vcc
v_add_u32 v37, {sT4}, v38
v_cmp_eq_u32 vcc, 5, v36
v_cndmask_b32 v39, v39, v37, vcc""")
        st('hh_poll', 'v39')
        e(f"""s_lshl_b32 s70, {sX}, 6
s_add_u32 s70, s70, {F_HALO}
s_lshl_b32 {sT2}, s93, 5
s_add_u32 s70, s70, {sT2}
s_cmp_eq_u32 {sT1}, 0
s_cselect_b32 s71, 1, 0
s_cmp_eq_u32 {sT1}, 15
s_cselect_b32 s71, 2, s71
s_cmp_eq_u32 {sRHO}, 0
s_cselect_b32 s71, 0, s71
s_cmp_eq_u32 {sRHO}, 127
s_cselect_b32 s71, 0, s71
s_lshl_b32 {sT2}, {sX}, 15
s_add_u32 {sT2}, {sT2}, {HALO}
s_add_u32 {sT3}, {sT2}, 16384
s_cmp_eq_u32 {sRHO}, 0
s_cselect_b32 {sT2}, {hex(OOB)}, {sT2}
s_cmp_eq_u32 {sRHO}, 127
s_cselect_b32 {sT3}, {hex(OOB)}, {sT3}
s_lshl_b32 {sT0}, {sRHO}, 14
s_add_u32 {sT0}, {sT0}, {OB}
v_add_u32 v36, {sT0}, v1
v_add_u32 v37, {sT2}, v1
v_add_u32 v38, {sT3}, v1
s_cmp_eq_u32 {sT1}, 0
s_cselect_b32 {sT4}, 1, 0
s_mov_b32 {sT5}, s93""")
        for q, (mag, lo) in enumerate(((1, True), (1, False), (2, True), (2, False))):
            d = f'v{248+q}'
            if lo: e(f"s_mul_i32 {sT0}, {sT4}, {mag}\nv_cmp_gt_u32 vcc, {sT0}, v2\nv_cndmask_b32 {d}, v36, v37, vcc")
            else:  e(f"s_mul_i32 {sT0}, {sT5}, {mag}\ns_sub_u32 {sT0}, 15, {sT0}\nv_cmp_lt_u32 vcc, {sT0}, v2\nv_cndmask_b32 {d}, v36, v38, vcc")
            if q: e(f"v_add_u32 {d}, {q*4096}, {d}")
        e(f"s_cmp_eq_u32 s93, 1\ns_cselect_b64 s[72:73], -1, 0")
        for pg, (qh, ql) in enumerate(((0,1),(2,3),(1,0),(3,2))):
            e(f"v_cndmask_b32 v39, v{248+ql}, v{248+qh}, s[72:73]")
            st(f'hh_ld{pg}', 'v39')

    def prewarm(self):
        e = self.e
        e(f"""s_lshl_b32 {sT0}, {sRHO}, 14
s_lshl_b32 {sT1}, {sJ}, 11
s_add_u32 {sT0}, {sT0}, {sT1}
v_and_b32 v36, 15, v0
v_lshlrev_b32 v36, 7, v36                ; (l&15)*128
s_add_u32 {sT1}, {sT0}, {OB}
v_add_u32 v37, {sT1}, v36                ; lanes 0-15: O
s_add_u32 {sT1}, {sT0}, {HB}
v_add_u32 v38, {sT1}, v36                ; lanes 16-31: H
v_cmp_lt_u32 vcc, 15, v0
v_cndmask_b32 v37, v37, v38, vcc""")
        self.fetch('kv1d', 'v38')
        e(f"""v_and_b32 v39, 7, v0
v_lshlrev_b32 v39, 7, v39
v_readfirstlane_b32 {sT1}, v38
v_bfe_u32 v38, v0, 3, 1
v_lshlrev_b32 v38, 13, v38
v_add_u32 v39, v39, v38
v_add_u32 v39, {sT1}, v39
v_cmp_lt_u32 vcc, 31, v0
v_cndmask_b32 v37, v37, v39, vcc""")
        self.fetch('kv1z', 'v38')
        e(f"""v_and_b32 v39, 1, v0
v_readfirstlane_b32 {sT1}, v38
v_lshlrev_b32 v39, 10, v39
v_add_u32 v39, {sT1}, v39                ; z lines (+0,+1024)
s_lshl_b32 {sT2}, {sRHO}, 12
s_lshl_b32 {sT3}, {sJ}, 7
s_add_u32 {sT2}, {sT2}, {sT3}
s_add_u32 {sT2}, {sT2}, {ST}
v_and_b32 v38, 1, v0
v_lshlrev_b32 v38, 11, v38
v_add_u32 v38, {sT2}, v38
v_cmp_lt_u32 vcc, 55, v0
v_cndmask_b32 v39, v39, v38, vcc
v_cmp_lt_u32 vcc, 47, v0
v_cndmask_b32 v37, v37, v39, vcc
v_accvgpr_write_b32 a{AST['pwA']}, v37
s_mul_i32 {sT1}, {sRHO}, {HIDS}
s_mul_i32 {sT2}, {sJ}, 192
s_mul_i32 {sT3}, {sJ}, 160
s_add_u32 {sT3}, {sT3}, 96
s_cmp_lt_u32 {sJ}, 3
s_cselect_b32 {sF0}, {sT2}, {sT3}
s_cselect_b32 {sFW}, 8, 4
s_mul_i32 {sT2}, {sJ}, 6144
s_add_u32 {sT1}, {sT1}, {sT2}
s_add_u32 {sT1}, {sT1}, {HIDB}
v_min_u32 v38, 47, v0
v_lshlrev_b32 v38, 7, v38
v_add_u32 v38, {sT1}, v38
v_accvgpr_write_b32 a{AST['pwB']}, v38
s_lshl_b32 {sT0}, {sRHO}, 14
s_lshl_b32 {sT1}, {sJ}, 7
s_add_u32 {sT0}, {sT0}, {sT1}
v_lshlrev_b32 v36, 3, v36                ; (l&15)*1024
v_add_u32 v36, {sT0}, v36
v_accvgpr_write_b32 a{AST['pwC']}, v36
s_lshr_b32 {sT0}, s2, 3
s_lshl_b32 {sT0}, {sT0}, 2
s_add_u32 {sT0}, {sT0}, {sW}
s_lshl_b32 {sT1}, {sT0}, 5
v_and_b32 v36, 31, v0
v_add_u32 v36, {sT1}, v36
v_lshlrev_b32 v37, 7, v36
v_accvgpr_write_b32 a{AST['pf32']}, v37
v_lshrrev_b32 v37, 3, v36
v_mul_u32_u24 v37, 3072, v37
v_and_b32 v36, 7, v36
v_lshl_add_u32 v37, v36, 7, v37
v_accvgpr_write_b32 a{AST['pfqkv']}, v37
s_mul_i32 {sT1}, {sT0}, 96
v_add_u32 v36, {sT1}, v0
v_lshlrev_b32 v36, 7, v36
v_accvgpr_write_b32 a{AST['pf96']}, v36
v_and_b32 v37, 31, v0
v_add_u32 v37, {sT1}, v37
v_lshlrev_b32 v37, 7, v37
v_add_u32 v37, 0x2000, v37
v_accvgpr_write_b32 a{AST['pf96b']}, v37""")

    def pf(self, what, vt):
        e = self.e
        if not self.opt.get('pf'): return
        if what in ('wv', 'wq'):
            self.fetch('pfqkv', vt)
            e(f"s_movk_i32 {sD}, {2048 if what == 'wv' else 0}\nbuffer_load_dword a200, {vt}, {srd(SRD_WQKV)}, {sD} offen", tag='pf')
        elif what in ('wo', 'w1', 'w2'):
            self.fetch('pf32', vt)
            e(f"buffer_load_dword a200, {vt}, {srd({'wo': SRD_WO, 'w1': SRD_W1, 'w2': SRD_W2}[what])}, 0 offen", tag='pf')
        else:
            sr = srd(SRD_W3 if what[:2] == 'w3' else SRD_W4)
            self.fetch('pf96' if what[2] == 'a' else 'pf96b', vt)
            e(f"buffer_load_dword a200, {vt}, {sr}, 0 offen", tag='pf')

    def prewarm_issue(self, which, vt):
        self.fetch(which, vt)
        self.e(f"buffer_load_dword a200, {vt}, {WS}, 0 offen", tag='pw')

    def xa(self, ee, t): return f"a[{(ee*16+t)*4}:{(ee*16+t)*4+3}]"
    def wreads(self, c, off, tagp, withx=False):
        buf = 128 + (c % 2)*16
        for u in range(2):
            t = 2*c+u
            if withx:
                for ee in range(2):
                    self.e(f"ds_read_b128 {self.xa(ee,t)}, v{(10 if ee == 0 else 248)+u} offset:{c*8192}", tag=f'{tagp}{c}')
            for ep in range(2):
                wb = buf + (u*2+ep)*4
                for h in range(2):
                    self.e(f"ds_read_b64_tr_b16 v[{wb+2*h}:{wb+2*h+1}], v{34+ep} offset:{off + u*4096 + h*512}", tag=f'{tagp}{c}')
    def mfma_k(self, c):
        buf = 128 + (c % 2)*16
        for u in range(2):
            t = 2*c+u
            for ep in range(2):
                wb = buf + (u*2+ep)*4
                for ee in range(2): self.mf(40 + (ep*2+ee)*4, f"v[{wb}:{wb+3}]", self.xa(ee,t), t == 0)
                self.mf(56+ep*4, f"v[{wb}:{wb+3}]", "v[20:23]", t == 0)
            self.mf(64, "v[20:23]", self.xa(0,t), t == 0)
            self.mf(72, self.xa(0,t), self.xa(0,t), t == 0)
    def mfma_vq(self, c, which):
        buf = 128 + (c % 2)*16
        for u in range(2):
            t = 2*c+u
            for ep in range(2):
                wb = buf + (u*2+ep)*4
                for ee in range(2):
                    if which == 'v': self.mf(80 + (ee*2+ep)*4, self.xa(ee,t), f"v[{wb}:{wb+3}]", t == 0)
                    else: self.mf(104 + (ep*2+ee)*4, f"v[{wb}:{wb+3}]", self.xa(ee,t), t == 0)
                if which == 'v': self.mf(96+ep*4, "v[20:23]", f"v[{wb}:{wb+3}]", t == 0)
                else: self.mf(120+ep*4, f"v[{wb}:{wb+3}]", "v[20:23]", t == 0)

    def ids_issue(self):
        self.e(f"""s_lshl_b32 s92, {sX}, 7
s_add_u32 s92, s92, {IDS}
v_and_b32 v250, 31, v0
v_lshlrev_b32 v250, 2, v250
v_add_u32 v250, s92, v250""")
        self.e(f"buffer_load_dword v251, v250, {WS}, 0 offen sc1", tag='ids')
    def ids_check(self):
        e = self.e; k = self.k
        Lp = k.label('Lid'); Ld = k.label('Lidd')
        k.wait_vm('ids')
        e(f"""s_mov_b32 {sCNT}, 0x8000
~{Lp}:
v_subrev_u32 v252, {sT}, v251
v_cmp_lt_u32 vcc, 7, v252
~s_cbranch_vccz {Ld}""")
        k.push()
        e(f"buffer_load_dword v251, v250, {WS}, 0 offen sc1", nocount=True)
        e(f"""s_waitcnt vmcnt(0)
s_sub_u32 {sCNT}, {sCNT}, 1
s_cmp_lg_u32 {sCNT}, 0
~s_cbranch_scc1 {Lp}
s_mov_b32 {sTO}, 1""")
        k.pop()
        e(f"""~{Ld}:
v_cmp_ne_u32 vcc, {sXCC}, v252
s_cmp_eq_u64 vcc, 0
s_cselect_b32 {sFAST}, {0 if self.opt.get('forceslow') else 1}, 0""")

    def pass_k(self):
        e = self.e; k = self.k; D = self.D1
        q = [('k', c) for c in range(D, 8)] + [('v', c) for c in range(6)]
        def issue(item):
            kind, c = item
            if kind == 'k':
                self.dma_k(c)
            else:
                self.dma_wqkv(c, 2, (131072 + c*8192) if c < 4 else (c-4)*8192, f'v{c}')
        sides = {}
        k.wait_vm('k0'); e("s_barrier")
        self.wreads(0, 0, 'kr', withx=True)
        qi = 0
        for c in range(8):
            if c in (0, 2, 4): k.wait_vm(f'k{c+2}'); e("s_barrier")
            if c == 6: k.wait_vm('k7'); e("s_barrier")
            k.wait_lg(f'kr{c}')
            if self.opt.get('pkstamp') and c in (0, 2, 4, 6): self.stamp(f'  pk c{c}')
            main = self.cap(self.mfma_k, c)
            rd = self.cap(self.wreads, c+1, (c+1)*8192, 'kr', True) if c < 7 else []
            items = []
            while qi < len(q) and len(items) < 4:
                kind, cc = q[qi]
                cost = 4 if kind == 'k' else 2
                if sum(4 if a == 'k' else 2 for a, _ in items) + cost > 4: break
                items.append(q[qi]); qi += 1
            dm = self.cap(lambda: [issue(it) for it in items])
            if self.opt.get('x_pk') == 1: dm = [x for x in dm if not x.text.startswith('buffer_load')] + [x for x in dm if x.text.startswith('buffer_load')][:0] + self.cap(lambda: [self.e("s_nop 0\nbuffer_load_dword a200, off, " + WS + ", 0", tag=f'{kk}{cc}') for kk, cc in items])
            if self.opt.get('x_pk') == 2: main = main[:4]
            if c == 3: dm = self.cap(self.ids_issue) + dm
            sd = []
            if c == 7:
                def wp():
                    e(f"s_lshl_b32 {sT0}, {sJ}, 2\ns_lshl_b32 {sT1}, {sB}, 1\ns_add_u32 {sT0}, {sT0}, {sT1}\ns_lshl_b32 {sT0}, {sT0}, 9\ns_lshl_b32 {sT1}, {sW}, 10")
                    self.dmag(SRD_WPHI, sT0, (sT1, 5*8192), [('v1', 0)], 'wphi')
                    e(f"v_add_u32 v30, {sT1}, v30")
                sd = self.cap(wp)
            self.weave(main, (dm, 1), (rd, 0.7), (sd, 1.5))
        assert qi == len(q), (qi, len(q))

    def stats1(self):
        e = self.e
        ST1 = 4*8192
        e(f"""v_cndmask_b32 v160, v72, v73, {sMK1}
v_cndmask_b32 v160, v160, v74, {sMK2}
v_cndmask_b32 v160, v160, v75, {sMK3}
v_cndmask_b32 v160, 0, v160, {sMKD}
v_mul_f32 v36, {sINV}, v64
v_mov_b32 v161, v160""")
        self.allred([('v160','v161')], 'v_add_f32')
        e(f"""v_mul_f32 v160, {sINV}, v160
v_fma_f32 v160, -v36, v36, v160
v_max_f32 v160, 0, v160
v_add_f32 v160, {sEPS}, v160
v_rsq_f32 v38, v160
s_lshl_b32 {sT0}, {sA}, 7
s_lshl_b32 {sT1}, {sB}, 6
s_add_u32 {sT0}, {sT0}, {sT1}
v_lshlrev_b32 v253, 2, v2
v_add_u32 v253, {sT0}, v253
v_lshlrev_b32 v254, 4, v3
v_add_u32 v254, {sT0}, v254
v_xor_b32 v251, 64, v253
v_xor_b32 v252, 64, v254""")
        e(f"ds_write_b32 v253, v36 offset:{ST1}", tag='st1w')
        e(f"ds_write_b32 v253, v38 offset:{ST1 + 256}", tag='st1w')
    def stats1b(self):
        ST1 = 4*8192
        self.e(f"ds_read_b32 v37, v251 offset:{ST1}", tag='st1p')
        self.e(f"ds_read_b32 v39, v251 offset:{ST1 + 256}", tag='st1p')
        self.k.wait_lg('st1p')

    def features(self, tiles, T):
        e = self.e
        n = len(tiles)
        def each(fn):
            for i, tl in enumerate(tiles): fn(T + 16*i, *tl)
        def sel(r): return f"v[{r&~1}:{(r&~1)+1}]", r & 1
        def s1(t, acc, cs, m, rs, wp, out):
            mp, ms = sel(m)
            for p in range(2):
                e(f"v_pk_fma_f32 v[{t+2*p}:{t+2*p+1}], v[{cs+2*p}:{cs+2*p+1}], {mp}, v[{acc+2*p}:{acc+2*p+1}] op_sel:[0,{ms},0] op_sel_hi:[1,{ms},1] neg_lo:[1,0,0] neg_hi:[1,0,0]")
        def s2(t, acc, cs, m, rs, wp, out):
            rp, rsl = sel(rs)
            for p in range(2):
                e(f"v_pk_mul_f32 v[{t+2*p}:{t+2*p+1}], v[{t+2*p}:{t+2*p+1}], {rp} op_sel:[0,{rsl}] op_sel_hi:[1,{rsl}]")
        each(s1); each(s2)
        each(lambda t,*a: e(f"v_cvt_pk_bf16_f32 v{t+4}, v{t}, v{t+1}\nv_cvt_pk_bf16_f32 v{t+5}, v{t+2}, v{t+3}"))
        each(lambda t,acc,cs,m,rs,wp,out: e(f"v_mfma_f32_16x16x16_bf16 v[{t}:{t+3}], v[{wp}:{wp+1}], v[{t+4}:{t+5}], 0"))
        each(lambda t,*a: e(f"v_max3_f32 v{t+4}, v{t}, v{t+1}, v{t+2}\nv_max3_f32 v{t+5}, -v{t}, -v{t+1}, -v{t+2}"))
        each(lambda t,*a: e(f"v_max_f32 v{t+4}, v{t+4}, v{t+3}\nv_max_f32_e64 v{t+5}, v{t+5}, -v{t+3}"))
        self.allred([(f'v{T+16*i+4}', f'v{T+16*i+5}') for i in range(n)], 'v_max_f32')
        each(lambda t,*a: e(f"v_pk_mul_f32 v[{t+4}:{t+5}], v[{t+4}:{t+5}], {sLL} op_sel_hi:[1,0]"))
        for r in range(4):
            each(lambda t,*a: e(f"v_pk_fma_f32 v[{t+8+2*r}:{t+9+2*r}], v[{t+(r&~1)}:{t+(r&~1)+1}], {sLL}, v[{t+4}:{t+5}] op_sel:[{r&1},0,0] op_sel_hi:[{r&1},1,1] neg_lo:[0,0,1] neg_hi:[0,0,1]"))
        for i8 in range(8): each(lambda t,*a: e(f"v_exp_f32 v{t+8+i8}, v{t+8+i8}"))
        each(lambda t,*a: e(f"v_pk_add_f32 v[{t}:{t+1}], v[{t+8}:{t+9}], v[{t+10}:{t+11}]\nv_pk_add_f32 v[{t+2}:{t+3}], v[{t+12}:{t+13}], v[{t+14}:{t+15}]"))
        each(lambda t,*a: e(f"v_pk_add_f32 v[{t}:{t+1}], v[{t}:{t+1}], v[{t+2}:{t+3}]"))
        self.allred([(f'v{T+16*i}', f'v{T+16*i+1}') for i in range(n)], 'v_add_f32')
        each(lambda t,*a: e(f"v_rcp_f32 v{t}, v{t}\nv_rcp_f32 v{t+1}, v{t+1}"))
        for r in range(4):
            each(lambda t,*a: e(f"v_pk_mul_f32 v[{t+8+2*r}:{t+9+2*r}], v[{t+8+2*r}:{t+9+2*r}], v[{t}:{t+1}]"))
        each(lambda t,acc,cs,m,rs,wp,out: e(f"""v_cvt_pk_bf16_f32 v{out}, v{t+8}, v{t+10}
v_cvt_pk_bf16_f32 v{out+1}, v{t+12}, v{t+14}
v_cvt_pk_bf16_f32 v{out+2}, v{t+9}, v{t+11}
v_cvt_pk_bf16_f32 v{out+3}, v{t+13}, v{t+15}"""))

    def ksideA(self):
        e = self.e; k = self.k
        self.stats1()
        k.wait_vm('wphi')
        e(f"ds_read_b64_tr_b16 v[32:33], v30 offset:{5*8192+512}", tag='wpr')
        e(f"ds_read_b64_tr_b16 v[30:31], v30 offset:{5*8192}", tag='wpr')
        k.wait_lg('wpr')
    def ksideB(self):
        e = self.e; k = self.k
        self.stats1b()
        tiles = [(40 + (ep*2+ee)*4, 56 + ep*4, 36+ee, 38+ee, 30+2*ep, 224 + (ep*2+ee)*4) for ep in range(2) for ee in range(2)]
        self.features(tiles, 160)
        for i in range(4):
            for sg in range(2):
                o = 224 + 4*i + 2*sg
                e(f"v_mfma_f32_16x16x16_bf16 v[{160+8*i+4*sg}:{163+8*i+4*sg}], v[{o}:{o+1}], v[26:27], 0")
        for ep in range(2):
            for ee in range(2):
                i = ep*2+ee
                for sg in range(2):
                    d = 192 + 8*ep + 4*sg + 2*ee; s = 160 + 8*i + 4*sg
                    e(f"v_cvt_pk_bf16_f32 v{d}, v{s}, v{s+1}\nv_cvt_pk_bf16_f32 v{d+1}, v{s+2}, v{s+3}")
        self.fetch('kv1d', 'v248'); self.fetch('kv1z', 'v249'); self.fetch('kv1f', 'v250')

    def pass_v(self):
        e = self.e; k = self.k
        sideA = self.cap(self.ksideA); side = self.cap(self.ksideB)
        e("v_add_u32 v34, 0x20000, v12\nv_add_u32 v35, 0x20000, v13")
        k.wait_vm('v1'); e("s_barrier")
        self.wreads(0, 0, 'vr')
        chunk = (len(side) + 6)//7
        q0 = self.opt.get('q0', 4)
        for c in range(8):
            if c in (1, 3, 5):
                k.wait_vm(f'v{c+2}'); e("s_barrier")
            k.wait_lg(f'vr{c}')
            if c == 3: e("v_mov_b32 v34, v12\nv_mov_b32 v35, v13")
            main = self.cap(self.mfma_vq, c, 'v')
            if c < 7:
                off = (c+1)*8192 if c+1 < 4 else (c+1-4)*8192
                rd = self.cap(self.wreads, c+1, off, 'vr')
            else: rd = []
            def dm():
                if c == 0:
                    for cc in (6, 7): self.dma_wqkv(cc, 2, (cc-4)*8192, f'v{cc}')
                    self.prewarm_issue('pwA', 'v236')
                if q0 <= c < q0 + 4:
                    for cc in (2*(c-q0), 2*(c-q0)+1): self.dma_wqkv(cc, 0, 65536 + cc*8192, f'q{cc}')
                if c == self.opt.get('pf2_at', 5): self.pf('wo', 'v236'); self.pf('w1', 'v237')
            sd = sideA if c == 0 else side[(c-1)*chunk:c*chunk]
            self.weave(main, (rd, 0.7), (self.cap(dm), 1.0), (sd, len(sd)/12.0))

    def kv_publish(self):
        e = self.e; k = self.k
        ST1 = 4*8192
        for ee in range(2):
            e(f"ds_read_b128 v[{128+8*ee}:{131+8*ee}], {'v254' if ee == 0 else 'v252'} offset:{ST1}", tag='st1r')
            e(f"ds_read_b128 v[{132+8*ee}:{135+8*ee}], {'v254' if ee == 0 else 'v252'} offset:{ST1 + 256}", tag='st1r')
        k.wait_lg('st1r')
        T = 160
        tl = [(ee, ep) for ee in range(2) for ep in range(2)]
        for i, (ee, ep) in enumerate(tl):
            M = 128 + 8*ee; acc = 80 + (ee*2+ep)*4; cs = 96 + ep*4; t = T + 4*i
            for p in range(2):
                e(f"v_pk_fma_f32 v[{t+2*p}:{t+2*p+1}], v[{M+2*p}:{M+2*p+1}], v[{cs}:{cs+1}], v[{acc+2*p}:{acc+2*p+1}] op_sel_hi:[1,0,1] neg_lo:[1,0,0] neg_hi:[1,0,0]")
        for i, (ee, ep) in enumerate(tl):
            RS = 132 + 8*ee; t = T + 4*i
            for p in range(2):
                e(f"v_pk_mul_f32 v[{t+2*p}:{t+2*p+1}], v[{t+2*p}:{t+2*p+1}], v[{RS+2*p}:{RS+2*p+1}]")
        for i, (ee, ep) in enumerate(tl):
            t = T + 4*i; d = 208 + 4*ep + 2*ee
            e(f"v_cvt_pk_bf16_f32 v{d}, v{t}, v{t+1}\nv_cvt_pk_bf16_f32 v{d+1}, v{t+2}, v{t+3}")
        for ep in range(2):
            for sg in range(2):
                pa = 192 + 8*ep + 4*sg
                e(f"{MF} v[{40+8*ep+4*sg}:{43+8*ep+4*sg}], v[{pa}:{pa+3}], v[{208+4*ep}:{211+4*ep}], 0")
        for ep in range(2):
            for sg in range(2):
                pa = 192 + 8*ep + 4*sg
                e(f"{MF} v[{56+8*ep+4*sg}:{59+8*ep+4*sg}], v[{pa}:{pa+3}], v[20:23], 0")
        for ep in range(2):
            for q in range(4): e(f"v_cvt_pk_bf16_f32 v{72+8*ep+q}, v{40+8*ep+2*q}, v{41+8*ep+2*q}")
        self.pub([f"buffer_store_dwordx4 v[72:75], v248, {WS}, 0 offen",
                  f"buffer_store_dwordx4 v[80:83], v248, {WS}, {c8K} offen"], tag='kv1s')
        for ep in range(2):
            for q in range(4): e(f"v_cvt_pk_bf16_f32 v{76+8*ep+q}, v{56+8*ep+2*q}, v{57+8*ep+2*q}")
        e(f"s_mov_b64 exec, {sS0}")
        self.pub([f"buffer_store_dwordx4 v[76:79], v249, {WS}, 0 offen",
                  f"buffer_store_dwordx4 v[84:87], v249, {WS}, 0 offen offset:1024"], tag='kv1s')
        e("s_mov_b64 exec, -1")
        e("v_add_u32 v34, 0x10000, v12\nv_add_u32 v35, 0x10000, v13")
        self.flag('v250', [0, 32], wait_tag='kv1s')

    def pass_q(self):
        e = self.e; k = self.k
        e("v_add_u32 v10, 7168, v8\nv_add_u32 v11, 14336, v8\nv_add_u32 v255, 21504, v8")
        k.wait_vm('q7'); e("s_barrier")
        self.wreads(0, 0, 'qr')
        sa = self.cap(self.setup_addr, 2); na = (len(sa) + 3)//4
        def rx():
            e(f"s_lshl_b32 {sT2}, {sRHO}, 14\ns_lshl_b32 {sT1}, {sJ}, 7\ns_add_u32 {sT2}, {sT2}, {sT1}\nv_lshlrev_b32 v236, 10, v2\nv_lshl_add_u32 v236, v3, 3, v236")
            for ct in range(4):
                e(f"buffer_load_dwordx2 v[{240+2*ct}:{241+2*ct}], v236, {srd(SRD_X)}, {sT2} offen offset:{ct*32}", tag='resx')
        cmid = self.opt.get('red_at', 4)
        for c in range(8):
            if c == cmid:
                k.push(); self.reduce1a(); k.pop()
                self.stamp('reduce1')
            k.wait_lg(f'qr{c}')
            main = self.cap(self.mfma_vq, c, 'q')
            rd = self.cap(self.wreads, c+1, (c+1)*8192, 'qr') if c < 7 else []
            sd = []
            if c < 4: sd = sa[c*na:(c+1)*na]
            if c == 3: sd = sd + self.cap(lambda: (self.fetch('r_poll', 'v248'), self.fetch('r_kv', 'v249'), self.fetch('r_z', 'v250')))
            if c == 7: sd = self.cap(rx)
            self.weave(main, (rd, 0.7), (sd, max(0.5, len(sd)/11)))

    def sum8(self, vkv, vz, tagp, after_loads=None):
        e = self.e; k = self.k
        e(f"buffer_load_dwordx4 v[208:211], {vz}, {WS}, 0 offen sc1", tag=f'{tagp}z')
        for x in range(8):
            e(f"buffer_load_dwordx4 v[{176+4*x}:{179+4*x}], {vkv}, {WS}, {CQ[x>>2]} offen offset:{(x&3)*1024} sc1", tag=f'{tagp}{x}')
        self.fetch('selJ0', 'v214'); self.fetch('selJ1', 'v215')
        for r in (212, 213, 216, 217): e(f"v_mov_b32 v{r}, 0")
        k.wait_vm(f'{tagp}z')
        self.mf(48, "v[214:217]", "v[208:211]", True)
        self.mf(52, "v[212:215]", "v[208:211]", True)
        for x in range(8):
            k.wait_vm(f'{tagp}{x}')
            if x == 7 and after_loads: after_loads()
            self.mf(40, "v[26:29]", f"v[{176+4*x}:{179+4*x}]", x == 0)
            self.mf(44, "v[24:27]", f"v[{176+4*x}:{179+4*x}]", x == 0)
            if x == 1:
                for q in range(8): e(f"v_add_f32_dpp v{48+q}, v{48+q}, v{48+q} row_ror:4 row_mask:0xf bank_mask:0xf")
            if x == 3:
                for q in range(8): e(f"v_add_f32_dpp v{48+q}, v{48+q}, v{48+q} row_ror:8 row_mask:0xf bank_mask:0xf")
            if x == 5:
                for q in range(4): e(f"v_cvt_pk_bf16_f32 v{60+q}, v{48+2*q}, v{49+2*q}")
        for q in range(4): e(f"v_cvt_pk_bf16_f32 v{56+q}, v{40+2*q}, v{41+2*q}")

    def reduce1a(self):
        e = self.e; k = self.k
        Lskip = k.label('Lred')
        e(f"s_cmp_lg_u32 {sW}, 0\ns_cbranch_scc1 {Lskip}")
        self.poll('v248', 'v161')
        self.fetch('kv2d', 'v251'); self.fetch('kv2z', 'v252'); self.fetch('kv2f', 'v253')
        self.sum8('v249', 'v250', 'r', after_loads=lambda: e('s_barrier'))
        e(f"""buffer_store_dwordx4 v[56:59], v251, {WS}, 0 offen sc1
s_mov_b64 exec, 15
buffer_store_dwordx4 v[60:63], v252, {WS}, 0 offen sc1
s_mov_b64 exec, -1""", nocount=True)
        e(f"{Lskip}:")
    def reduce1b(self):
        e = self.e; k = self.k
        Lskip = k.label('Lred')
        e(f"s_cmp_lg_u32 {sW}, 0\ns_cbranch_scc1 {Lskip}")
        self.flag('v253', 0, force_sc1=True)
        e(f"{Lskip}:")

    def qfeat(self):
        tiles = [(104 + (ep*2+ee)*4, 120 + ep*4, 36+ee, 38+ee, 30+2*ep, 128 + 8*ep + 4*ee) for ep in range(2) for ee in range(2)]
        self.features(tiles, 160)

    def final_kv_and_o(self):
        e = self.e; k = self.k
        SC = 152*1024
        self.fetch('k_poll', 'v248'); self.fetch('k_kv', 'v249'); self.fetch('k_z', 'v250')
        self.fetch('o_st', 'v253'); self.fetch('o_fl', 'v254'); self.fetch('o_st1', 'v152')
        e(f"""s_lshl_b32 {sT0}, {sW}, 10
v_add_u32 v251, {sT0}, v1
v_add_u32 v251, {SC}, v251
s_lshl_b32 {sT0}, {sB}, 11
v_add_u32 v252, {sT0}, v1
v_add_u32 v252, {SC}, v252
s_lshl_b32 {sT0}, {sW}, 6
v_add_u32 v150, {sT0}, v1
v_add_u32 v150, {SC+4096}, v150
s_lshl_b32 {sT0}, {sB}, 7
v_lshlrev_b32 v151, 4, v3
v_add_u32 v151, {sT0}, v151
v_add_u32 v151, {SC+4096}, v151""")
        self.poll('v248', 'v161')
        self.stamp('kv2 ready')
        self.sum8('v249', 'v250', 'kv')
        if self.opt.get('ostamp'): self.stamp('  sum8 done')
        e("ds_write_b128 v251, v[56:59]", tag='kvw')
        e("s_mov_b64 exec, 15")
        e("ds_write_b128 v150, v[60:63]", tag='kvw')
        e("s_mov_b64 exec, -1")
        k.wait_lg('kvw')
        e("s_barrier")
        for ep in range(2):
            e(f"ds_read_b128 v[{40+8*ep}:{43+8*ep}], v252 offset:{ep*1024}", tag='kvr')
            e(f"ds_read_b128 v[{44+8*ep}:{47+8*ep}], v151 offset:{ep*64}", tag='kvr')
        k.wait_lg('kvr')
        if self.opt.get('ostamp'): self.stamp('  kv xchg')
        tl = [(ee, ep) for ee in range(2) for ep in range(2)]
        for i, (ee, ep) in enumerate(tl):
            pq = 128 + 8*ep + 4*ee; n = 176 + i*8
            e(f"{MF} v[{n}:{n+3}], v[{40+8*ep}:{43+8*ep}], v[{pq}:{pq+3}], 0")
            e(f"{MF} v[{n+4}:{n+7}], v[{44+8*ep}:{47+8*ep}], v[{pq}:{pq+3}], 0")
        for i in range(4): n = 176 + i*8; e(f"v_add_f32 v{n+4}, 0x358637bd, v{n+4}")
        for i in range(4): n = 176 + i*8; e(f"v_rcp_f32 v{n+4}, v{n+4}")
        for i in range(4):
            n = 176 + i*8
            e(f"v_pk_mul_f32 v[{n}:{n+1}], v[{n}:{n+1}], v[{n+4}:{n+5}] op_sel_hi:[1,0]\nv_pk_mul_f32 v[{n+2}:{n+3}], v[{n+2}:{n+3}], v[{n+4}:{n+5}] op_sel_hi:[1,0]")
        for i, (ee, ep) in enumerate(tl):
            n = 176 + i*8
            e(f"v_cvt_pk_bf16_f32 v{72+4*ee+2*ep}, v{n}, v{n+1}\nv_cvt_pk_bf16_f32 v{72+4*ee+2*ep+1}, v{n+2}, v{n+3}")
        self.pub([f"buffer_store_dwordx4 v[72:75], v253, {WS}, 0 offen",
                  f"buffer_store_dwordx4 v[76:79], v152, {WS}, 0 offen"], tag='os')
        if self.opt.get('ostamp'): self.stamp('  o stored')
        self.flag('v254', 0, wait_tag='os')

    PLACE = {'w1_0': 'O', 'w1_r': 'A', 'w2_0': 'B', 'w2_r': 'C', 'w3_2': 'A', 'w3_1': 'D', 'w3_0': 'F', 'w3_3': 'G', 'w3_4': 'G'}
    def slot_dmas(self, slot):
        pl = dict(self.PLACE); pl.update(self.opt.get('place', {}))
        def f():
            for item in ('w1_0', 'w1_r', 'w2_0', 'w2_r', 'w3_2', 'w3_1', 'w3_0', 'w3_3', 'w3_4'):
                if pl[item] != slot: continue
                if item == 'w1_0': self.dma_w64(SRD_W1, 0x10000, 'w1', [0])
                if item == 'w1_r': self.dma_w64(SRD_W1, 0x10000, 'w1', [1, 2, 3])
                if item == 'w2_0': self.dma_w64(SRD_W2, 0, 'w2', [0])
                if item == 'w2_r': self.dma_w64(SRD_W2, 0, 'w2', [1, 2, 3])
                if item.startswith('w3_'): self.dma_w3(int(item[3]))
        return self.cap(f)

    def phase_regs(self):
        e = self.e
        for ct in range(4): e(f"v_add_u32 v{56+ct}, 0x10000, v{14+ct}")
        self.fetch('tile', 'v60'); self.fetch('flag', 'v61'); self.fetch('fpoll', 'v62'); self.fetch('st_st', 'v63'); self.fetch('st_ld', 'v224')

    def unpack16(self, src, dst):
        for q in range(8):
            self.e(f"v_lshlrev_b32 v{dst+2*q}, 16, v{src+q}\nv_and_b32 v{dst+2*q+1}, 0xffff0000, v{src+q}")

    def a_reads(self, t, basereg, imm, tagp):
        buf = 128 + (t % 3)*16
        for ct in range(4):
            for h in range(2):
                self.e(f"ds_read_b64_tr_b16 v[{buf+4*ct+2*h}:{buf+4*ct+2*h+1}], v{basereg+ct} offset:{imm + h*2048}", tag=f'{tagp}{t}')

    def gemm64_pre(self, base, tagp):
        for t in range(3): self.a_reads(t, base, t*4096, tagp)

    def bload(self, t, btag, vaddr=None):
        va = 'v225' if vaddr is None else vaddr(t)
        self.e(f"buffer_load_dwordx4 v[{64+4*t}:{67+4*t}], {va}, {WS}, {CQ[t//4]} offen offset:{(t%4)*1024} sc1", tag=f'{btag}{t}')

    def gemm64_main(self, base, tagp, btag, first_zero=False, mid=None, late=(), pre_step=None, vaddr=None, pre=None):
        k = self.k
        late = list(late)
        D = self.opt.get('bdepth', 6)
        for t in range(D): self.bload(t, btag, vaddr)
        if pre: pre()
        midl = self.cap(mid) if mid else []
        nm = (len(midl) + 7)//8
        for t in range(16):
            k.wait_lg(f'{tagp}{t}')
            k.wait_vm(f'{btag}{t}')
            if self.opt.get('gstamp') and t in (0, 4, 8, 12): self.stamp(f'  {btag} t{t}')
            if pre_step: pre_step(t)
            buf = 128 + (t % 3)*16
            def mm():
                for ct in range(4):
                    self.mf(40+4*ct, f"v[{buf+4*ct}:{buf+4*ct+3}]", f"v[{64+4*t}:{67+4*t}]", first_zero and t == 0)
            rd = self.cap(self.a_reads, t+3, base, (t+3)*4096, tagp) if t + 3 < 16 else []
            bl = self.cap(self.bload, t+D, btag, vaddr) if t + D < 16 else []
            if t + D >= 16 and late:
                bl = late[:6]; late = late[6:]
            sd = midl[(t-4)*nm:(t-3)*nm] if 4 <= t < 12 else []
            self.weave(self.cap(mm), (bl, 1.5), (rd, 2), (sd, 1.5))
        self.k.L += late

    def row_stats(self):
        e = self.e
        e("v_pk_add_f32 v[180:181], v[40:41], v[42:43]\nv_pk_mul_f32 v[182:183], v[40:41], v[40:41]")
        e("v_pk_add_f32 v[184:185], v[44:45], v[46:47]\nv_pk_mul_f32 v[186:187], v[44:45], v[44:45]")
        e("v_pk_fma_f32 v[182:183], v[42:43], v[42:43], v[182:183]\nv_pk_fma_f32 v[186:187], v[46:47], v[46:47], v[186:187]")
        for q in range(4, 8, 2):
            e(f"v_pk_add_f32 v[180:181], v[180:181], v[{40+2*q}:{41+2*q}]\nv_pk_add_f32 v[184:185], v[184:185], v[{42+2*q}:{43+2*q}]")
            e(f"v_pk_fma_f32 v[182:183], v[{40+2*q}:{41+2*q}], v[{40+2*q}:{41+2*q}], v[182:183]\nv_pk_fma_f32 v[186:187], v[{42+2*q}:{43+2*q}], v[{42+2*q}:{43+2*q}], v[186:187]")
        e("v_pk_add_f32 v[180:181], v[180:181], v[184:185]\nv_pk_add_f32 v[182:183], v[182:183], v[186:187]")
        e("v_add_f32 v180, v180, v181\nv_add_f32 v181, v182, v183")
        self.allred([('v180','v181')], 'v_add_f32')

    def pack(self, dst):
        for q in range(8): self.e(f"v_cvt_pk_bf16_f32 v{dst+q}, v{40+2*q}, v{41+2*q}")
    def pub_tile(self, pk, tag):
        self.pub([f"buffer_store_dwordx4 v[{pk}:{pk+3}], v60, {WS}, 0 offen",
                  f"buffer_store_dwordx4 v[{pk+4}:{pk+7}], v60, {WS}, 0 offen offset:1024"], tag=tag)
    def pub_stats(self, off, tag):
        self.e("s_mov_b64 exec, 0xffff")
        self.pub([f"buffer_store_dwordx2 v[180:181], v63, {WS}, 0 offen offset:{off}"], tag=tag)
        self.e("s_mov_b64 exec, -1")
    def load_stats(self, off, tag):
        self.e(f"buffer_load_dwordx4 v[188:191], v224, {WS}, 0 offen offset:{off} sc1", tag=tag)

    def reduce_stats(self, tag, m, rs):
        e = self.e
        self.k.wait_vm(tag)
        e("v_pk_add_f32 v[188:189], v[188:189], v[190:191]")
        self.allred([('v188','v189')], 'v_add_f32')
        e(f"""v_mul_f32 v{m}, {sINV}, v188
v_mul_f32 v189, {sINV}, v189
v_fma_f32 v189, -v{m}, v{m}, v189
v_max_f32 v189, 0, v189
v_add_f32 v190, {sEPS}, v189
v_rsq_f32 v{rs}, v190""")

    def gelu_pairs(self, regs, T):
        e = self.e
        P = list(enumerate(regs))
        for i, y in P: e(f"v_pk_mul_f32 v[{T+2*i}:{T+2*i+1}], v[{y}:{y+1}], v[{y}:{y+1}]")
        for i, y in P: e(f"v_pk_fma_f32 v[{T+2*i}:{T+2*i+1}], v[{T+2*i}:{T+2*i+1}], s[80:81], s[80:81] op_sel:[0,1,0] op_sel_hi:[1,1,0]")
        for i, y in P: e(f"v_pk_mul_f32 v[{T+2*i}:{T+2*i+1}], v[{T+2*i}:{T+2*i+1}], v[{y}:{y+1}]")
        for i, y in P: e(f"v_exp_f32 v{T+2*i}, v{T+2*i}\nv_exp_f32 v{T+2*i+1}, v{T+2*i+1}")
        for i, y in P: e(f"v_pk_add_f32 v[{T+2*i}:{T+2*i+1}], v[{T+2*i}:{T+2*i+1}], s[94:95]")
        for i, y in P: e(f"v_rcp_f32 v{T+2*i}, v{T+2*i}\nv_rcp_f32 v{T+2*i+1}, v{T+2*i+1}")
        for i, y in P: e(f"v_pk_mul_f32 v[{y}:{y+1}], v[{y}:{y+1}], v[{T+2*i}:{T+2*i+1}]")

    def cs1(self):
        e = self.e; k = self.k
        SC1 = 154*1024
        e(f"s_lshl_b32 {sT0}, {sW}, 5\nv_xor_b32 v184, {sT0}, v56")
        for t in range(16):
            for h in range(2): e(f"ds_read_b64_tr_b16 v[{64+4*t+2*h}:{64+4*t+2*h+1}], v184 offset:{t*4096 + h*2048}", tag=f'c1_{t}')
        e(f"""s_lshl_b32 {sT0}, {sW}, 6
v_lshlrev_b32 v185, 4, v3
v_add_u32 v185, {SC1}, v185
v_add_u32 v186, {sT0}, v185""")
        for t in range(16):
            if t % 4 == 0: k.wait_lg(f'c1_{t+3}')
            self.mf(188 if t % 2 == 0 else 180, f"v[{64+4*t}:{67+4*t}]", "v[20:23]", t < 2)
        e("v_pk_add_f32 v[188:189], v[188:189], v[180:181]\nv_pk_add_f32 v[190:191], v[190:191], v[182:183]")
        e(f"s_mov_b64 exec, {sS0}")
        e("ds_write_b128 v186, v[188:191]", tag='c1w')
        e("s_mov_b64 exec, -1")
        k.wait_lg('c1w')
        e("s_barrier")
        for ct in range(4): e(f"ds_read_b128 v[{208+4*ct}:{211+4*ct}], v185 offset:{ct*64}", tag='c1r')

    def phase_wo(self):
        e = self.e; k = self.k; o = self.opt
        if self.opt.get('mv', 1):
            self.setup_addr(3); self.mlp_setup(); self.setup_shift(0)
        self.k.L += self.slot_dmas('O')
        self.phase_regs()
        self.gemm64_pre(14, 'ao')
        k.wait_vm('resx')
        self.unpack16(240, 40)
        self.fetch('o_poll', 'v184'); self.fetch('b_o', 'v225')
        self.poll('v184', 'v185')
        self.stamp('o ready')
        self.gemm64_main(14, 'ao', 'bo', late=self.slot_dmas('A'))
        self.stamp('wo gemm')
        self.pack(232)
        self.pub_tile(232, 'hs')
        self.row_stats()
        self.pub_stats(0, 'hs2')
        self.flag('v61', 0, wait_tag='hs2')

    def phase_w1(self):
        e = self.e; k = self.k; o = self.opt
        e("s_barrier")
        self.k.L += self.slot_dmas('B')
        self.cs1()
        self.fetch('b_h', 'v225'); self.fetch('hh_st', 'v200'); self.fetch('hh_halo', 'v201'); self.fetch('hh_haloflag', 'v202')
        self.poll('v62', 'v185', 0)
        self.stamp('h ready')
        self.load_stats(0, 'sth')
        def mid():
            self.reduce_stats('sth', 230, 231)
            e(f"""v_mul_f32 v190, v231, v231
v_mul_f32 v190, v189, v190
v_add_f32 v190, {sEPS}, v190
v_rsq_f32 v190, v190
v_mul_f32 v228, v231, v190""")
        w2 = self.slot_dmas('C')
        nl = 36
        self.gemm64_main(56, 'a1', 'b1', first_zero=True, mid=mid, late=w2[:nl], pre=lambda: self.gemm64_pre(56, 'a1'))
        self.stamp('w1 gemm')
        k.wait_lg('c1r')
        def epi():
            for q in range(8):
                e(f"v_pk_fma_f32 v[{40+2*q}:{41+2*q}], v[{208+2*q}:{209+2*q}], v[230:231], v[{40+2*q}:{41+2*q}] op_sel_hi:[1,0,1] neg_lo:[1,0,0] neg_hi:[1,0,0]")
            for q in range(8):
                e(f"v_pk_mul_f32 v[{40+2*q}:{41+2*q}], v[{40+2*q}:{41+2*q}], v[228:229] op_sel_hi:[1,0]")
            self.gelu_pairs([40+2*q for q in range(8)], 64)
            self.pack(192)
        dD = self.slot_dmas('D')
        if dD: e("s_barrier")
        dl = w2[nl:] + dD; el = self.cap(epi)
        self.mix(el, dl, max(1.0, 0.8*len(el)/max(1, len(dl))))
        self.pub([f"buffer_store_dwordx4 v[192:195], v200, {WS}, 0 offen",
                  f"buffer_store_dwordx4 v[196:199], v200, {WS}, 0 offen offset:1024"], tag='hhs')
        self.flag('v61', 32, wait_tag='hhs')
        Lh = k.label('Lhalo')
        e(f"s_cmp_eq_u64 s[68:69], 0\n~s_cbranch_scc1 {Lh}")
        k.push()
        e(f"""s_mov_b64 exec, s[68:69]
buffer_store_dwordx4 v[192:195], v201, {WS}, 0 offen sc1
buffer_store_dwordx4 v[196:199], v201, {WS}, 0 offen offset:1024 sc1
s_mov_b64 exec, -1""", nocount=True)
        self.flag('v202', 0, force_sc1=True)
        k.pop()
        e(f"~{Lh}:")

    def phase_w2(self):
        e = self.e; k = self.k; o = self.opt
        e("s_barrier")
        if self.opt.get('mv', 1): self.setup_shift_cons()
        self.k.L += self.slot_dmas('E')
        for pg, (qh, ql) in enumerate(((0,1),(2,3),(1,0),(3,2))):
            e(f"s_cmp_eq_u32 s93, 1\ns_cselect_b32 {sT0}, {qh}, {ql}\ns_lshl_b32 {sT0}, {sT0}, 14")
            for ct in range(4): e(f"v_add_u32 v{192+4*pg+ct}, {sT0}, v{14+ct}")
        def ard(t): self.a_reads(t, 192 + 4*(t >> 2), (t & 3)*4096, 'a2')
        for t in range(3): ard(t)
        self.unpack16(232, 40)
        e("v_mul_f32 v229, v230, v231")
        for q in range(8):
            e(f"v_pk_fma_f32 v[{40+2*q}:{41+2*q}], v[{40+2*q}:{41+2*q}], v[230:231], v[228:229] op_sel:[0,1,1] op_sel_hi:[1,1,1] neg_lo:[0,0,1] neg_hi:[0,0,1]")
        self.fetch('hh_poll', 'v185')
        for q in range(4): self.fetch(f'hh_ld{q}', f'v{244+q}')
        self.poll('v185', 'v186')
        self.stamp('hh ready')
        def bl(t): e(f"buffer_load_dwordx4 v[{64+4*t}:{67+4*t}], v{244 + (t >> 2)}, {WS}, 0 offen offset:{(t&3)*1024} sc1", tag=f'b2{t}')
        for t in range(6): bl(t)
        late = self.slot_dmas('F')
        sched = {0: [6], 1: [7], 4: [8, 9], 5: [10, 11], 6: [12, 13], 7: [14, 15]}
        for t in range(16):
            if t == 4:
                Lh = k.label('Lhw'); Lp = k.label('Lhp'); Lq = k.label('Lhq')
                e(f"s_cmp_eq_u32 s71, 0\n~s_cbranch_scc1 {Lh}")
                k.push()
                e(f"""s_mov_b32 {sCNT}, 0x8000
{Lp}:
s_load_dwordx8 s[8:15], s[{SRD_WS}:{SRD_WS+1}], s70 glc
s_waitcnt lgkmcnt(0)
s_cmp_eq_u32 s71, 1
s_cselect_b32 s8, s8, s10
s_cselect_b32 s9, s9, s11
s_cselect_b32 s10, s12, s14
s_cselect_b32 s11, s13, s15
s_xor_b32 s8, s8, {sT}
s_xor_b32 s9, s9, {sT}
s_xor_b32 s10, s10, {sT}
s_xor_b32 s11, s11, {sT}
s_or_b32 s8, s8, s9
s_or_b32 s10, s10, s11
s_or_b32 s8, s8, s10
s_cmp_eq_u32 s8, 0
s_cbranch_scc1 {Lq}
s_sub_u32 {sCNT}, {sCNT}, 1
s_cmp_lg_u32 {sCNT}, 0
s_cbranch_scc1 {Lp}
s_mov_b32 {sTO}, 1
{Lq}:""")
                k.pop()
                e(f"~{Lh}:")
            k.wait_lg(f'a2{t}')
            k.wait_vm(f'b2{t}')
            if self.opt.get('gstamp') and t in (0, 4, 8, 12): self.stamp(f'  b2 t{t}')
            buf = 128 + (t % 3)*16
            def mm():
                for ct in range(4): self.mf(40+4*ct, f"v[{buf+4*ct}:{buf+4*ct+3}]", f"v[{64+4*t}:{67+4*t}]")
            rd = self.cap(ard, t+3) if t + 3 < 16 else []
            blx = self.cap(lambda: [bl(u) for u in sched.get(t, [])])
            if t >= 9 and late:
                blx = late[:6]; late = late[6:]
            self.weave(self.cap(mm), (blx, 1.5), (rd, 2))
        self.k.L += late
        self.stamp('w2 gemm')
        self.pack(192)
        self.pub_tile(192, 'x1s')
        self.row_stats()
        self.pub_stats(2048, 'x1s2')
        if self.opt.get('ostamp'): self.stamp('  x1 stored')
        self.flag('v61', 64, wait_tag='x1s2')
        if self.opt.get('ostamp'): self.stamp('  x1 flagged')
        e("s_barrier")
        def hx():
            self.unpack16(232, 208)
            for q in range(8):
                e(f"v_pk_add_f32 v[{208+2*q}:{209+2*q}], v[{208+2*q}:{209+2*q}], v[{40+2*q}:{41+2*q}]")
            for q in range(16): e(f"v_accvgpr_write_b32 a{240+q}, v{208+q}")
        self.mix(self.cap(hx), self.slot_dmas('G'), 1.3)

    def mlp_setup(self):
        e = self.e
        e(f"""v_lshrrev_b32 v18, 3, v0
v_and_b32 v5, 6, v18
v_and_b32 v6, 7, v0
v_xor_b32 v6, v6, v5
v_mul_u32_u24 v4, 2752, v18
v_lshl_add_u32 v4, v6, 4, v4
s_lshl_b32 {sT0}, {sF0}, 1
s_mul_i32 {sT1}, {sW}, {16*2752}
s_add_u32 {sT0}, {sT0}, {sT1}
v_add_u32 v4, {sT0}, v4
v_add_u32 v7, {8*2752-1024}, v4
v_cmp_gt_u32 vcc, {sFW}, v6
v_mov_b32 v12, {hex(OOB)}
v_cndmask_b32 v5, v12, v4, vcc
v_cndmask_b32 v12, v12, v7, vcc
s_lshl_b32 s98, {sW}, 12
s_lshl_b32 s99, {sRHO}, 14
s_add_u32 s99, s99, {X1B}
s_mul_i32 s19, {sI}, 11
s_add_u32 {sROT}, s19, {sW}""")

    G4S = [4, 8, 12, 16, 20, 24, 28, 0, 32, 4, 8]
    W3A = [65536, 65536+24576, 131072, 16384, 40960, 65536, 65536+24576, 131072]
    X1A = [114688, 122880, 0, 8192, 114688, 122880, 0, 8192]
    def dma_w3(self, c):
        self.e(f"s_lshl_b32 s0, {sI}, 1\ns_add_u32 s0, s0, {c}\ns_and_b32 s0, s0, 7\ns_mul_i32 s1, s0, {64*2752}")
        for q in range(3):
            self.dmag(SRD_W3, ('s1', q*128) if q else 's1', (sM0W, self.W3A[c] + q*8192), [('v4', 0), ('v7', 1024)] if q < 2 else [('v5', 0), ('v12', 1024)], f'm{c}')
    def dma_x1(self, c):
        self.e(f"s_lshl_b32 s0, {sI}, 1\ns_add_u32 s0, s0, {c}\ns_and_b32 s0, s0, 7\ns_lshl_b32 s0, s0, 11\ns_add_u32 s0, s0, s99")
        self.dmag(SRD_WS, 's0', (sM0W, self.X1A[c]), [('v1', 0), ('v1', 1024)], f'm{c}', sc1=True)
    def dma_w4(self, n, slot0):
        self.e(f"s_add_u32 s0, {sROT}, {4*n}\ns_sub_u32 s1, s0, 43\ns_cmp_lt_u32 s0, 43\ns_cselect_b32 s0, s0, s1\ns_lshl_b32 s0, s0, 15")
        if n == 10: self.e(f"s_cmp_eq_u32 {sW}, 3\ns_cselect_b32 s0, {hex(OOB)}, s0")
        self.dmag(SRD_W4, 's0', ('s98', slot0*4096), self.W4V, f'w4_{n}')

    def w3_reads(self, c):
        def base(addr, regs): return regs[addr >> 16], addr & 0xffff
        par = c % 2
        for u in range(2):
            for rl in range(4):
                b = 40 + par*32 + u*16 + rl*4
                r, o = base(self.X1A[c] + (rl*2+u)*1024, ('v1', 'v110'))
                self.e(f"ds_read_b128 v[{b}:{b+3}], {r} offset:{o}", tag=f'mr{c}')
            for q in range(3):
                b = 192 + par*24 + u*12 + q*4
                for h in range(2):
                    r, o = base(self.W3A[c] + q*8192 + u*4096 + h*2048, ('v108', 'v109', 'v111'))
                    self.e(f"ds_read_b64_tr_b16 v[{b+2*h}:{b+2*h+1}], {r} offset:{o}", tag=f'mr{c}')
    def w3_mfma(self, c):
        par = c % 2
        for u in range(2):
            for q in range(3):
                wb = 192 + par*24 + u*12 + q*4
                for rl in range(4):
                    acc = 128 + (q*4+rl)*4; xbb = 40 + par*32 + u*16 + rl*4
                    self.mf(acc, f"v[{wb}:{wb+3}]", f"v[{xbb}:{xbb+3}]", c == 0 and u == 0)
                self.mf(176+4*q, f"v[{wb}:{wb+3}]", "v[20:23]", c == 0 and u == 0)

    def phase_w3(self):
        e = self.e; k = self.k; o = self.opt
        SC = 152*1024; XCH = 128*1024
        e("v_mov_b32 v112, v62\nv_mov_b32 v113, v61")
        e(f"s_lshl_b32 {sT0}, {sW}, 5\nv_xor_b32 v108, {sT0}, v14\nv_add_u32 v109, 0x10000, v108\nv_add_u32 v110, 0x10000, v1\nv_add_u32 v111, 0x20000, v108")
        e(f"""s_lshl_b32 {sT0}, {sW}, 7
v_lshlrev_b32 v104, 3, v2
v_add_u32 v104, {SC+1024}, v104
v_add_u32 v105, {sT0}, v104""")
        e(f"""s_lshr_b32 {sT0}, {sW}, 1
s_lshl_b32 {sT0}, {sT0}, 10
s_and_b32 {sT1}, {sW}, 1
s_lshl_b32 {sT1}, {sT1}, 3
s_add_u32 {sT0}, {sT0}, {sT1}
s_add_u32 {sT0}, {sT0}, {XCH}
v_add_u32 v116, {sT0}, v1
s_mul_i32 {sT0}, {sW}, 6144
s_add_u32 {sT0}, {sT0}, {XCH}
v_add_u32 v117, {sT0}, v1
s_lshr_b32 {sT0}, {sF0}, 5
s_add_u32 {sT0}, {sT0}, 43
s_sub_u32 {sT0}, {sT0}, s19""")
        for uu in range(6):
            e(f"s_add_u32 s{8+uu}, {sT0}, {uu}\ns_sub_u32 {sT1}, s{8+uu}, 43\ns_cmp_lt_u32 s{8+uu}, 43\ns_cselect_b32 s{8+uu}, s{8+uu}, {sT1}\ns_lshl_b32 s{8+uu}, s{8+uu}, 10")
        e(f"s_cmp_eq_u32 {sFW}, 8\ns_cselect_b32 s13, s13, {hex(OOB)}")
        self.fetch('hid_st', 'v118')
        self.poll('v112', 'v185', 64)
        self.stamp('x1 ready')
        self.dma_x1(0)
        self.load_stats(2048, 'stx')
        self.dma_x1(1)
        def statside():
            self.reduce_stats('stx', 106, 107)
            e("ds_write_b64 v105, v[106:107]", tag='s3w')
        k.wait_vm('m0'); e("s_barrier")
        if self.opt.get('ostamp'): self.stamp('  x1(0) in')
        self.w3_reads(0)
        G4S = self.G4S
        self.g4at = {0: [4, 6, 7], 1: [4, 5, 6, 6, 7, 7], 2: [4, 7], 3: [5]}[o.get('g4', 0)]
        for c in range(8):
            if c < 7:
                k.wait_vm(f'm{c+1}')
                if c == 1: k.wait_lg('s3w')
                e("s_barrier")
            else: e("s_barrier")
            k.wait_lg(f'mr{c}')
            main = self.cap(self.w3_mfma, c)
            rd = self.cap(self.w3_reads, c+1) if c < 7 else []
            def dmf():
                if c == 0: self.dma_x1(2); self.dma_x1(3)

                if 1 <= c <= 3: self.dma_x1(c+3); self.dma_w3(c+4)
                if c == 4: self.dma_x1(7)
                for n, cc in enumerate(self.g4at):
                    if cc == c: self.dma_w4(n, G4S[n])
                if c == o.get('pwb_at', 7): self.prewarm_issue('pwB', 'v114')
            sd = self.cap(statside) if c == 0 else []
            if c == 2: sd = self.cap(lambda: [e(f"ds_read_b64 v[{240+2*rl}:{241+2*rl}], v104 offset:{rl*128}", tag='s3r') for rl in range(4)])
            dml = self.cap(dmf)
            self.weave(main, (rd, 0.8), (dml, max(0.2, len(dml)/29.0) if o.get('spread') else 0.9), (sd, 1.2))
        self.stamp('w3 gemm')
        e("s_barrier")
        k.wait_lg('s3r')
        def epi():
            for q in range(3):
                for rl in range(4):
                    acc = 128 + (q*4+rl)*4; cs = 176 + 4*q; m = 240 + 2*rl
                    for p in range(2):
                        e(f"v_pk_fma_f32 v[{acc+2*p}:{acc+2*p+1}], v[{cs+2*p}:{cs+2*p+1}], v[{m}:{m+1}], v[{acc+2*p}:{acc+2*p+1}] op_sel_hi:[1,0,1] neg_lo:[1,0,0] neg_hi:[1,0,0]")
                for rl in range(4):
                    acc = 128 + (q*4+rl)*4; m = 240 + 2*rl
                    for p in range(2):
                        e(f"v_pk_mul_f32 v[{acc+2*p}:{acc+2*p+1}], v[{acc+2*p}:{acc+2*p+1}], v[{m}:{m+1}] op_sel:[0,1] op_sel_hi:[1,1]")
                self.gelu_pairs([128 + q*16 + 2*i for i in range(8)], 40)
                for rl in range(4):
                    acc = 128 + (q*4+rl)*4
                    e(f"v_cvt_pk_bf16_f32 v{72+8*q+2*rl}, v{acc}, v{acc+1}\nv_cvt_pk_bf16_f32 v{73+8*q+2*rl}, v{acc+2}, v{acc+3}")
                for rl in range(4):
                    e(f"ds_write_b64 v116, v[{72+8*q+2*rl}:{73+8*q+2*rl}] offset:{(rl*6 + 2*q)*1024}", tag='hidw')
        ep_l = self.cap(epi); dm_l = self.cap(lambda: [self.dma_w4(n, self.G4S[n]) for n in range(len(self.g4at), 8)])
        self.mix(ep_l, dm_l, len(ep_l)/len(dm_l)*o.get('gmix', 50)/100)
        k.wait_lg('hidw')
        e("s_barrier")
        self.stamp('gelu done')
        for uu in range(6): e(f"ds_read_b128 v[{40+4*uu}:{43+4*uu}], v117 offset:{uu*1024}", tag='hidr')
        k.wait_lg('hidr')
        lines = [f"buffer_store_dwordx4 v[{40+4*uu}:{43+4*uu}], v118, {WS}, s{8+uu} offen" for uu in range(6)]
        self.pub(lines, tag='hids')
        self.flag('v113', 96, wait_tag='hids')
        e("s_barrier")
        self.dma_w4(8, self.G4S[8])

    def phase_w4(self):
        e = self.e; k = self.k
        for ct in range(4):
            e(f"v_mov_b32 v{176+ct}, v{14+ct}\nv_add_u32 v{180+ct}, 0x10000, v{14+ct}\nv_add_u32 v{184+ct}, 0x20000, v{14+ct}")
        self.fetch('hid_ld', 'v225'); self.fetch('out_st', 'v224')
        self.poll('v112', 'v189', 96)
        self.stamp('hid ready')
        e("s_barrier")
        NK = 43
        def slot(t): return self.G4S[t >> 2] + (t & 3)
        def ard(t):
            ad = slot(t)*4096
            self.a_reads(t, 176 + 4*(ad >> 16), ad & 0xffff, 'a4')
        def bld(t):
            if t % 4 == 0: e(f"s_mov_b32 {sT5}, {t*1024}")
            b = 64 + 4*(t % 16)
            e(f"buffer_load_dwordx4 v[{b}:{b+3}], v225, {WS}, {sT5} offen offset:{(t%4)*1024} sc1", tag=f'b4{t}')
        D = self.opt.get('bdepth4', 6)
        for t in range(D): bld(t)
        for t in range(3): ard(t)
        for t in range(NK):
            if t == 8: e("s_barrier")
            if t == 31:
                k.wait_vm('w4_10'); e("s_barrier")
            k.wait_lg(f'a4{t}')
            k.wait_vm(f'b4{t}')
            buf = 128 + (t % 3)*16; b = 64 + 4*(t % 16)
            def mm():
                for ct in range(4):
                    self.mf(240+4*ct, f"v[{buf+4*ct}:{buf+4*ct+3}]", f"v[{b}:{b+3}]", ag=True)
            def side():
                if t + 3 < NK: ard(t+3)
            def side2():
                if t + D < NK: bld(t+D)
                if t == 8: self.dma_w4(9, self.G4S[9])
                if t == 11: self.dma_w4(10, self.G4S[10])
            self.weave(self.cap(mm), (self.cap(side2), 1), (self.cap(side), 2))
        self.stamp('w4 gemm')
        for q in range(16): e(f"v_accvgpr_read_b32 v{40+q}, a{240+q}")
        for q in range(8): e(f"v_cvt_pk_bf16_f32 v{56+q}, v{40+2*q}, v{41+2*q}")
        for pp in range(2):
            b = 56 + 4*pp
            e(f"v_permlane16_swap_b32 v{b}, v{b+2}\nv_permlane16_swap_b32 v{b+1}, v{b+3}")
        for pp in range(2):
            b = 56 + 4*pp
            e(f"buffer_store_dwordx4 v[{b}:{b+3}], v224, {srd(SRD_OUT)}, 0 offen offset:{pp*64}")

    def epoch_update(self):
        e = self.e
        e(f"""s_or_b32 {sT0}, s2, {sW}
s_cmp_eq_u32 {sT0}, 0
s_cselect_b32 {sT0}, {EPOCH}, {hex(OOB)}
s_mov_b64 exec, 1
buffer_store_dword v9, off, {WS}, {sT0} sc1
s_mov_b64 exec, -1""")

    def finish(self):
        e = self.e
        if self.debug:
            e(f"""s_lshl_b32 {sT0}, s2, 10
s_lshl_b32 {sT1}, {sW}, 8
s_add_u32 {sT0}, {sT0}, {sT1}
s_add_u32 {sT0}, {sT0}, {DBG}
s_memrealtime s[84:85]
s_waitcnt lgkmcnt(0)
s_sub_u32 s84, s84, s90
v_writelane_b32 v19, s84, 61
v_writelane_b32 v19, s90, 60
v_writelane_b32 v19, {sTO}, 62
v_writelane_b32 v19, {sFAST}, 63
v_lshlrev_b32 v18, 2, v0
buffer_store_dword v19, v18, {WS}, {sT0} offen""")
        if self.opt.get('dbgout'):
            e(f"""s_memtime s[66:67]
s_memrealtime s[62:63]
s_waitcnt lgkmcnt(0)
s_mov_b32 s12, s84
s_mov_b32 s13, s85
s_mov_b32 s14, 256
s_mov_b32 s15, 0x20000
s_sub_u32 s66, s66, s86
s_sub_u32 s62, s62, s90
v_mov_b32 v40, s66
v_mov_b32 v41, s62
s_and_b32 s64, s2, 7
s_lshl_b32 s64, s64, 3
s_lshr_b32 s65, s2, 3
s_or_b32 s65, s65, {sW}
s_cmp_eq_u32 s65, 0
s_cselect_b32 s64, s64, {hex(OOB)}
s_mov_b64 exec, 1
buffer_store_dwordx2 v[40:41], off, s[12:15], s64
s_mov_b64 exec, -1""")
        e("s_waitcnt vmcnt(0)")
        e("L_end:\ns_endpgm")
        for blk in self.ool: e(blk)

    def build(self):
        k = self.k; e = self.e
        self.prologue()
        self.stamp('prologue')
        k.raw('@PAGESTART')
        self.pass_k(); self.ids_check(); self.stamp('pass k')
        self.pass_v(); self.stamp('pass v')
        self.kv_publish(); self.stamp('kv1 pub')
        self.pass_q(); self.stamp('pass q')
        e(f"s_cmp_eq_u32 {sW}, 0\ns_cbranch_scc1 L_q0\ns_barrier")
        k.push()
        self.dma_w64_3w(SRD_WO, 0, 'wo', [0])
        k.pop()
        e("L_q0:")
        qf = self.cap(self.qfeat)
        cut = int(len(qf)*self.opt.get('qcut', 20)/100)
        k.L += qf[:cut]
        k.push(); self.reduce1b(); k.pop()
        if self.opt.get('pf3', 1): self.pf('w3a', 'v237')
        k.L += qf[cut:]
        e(f"s_cmp_eq_u32 {sW}, 0\ns_cbranch_scc1 L_qd")
        k.push()
        e("s_waitcnt vmcnt(0)")
        self.dma_w64_3w(SRD_WO, 0, 'wo', [1, 2, 3, 4, 5])
        k.pop()
        e("L_qd:")
        self.touches(list(range(3, 16)), waves=(1, 2, 3))
        self.setup_addr(1)
        if not self.opt.get('mv', 1):
            self.setup_addr(3); self.mlp_setup(); self.setup_shift(0); self.setup_shift_cons()
        self.stamp('qfeat')
        self.final_kv_and_o(); self.stamp('o pub')
        self.phase_wo(); self.epoch_update(); self.stamp('h pub')
        self.phase_w1(); self.stamp('hh pub')
        self.phase_w2(); self.stamp('x1 pub')
        self.phase_w3(); self.stamp('hid pub')
        self.phase_w4(); self.stamp('end')
        self.finish()
        body = k.finalize()
        lds = 160*1024
        hdr = open('cdna_kernels/' + NAME[:-7] + '.s.ref').read().split('\n')
        top = [l for l in hdr if l.startswith(';') and '@launch' not in l and 'Override' not in l and 'grid=ceil' not in l]
        txt = '\n'.join(top) + '\n'
        txt += f"; @launch grid=(256,1,1) block=(256,1,1) lds={lds}\n"
        txt += f""".amdgcn_target "amdgcn-amd-amdhsa--gfx950"
.text
.globl {NAME}
.p2align 8
.type {NAME},@function
{NAME}:
{body}
.section .rodata,"a"
.p2align 6
.amdhsa_kernel {NAME}
  .amdhsa_next_free_vgpr 512
  .amdhsa_next_free_sgpr 102
  .amdhsa_accum_offset 256
  .amdhsa_group_segment_fixed_size 0
  .amdhsa_kernarg_size 96
  .amdhsa_user_sgpr_count 2
  .amdhsa_user_sgpr_kernarg_segment_ptr 1
  .amdhsa_system_sgpr_workgroup_id_x 1
  .amdhsa_float_denorm_mode_32 3
.end_amdhsa_kernel
"""
        return txt

def generate(debug=True, opt=None):
    g = G(debug=debug, npages=0, opt=opt); g.build(); n = g.k.npages
    n2 = n if not (opt or {}).get('notouch') else 0
    g = G(debug=debug, npages=n2, opt=opt); txt = g.build()
    if g.k.npages != n:
        n = g.k.npages
        g = G(debug=debug, npages=n, opt=opt); txt = g.build()
    return txt, g

if __name__ == '__main__':
    debug = '--nodebug' not in sys.argv
    opt = {}
    for a in sys.argv[1:]:
        if '=' in a and not a.startswith('/'):
            kk, v = a.split('=')
            if kk == 'place': opt['place'] = dict(x.split(':') for x in v.split(','))
            else: opt[kk.lstrip('-')] = int(v)
    txt, g = generate(debug, opt)
    out = sys.argv[1] if len(sys.argv) > 1 and not sys.argv[1].startswith('--') and '=' not in sys.argv[1] else 'k4.s'
    open(out, 'w').write(txt)
    open('stamps.txt', 'w').write('\n'.join(g.stamp_names))
    print('wrote', out, len(txt), 'bytes', txt.count('\n'), 'lines; pages', g.k.npages)
```

```python
import sys, struct, os
from asmgen import Kern, Ins

NAME = 'sequential_preLN__linear_kernel_hedgehog__mixer_s_mlp__prompt_kernel'
def f2u(x): return struct.unpack('<I', struct.pack('<f', x))[0]

EPOCH = 0
IDS   = 0x1000
F_KV2 = 0x2000
F_KV1 = 0x4000
F_HALO= 0x6000
FLG   = 0x8000
DBG   = 0x10000
KV1Z  = 0x60000
KV2K  = 0xA0000
KV2Z  = 0xE0000
ST    = 0x100000
HALO  = 0x180000
OB    = 0x200000
HHB   = 0x200000
HB    = 0x400000
X1B   = 0x400000
HIDB  = 0x600000
HIDS  = 44*1024
WS_BYTES = 0x10000000
OOB   = 0x40000000
INC   = 0x9E3779B0

SRD_X, SRD_WQKV, SRD_WPHI, SRD_WO, SRD_W1, SRD_W2, SRD_W3, SRD_W4, SRD_OUT, SRD_WS = [8+4*i for i in range(10)]
def srd(b): return f's[{b}:{b+3}]'
WS = srd(SRD_WS)
sX, sI, sJ, sR, sW, sA, sB, sT, sFAST, sTO, sXCC, sRHO = [f's{i}' for i in range(48, 60)]
sM0W = 's60'; sCNT = 's61'
sT0, sT1, sT2, sT3, sT4, sT5 = 's62','s63','s64','s65','s66','s67'
sMK1, sMK2, sMK3, sMKD = 's[68:69]','s[70:71]','s[72:73]','s[74:75]'
sS0 = 's[76:77]'; sLL = 's[78:79]'
sEPS = 's82'; sINV = 's83'; sTS = 's[84:85]'; sTS0 = 's86'; sF0 = 's87'; sFW = 's88'; sU0 = 's89'
sD = 's3'
sROT = 's89'
c4K, c8K, c12K, c16K = 's4', 's5', 's6', 's7'
CQ = ['0', c4K, c8K, c12K]
MF = 'v_mfma_f32_16x16x32_bf16'

STASH = ['kv1d','kv1z','kv1f','r_poll','r_kv','r_z','kv2d','kv2z','kv2f','k_poll','k_kv','k_z','o_st','o_fl','o_poll',
         'tile','flag','fpoll','st_st','st_ld','b_o','b_h','hh_st','hh_halo','hh_haloflag','hh_poll','hh_ld0','hh_ld1','hh_ld2','hh_ld3','hid_st','hid_ld','out_st','pwA','pwB','pwC','pf32','pfqkv','pf96','pf96b','selJ0','selJ1','o_st1']
AST = {n: 128+i for i, n in enumerate(STASH)}

class G:
    def __init__(self, debug=True, npages=0, opt=None):
        self.k = Kern(); self.k.paged = True; self.k.align = (opt or {}).get('align', 3)
        self.debug = debug; self.npages = npages
        self.nstamp = 0; self.stamp_names = []
        self.opt = opt or {}
        self.ool = []

    def e(self, t, tag=None, nocount=False): self.k.e(t, tag, nocount)
    def cap(self, fn, *a, **kw):
        prev = self.k.capture(); fn(*a, **kw); return self.k.end_capture(prev)
    def stash(self, n, v): self.e(f"v_accvgpr_write_b32 a{AST[n]}, {v}")
    def fetch(self, n, v): self.e(f"v_accvgpr_read_b32 {v}, a{AST[n]}")

    def weave(self, main, *sides):
        k = self.k
        pos = [0]*len(sides); acc = [0.0]*len(sides)
        for ins in main:
            k.L.append(ins)
            if ins.kind == 'i' and ins.text.startswith('v_mfma'):
                for si, (lst, per) in enumerate(sides):
                    acc[si] += per
                    while acc[si] >= 1 and pos[si] < len(lst):
                        k.L.append(lst[pos[si]]); pos[si] += 1
                        if lst[pos[si]-1].kind == 'i': acc[si] -= 1
        for si, (lst, per) in enumerate(sides): k.L += lst[pos[si]:]

    def mix(self, a, b, ratio):
        k = self.k; pb = 0; cnt = 0.0
        for ins in a:
            k.L.append(ins)
            if ins.kind == 'i':
                cnt += 1
                while cnt >= ratio and pb < len(b):
                    k.L.append(b[pb]); pb += 1
                    if b[pb-1].kind == 'i': cnt -= ratio
        k.L += b[pb:]

    def stamp(self, name):
        if not self.debug: return
        n = self.nstamp; self.nstamp += 1; self.stamp_names.append(name)
        self.e(f"""s_memtime {sTS}
s_waitcnt lgkmcnt(0)
s_sub_u32 s84, s84, {sTS0}
v_writelane_b32 v19, s84, {n}""")

    def poll(self, vaddr, vtmp, off=0):
        k = self.k
        Lp = k.label('Lpoll'); Ld = k.label('Lpd')
        self.e(f"""s_movk_i32 {sCNT}, 1
s_cmp_lg_u32 {sTO}, 0
~s_cbranch_scc1 {Lp}
s_mov_b32 {sCNT}, 0x8000
~{Lp}:
buffer_load_dword {vtmp}, {vaddr}, {WS}, 0 offen offset:{off} sc1""", nocount=True)
        self.e(f"""s_waitcnt vmcnt(0)
v_cmp_ne_u32 vcc, {sT}, {vtmp}
~s_cbranch_vccz {Ld}
{'s_sleep 1' if self.opt.get('psleep') else ''}
s_sub_u32 {sCNT}, {sCNT}, 1
s_cmp_lg_u32 {sCNT}, 0
~s_cbranch_scc1 {Lp}
s_mov_b32 {sTO}, 1
~{Ld}:""")

    def pub(self, lines, force_sc1=False, tag=None):
        k = self.k
        if force_sc1:
            for l in lines: self.e(l + ' sc1', tag=tag)
            return
        Ls = k.label('Lslow'); Ld = k.label('Lpub')
        self.e(f"s_cmp_eq_u32 {sFAST}, 0\n~s_cbranch_scc1 {Ls}")
        for l in lines: self.e(l, tag=tag)
        self.e(f"~s_branch {Ld}\n~{Ls}:")
        for l in lines: self.e(l + ' sc1', nocount=True)
        self.e(f"~{Ld}:")

    def flag(self, vaddr, offs, force_sc1=False, wait_tag=None):
        if wait_tag is None: self.e("s_waitcnt vmcnt(0)")
        else: self.k.wait_vm(wait_tag)
        if not isinstance(offs, list): offs = [offs]
        self.e("s_mov_b64 exec, 1")
        self.pub([f"buffer_store_dword v9, {vaddr}, {WS}, 0 offen offset:{o}" for o in offs], force_sc1)
        self.e("s_mov_b64 exec, -1")

    def allred(self, pairs, op):
        e = self.e
        for A, B in pairs: e(f"v_permlane32_swap_b32 {A}, {B}")
        for A, B in pairs: e(f"{op} {A}, {A}, {B}")
        for A, B in pairs: e(f"v_mov_b32 {B}, {A}")
        for A, B in pairs: e(f"v_permlane16_swap_b32 {A}, {B}")
        for A, B in pairs: e(f"{op} {A}, {A}, {B}")
        for A, B in pairs: e(f"v_mov_b32 {B}, {A}")
        for A, B in pairs: e(f"v_permlane32_swap_b32 {A}, {B}")

    def mf(self, acc, A, B, first=False, ag=False):
        r = 'a' if ag else 'v'
        self.e(f"{MF} {r}[{acc}:{acc+3}], {A}, {B}, " + ("0" if first else f"{r}[{acc}:{acc+3}]"))

    def dmag(self, srdb, soff, m0, loads, tag, sc1=False):
        self.e(f"s_add_u32 m0, {m0[0]}, {m0[1]}")
        if isinstance(soff, tuple):
            self.e(f"s_add_u32 {sD}, {soff[0]}, {soff[1]}"); so = sD
        else: so = soff
        for v, imm in loads:
            if self.opt.get('x_now') and srdb in (SRD_WO, SRD_W1, SRD_W2, SRD_W3, SRD_W4):
                self.e(f"buffer_load_dwordx4 {v}, {srd(srdb)}, {c16K} offen offset:{imm} lds", tag=tag) if self.opt['x_now'] == 2 else self.e("s_nop 0\nbuffer_load_dword a200, off, " + WS + ", 0", tag=tag)
                continue
            self.e(f"buffer_load_dwordx4 {v}, {srd(srdb)}, {so} offen offset:{imm}{' sc1' if sc1 else ''} lds", tag=tag)
    def rot_chunk(self, c):
        self.e(f"s_add_u32 s0, {sROT}, {c}\ns_and_b32 s0, s0, 7\ns_mul_i32 s1, s0, {64*3072}\ns_lshl_b32 s0, s0, 7")
    def dma_wqkv(self, c, part, ldsbase, tag, rot=True):
        if rot: self.rot_chunk(c)
        self.dmag(SRD_WQKV, ('s1', part*1024) if part else 's1', (sM0W, ldsbase), [('v6', 0), ('v7', 1024)], tag)
    def dma_k(self, c):
        self.rot_chunk(c)
        self.dmag(SRD_X, 's0', (sM0W, c*8192), [('v4', 0), ('v5', 1024)], f'k{c}')
        self.dma_wqkv(c, 1, 65536 + c*8192, f'k{c}', rot=False)
    W4V = [('v8', 0), ('v10', 1024), ('v11', 2048), ('v255', 3072)]
    def dma_w64(self, srdb, ldsbase, tag, groups):
        for g in groups:
            self.e(f"s_add_u32 s0, {sI}, {g}\ns_and_b32 s0, s0, 3\ns_lshl_b32 s1, s0, 15\ns_add_u32 s1, s1, s97\ns_lshl_b32 s0, s0, 12\ns_add_u32 s0, s0, s96")
            self.dmag(srdb, 's1', ('s0', ldsbase), self.W4V, tag)

    def dma_w64_3w(self, srdw, base, nm, ns):
        e = self.e
        e(f"s_lshl_b32 {sT1}, {sI}, 2\ns_add_u32 {sT0}, {sT1}, {sW}\ns_sub_u32 {sT0}, {sT0}, 1")
        for kk in ns:
            e(f"s_add_u32 s0, {sT0}, {3*kk}\ns_and_b32 s0, s0, 15\ns_lshl_b32 s1, s0, 15\ns_lshl_b32 s0, s0, 12")
            if kk == 5:
                L = self.k.label('Lw3s')
                e(f"s_cmp_lg_u32 {sW}, 1\n~s_cbranch_scc1 {L}")
            self.dmag(srdw, 's1', ('s0', base), self.W4V, nm)
            if kk == 5: e(f"~{L}:")

    def touches(self, pages, waves=(0, 1, 2, 3)):
        e = self.e; k = self.k
        if not self.npages: return
        pc = k.label('Lpc')
        e(f"s_getpc_b64 s[92:93]\n{pc}:")
        for wi, w in enumerate(waves):
            mine = [p for p in pages[wi::len(waves)] if p < self.npages]
            if not mine: continue
            L = k.label('Ltouch')
            e(f"s_cmp_eq_u32 {sW}, {w}\ns_cbranch_scc0 {L}")
            for p in mine:
                e(f"s_add_u32 s98, s92, Lpg_{p}-{pc}\ns_addc_u32 s99, s93, 0\ns_swappc_b64 s[100:101], s[98:99]")
            e(f"{L}:")

    PTRS = [(SRD_X,0,0x200000),(SRD_WQKV,8,0x180000),(SRD_WS,88,WS_BYTES),(SRD_WPHI,16,0x4000),(SRD_WO,24,0x80000),
            (SRD_W1,40,0x80000),(SRD_W2,48,0x80000),(SRD_W3,56,512*1376*2),(SRD_W4,64,1376*512*2),(SRD_OUT,72,0x200000)]

    def prologue(self):
        e = self.e; k = self.k; o = self.opt
        e(f"s_cmp_ge_u32 s2, 256\ns_cbranch_scc1 L_end")
        e(f"s_load_dwordx4 s[8:11], s[0:1], 0")
        if self.debug or o.get('dbgout'): e(f"s_memtime s[86:87]\ns_memrealtime s[90:91]")
        e(f"""
v_lshrrev_b32 v2, 6, v0
v_and_b32 v0, 63, v0
s_and_b32 {sX}, s2, 7
s_lshr_b32 {sT0}, s2, 3
v_readfirstlane_b32 {sW}, v2
s_and_b32 {sJ}, {sT0}, 7
s_lshr_b32 {sI}, {sT0}, 3
s_lshl_b32 {sR}, {sX}, 2
s_add_u32 {sR}, {sR}, {sI}
v_lshrrev_b32 v3, 4, v0
v_lshrrev_b32 v10, 3, v0
v_and_b32 v11, 7, v0
v_lshlrev_b32 v13, 10, v10
v_xor_b32 v14, v11, v3
v_mul_u32_u24 v15, 3072, v10
v_and_b32 v16, 2, v10
v_xor_b32 v16, v11, v16
s_lshl_b32 {sM0W}, {sW}, 11
s_lshl_b32 {sT0}, {sR}, 16
s_lshl_b32 {sT1}, {sW}, 14
s_add_u32 {sT0}, {sT0}, {sT1}
s_mul_i32 {sT2}, {sW}, {16*3072}
s_lshl_b32 {sT1}, {sJ}, 7
s_add_u32 {sT2}, {sT2}, {sT1}
v_add_u32 v13, {sT0}, v13
v_add_u32 v15, {sT2}, v15
v_lshl_add_u32 v4, v14, 4, v13
v_lshl_add_u32 v6, v16, 4, v15
v_xor_b32 v14, 4, v14
v_xor_b32 v16, 4, v16
v_lshl_add_u32 v5, v14, 4, v13
v_lshl_add_u32 v7, v16, 4, v15
v_add_u32 v5, 0x1c00, v5
v_add_u32 v7, {8*3072-1024}, v7
s_lshl_b32 {sROT}, {sI}, 1
s_add_u32 {sROT}, {sROT}, {sJ}
s_waitcnt lgkmcnt(0)
s_mov_b32 s12, s10
s_mov_b32 s13, s11
s_mov_b32 s{SRD_X+2}, 0x200000
s_mov_b32 s{SRD_X+3}, 0x20000
s_mov_b32 s{SRD_WQKV+2}, 0x180000
s_mov_b32 s{SRD_WQKV+3}, 0x20000
""")
        if o.get('prstamp'): self.stamp('  pr karg')
        for b,off,sz in self.PTRS[2:]: e(f"s_load_dwordx2 s[{b}:{b+1}], s[0:1], {off}")
        if o.get('dbgout'): e("s_load_dwordx2 s[84:85], s[0:1], 80")
        self.D1 = o.get('pk_depth', 4)
        def setups():
            if self.npages:
                e(f"""s_getpc_b64 s[92:93]
~L_cpc:
s_lshr_b32 {sT0}, s2, 3
s_lshl_b32 {sT0}, {sT0}, 2
s_add_u32 {sT0}, {sT0}, {sW}
s_lshl_b32 {sT0}, {sT0}, 9
v_and_b32 v18, 3, v0
v_lshlrev_b32 v18, 7, v18
v_add_u32 v18, {sT0}, v18
s_add_u32 s92, s92, Lpg_0-L_cpc
s_addc_u32 s93, s93, 0
v_min_u32 v18, {self.npages*4096 - 128}, v18
global_load_dword a200, v18, s[92:93]""", tag='cpf')
            e(f"""
v_and_b32 v2, 15, v0
s_lshr_b32 {sA}, {sW}, 1
s_and_b32 {sB}, {sW}, 1
v_lshlrev_b32 v1, 4, v0
s_lshl_b32 {sRHO}, {sR}, 2
s_add_u32 {sRHO}, {sRHO}, {sW}
s_mov_b32 {sTO}, 0
s_getreg_b32 {sXCC}, hwreg(HW_REG_XCC_ID, 0, 4)
s_lshl_b32 s96, {sW}, 14
s_lshl_b32 s97, {sW}, 17
s_movk_i32 {c4K}, 0x1000
s_movk_i32 {c8K}, 0x2000
s_movk_i32 {c12K}, 0x3000
s_movk_i32 {c16K}, 0x4000
v_lshrrev_b32 v13, 1, v2
v_xor_b32 v13, v13, v3
v_and_b32 v13, 7, v13
v_lshlrev_b32 v13, 4, v13
v_lshl_add_u32 v13, v2, 7, v13
s_lshl_b32 {sT0}, {sA}, 12
s_lshl_b32 {sT1}, {sB}, 11
s_add_u32 {sT0}, {sT0}, {sT1}
v_add_u32 v10, {sT0}, v13
v_xor_b32 v11, 64, v10
v_xor_b32 v248, 0x800, v10
v_xor_b32 v249, 0x800, v11
v_lshrrev_b32 v13, 2, v2
v_and_b32 v14, 2, v13
v_and_b32 v15, 1, v3
v_lshl_or_b32 v14, v15, 2, v14
v_bfe_u32 v15, v2, 1, 1
v_xor_b32 v14, v14, v15
v_lshlrev_b32 v14, 4, v14
v_and_b32 v15, 1, v2
v_lshl_add_u32 v14, v15, 3, v14
v_lshl_add_u32 v15, v3, 3, v13
v_lshl_add_u32 v16, v15, 7, v14
v_lshl_add_u32 v15, v3, 2, v13
v_lshl_add_u32 v17, v15, 7, v14
s_lshl_b32 {sT0}, {sB}, 6
v_xor_b32 v12, {sT0}, v16
v_xor_b32 v13, 32, v12
v_add_u32 v34, 0x10000, v12
v_add_u32 v35, 0x10000, v13
v_lshrrev_b32 v30, 2, v2
v_lshl_add_u32 v30, v3, 2, v30
v_lshlrev_b32 v30, 5, v30
v_and_b32 v31, 3, v2
v_lshl_add_u32 v30, v31, 3, v30
v_mov_b32 v14, v17
v_xor_b32 v15, 32, v17
v_xor_b32 v16, 64, v17
v_xor_b32 v17, 0x60, v17
v_mov_b32 v20, 0x3f803f80
v_mov_b32 v21, 0x3f803f80
v_mov_b32 v22, 0x3f803f80
v_mov_b32 v23, 0x3f803f80
""")
        st = self.cap(setups)
        d0 = self.cap(lambda: (self.dma_k(0), self.rot_chunk(1), self.dma_wqkv(1, 1, 65536 + 8192, 'k1w', rot=False)))
        k.L += d0
        k.L += st
        if o.get('prstamp'): self.stamp('  pr ess')
        e("s_waitcnt lgkmcnt(0)")
        for b,off,sz in self.PTRS[2:]: e(f"s_mov_b32 s{b+2}, {hex(sz)}\ns_mov_b32 s{b+3}, 0x20000")
        e(f"s_load_dword {sT}, s[{SRD_WS}:{SRD_WS+1}], {EPOCH}")
        self.setup_b()
        self.setup_addr(0)
        self.prewarm()
        if o.get('prstamp'): self.stamp('  pr setups')
        if o.get('ptouch', 0): self.touches([0, 1, 2])
        self.rot_chunk(1)
        self.dmag(SRD_X, 's0', (sM0W, 8192), [('v4', 0), ('v5', 1024)], 'k1')
        for c in range(2, self.D1): self.dma_k(c)
        e("s_waitcnt lgkmcnt(0)")
        self.setup_ids()

    def setup_ids(self):
        e = self.e
        L = 1.4426950408889634; c0 = -2.0*L*0.7978845608028654
        e(f"""
s_add_u32 {sT}, {sT}, {hex(INC)}
v_mov_b32 v9, {sT}
s_add_u32 {sT0}, {sT}, {sXCC}
v_mov_b32 v18, {sT0}
s_lshl_b32 {sT1}, {sX}, 7
s_lshl_b32 {sT2}, {sI}, 5
s_add_u32 {sT1}, {sT1}, {sT2}
s_lshl_b32 {sT2}, {sJ}, 2
s_add_u32 {sT1}, {sT1}, {sT2}
s_add_u32 {sT1}, {sT1}, {IDS}
s_cmp_lg_u32 {sW}, 0
s_cselect_b32 {sT1}, {hex(OOB)}, {sT1}
v_mov_b32 v36, {sT1}
v_mov_b32 v37, {hex(OOB)}
v_cmp_eq_u32 vcc, 0, v0
v_cndmask_b32 v36, v37, v36, vcc
buffer_store_dword v18, v36, {WS}, 0 offen sc1
s_mov_b32 s78, {hex(f2u(L))}
s_mov_b32 s79, {hex(f2u(-L))}
s_mov_b32 s80, {hex(f2u(c0))}
s_mov_b32 s81, {hex(f2u(c0*0.044715))}
s_mov_b32 {sEPS}, {hex(f2u(1e-5))}
s_mov_b32 {sINV}, {hex(f2u(1.0/512))}
s_mov_b32 s94, 1.0
s_mov_b32 s95, 1.0
""")

    def setup_b(self):
        e = self.e
        e(f"""
v_and_b32 v36, 3, v2
v_cmp_eq_u32 {sMK1}, 1, v36
v_cmp_eq_u32 {sMK2}, 2, v36
v_cmp_eq_u32 {sMK3}, 3, v36
v_lshrrev_b32 v37, 2, v2
v_cmp_eq_u32 {sMKD}, v37, v3
v_cmp_eq_u32 {sS0}, 0, v2
v_and_b32 v36, 1, v2
v_lshlrev_b32 v36, 4, v36
v_mov_b32 v37, 0x3f80
v_lshlrev_b32 v37, v36, v37
v_and_b32 v36, 2, v2
v_cmp_eq_u32 vcc, 0, v36
v_cndmask_b32 v38, 0, v37, vcc
v_cndmask_b32 v39, v37, 0, vcc
v_accvgpr_write_b32 a{AST['selJ0']}, v38
v_accvgpr_write_b32 a{AST['selJ1']}, v39
v_cndmask_b32 v37, 0, v37, {sMKD}
v_mov_b32 v24, 0
v_mov_b32 v25, 0
v_mov_b32 v28, 0
v_mov_b32 v29, 0
v_cndmask_b32 v26, 0, v37, vcc
v_cndmask_b32 v27, v37, 0, vcc
v_lshrrev_b32 v18, 3, v0
v_and_b32 v36, 6, v18
v_and_b32 v8, 7, v0
v_xor_b32 v8, v8, v36
v_lshlrev_b32 v8, 4, v8
v_lshl_add_u32 v8, v18, 10, v8
s_lshl_b32 {sT0}, {sJ}, 7
v_add_u32 v8, {sT0}, v8
""")

    def setup_addr(self, part):
        e0 = self.e
        if part == 0: R = {'v36':'v36','v37':'v37','v38':'v38','v39':'v39'}
        elif part == 2: R = {'v36':'v232','v37':'v233','v38':'v234','v39':'v235'}
        else: R = {'v36':'v248','v37':'v249','v38':'v250','v39':'v251'}
        def e(t):
            for a, b in R.items(): t = t.replace(a, b)
            e0(t)
        def st(n, v): self.stash(n, R[v])
        e(f"v_and_b32 v38, 7, v0\nv_lshlrev_b32 v38, 2, v38\nv_lshlrev_b32 v39, 4, v3")
        if part == 1:
            self._late_part = 1; return self.setup_addr_late(e, st)
        if part == 3: return self.setup_addr_late2(e, st)
        if part == 2:
            e(f"""s_mul_i32 {sT2}, {sX}, {16*HIDS}
s_add_u32 {sT2}, {sT2}, {HIDB}
s_lshl_b32 {sT4}, {sX}, 5""")
            return self.setup_addr_red(e, st)
        e(f"""s_lshl_b32 {sT0}, {sJ}, 2
s_lshl_b32 {sT1}, {sB}, 1
s_add_u32 {sT0}, {sT0}, {sT1}
s_lshl_b32 {sT1}, {sI}, 1
s_add_u32 {sT1}, {sT1}, {sA}
s_mul_i32 {sT2}, {sX}, {16*HIDS}
s_add_u32 {sT2}, {sT2}, {HIDB}
s_lshl_b32 {sT3}, {sT0}, 13
s_add_u32 {sT3}, {sT3}, {sT2}
s_lshl_b32 {sT4}, {sT1}, 10
s_add_u32 {sT3}, {sT3}, {sT4}
v_add_u32 v36, {sT3}, v1""")
        st('kv1d', 'v36')
        e(f"""s_lshl_b32 {sT4}, {sX}, 5
s_add_u32 {sT0}, {sT0}, {sT4}
s_lshl_b32 {sT3}, {sT0}, 10
s_lshl_b32 {sT5}, {sT1}, 7
s_add_u32 {sT3}, {sT3}, {sT5}
s_add_u32 {sT3}, {sT3}, {KV1Z}
v_add_u32 v36, {sT3}, v39""")
        st('kv1z', 'v36')
        e(f"""s_lshl_b32 {sT3}, {sT0}, 5
s_lshl_b32 {sT1}, {sT1}, 2
s_add_u32 {sT3}, {sT3}, {sT1}
s_add_u32 {sT3}, {sT3}, {F_KV1}
v_mov_b32 v36, {sT3}""")
        st('kv1f', 'v36')
        if part == 0: return

    def setup_addr_red(self, e, st):
        e(f"""s_lshl_b32 {sT0}, {sJ}, 2
s_add_u32 {sT0}, {sT0}, {sI}
s_add_u32 {sT1}, {sT4}, {sT0}
s_lshl_b32 {sT3}, {sT1}, 5
s_add_u32 {sT3}, {sT3}, {F_KV1}
v_add_u32 v36, {sT3}, v38""")
        st('r_poll', 'v36')
        e(f"""s_lshl_b32 {sT3}, {sT0}, 13
s_add_u32 {sT3}, {sT3}, {sT2}
v_add_u32 v36, {sT3}, v1""")
        st('r_kv', 'v36')
        e(f"""v_lshrrev_b32 v37, 2, v0
v_lshlrev_b32 v37, 7, v37
v_and_b32 v36, 3, v0
v_lshl_add_u32 v37, v36, 4, v37
v_mov_b32 v36, {hex(OOB)}
v_cmp_gt_u32 vcc, 32, v0
v_cndmask_b32 v37, v36, v37, vcc
s_lshl_b32 {sT3}, {sT1}, 10
s_add_u32 {sT3}, {sT3}, {KV1Z}
v_add_u32 v36, {sT3}, v37""")
        st('r_z', 'v36')
        e(f"""s_lshl_b32 {sT1}, {sT0}, 3
s_add_u32 {sT1}, {sT1}, {sX}
s_lshl_b32 {sT3}, {sT1}, 10
s_add_u32 {sT3}, {sT3}, {KV2K}
v_add_u32 v36, {sT3}, v1""")
        st('kv2d', 'v36')
        e(f"""s_lshl_b32 {sT3}, {sT1}, 7
s_add_u32 {sT3}, {sT3}, {KV2Z}
v_add_u32 v36, {sT3}, v1""")
        st('kv2z', 'v36')
        e(f"""s_lshl_b32 {sT3}, {sT0}, 7
s_lshl_b32 {sT1}, {sX}, 2
s_add_u32 {sT3}, {sT3}, {sT1}
s_add_u32 {sT3}, {sT3}, {F_KV2}
v_mov_b32 v36, {sT3}""")
        st('kv2f', 'v36')
        e(f"""s_lshl_b32 {sT0}, {sJ}, 2
s_add_u32 {sT0}, {sT0}, {sW}
s_lshl_b32 {sT3}, {sT0}, 7
s_add_u32 {sT3}, {sT3}, {F_KV2}
v_add_u32 v36, {sT3}, v38""")
        st('k_poll', 'v36')
        e(f"""s_lshl_b32 {sT3}, {sT0}, 13
s_add_u32 {sT3}, {sT3}, {KV2K}
v_add_u32 v36, {sT3}, v1""")
        st('k_kv', 'v36')
        e(f"""s_lshl_b32 {sT3}, {sT0}, 10
s_add_u32 {sT3}, {sT3}, {KV2Z}
v_add_u32 v36, {sT3}, v37""")
        st('k_z', 'v36')

    def setup_addr_late(self, e, st):
        e(f"""s_lshl_b32 {sT0}, {sR}, 2
s_lshl_b32 {sT1}, {sA}, 1
s_add_u32 {sT0}, {sT0}, {sT1}
s_lshl_b32 {sT1}, {sJ}, 1
s_add_u32 {sT1}, {sT1}, {sB}
s_lshl_b32 {sT3}, {sT0}, 14
s_lshl_b32 {sT4}, {sT1}, 10
s_add_u32 {sT3}, {sT3}, {sT4}
s_add_u32 {sT3}, {sT3}, {OB}
s_lshl_b32 {sT4}, {sB}, 14
s_add_u32 {sT5}, {sT3}, {sT4}
v_add_u32 v36, {sT5}, v1""")
        st('o_st', 'v36')
        e(f"""s_xor_b32 {sT4}, {sT4}, 0x4000
s_add_u32 {sT5}, {sT3}, {sT4}
v_add_u32 v36, {sT5}, v1""")
        st('o_st1', 'v36')
        e(f"""s_lshl_b32 {sT3}, {sT0}, 8
s_add_u32 {sT3}, {sT3}, {FLG+128}
s_lshl_b32 {sT4}, {sT1}, 2
s_add_u32 {sT4}, {sT4}, {sT3}
v_mov_b32 v36, {sT4}""")
        st('o_fl', 'v36')
        e(f"v_lshlrev_b32 v36, 2, v2\nv_add_u32 v36, {sT3}, v36")
        st('o_poll', 'v36')
        if getattr(self, '_late_part', 0) == 1: return
        self.setup_addr_late2(e, st)

    def setup_addr_late2(self, e, st):
        e(f"""s_lshl_b32 {sT0}, {sRHO}, 14
s_lshl_b32 {sT1}, {sJ}, 11
s_add_u32 {sT3}, {sT0}, {sT1}
s_add_u32 {sT3}, {sT3}, {HB}
v_add_u32 v36, {sT3}, v1""")
        st('tile', 'v36')
        e(f"""s_lshl_b32 {sT2}, {sRHO}, 8
s_add_u32 {sT2}, {sT2}, {FLG}
s_lshl_b32 {sT3}, {sJ}, 2
s_add_u32 {sT3}, {sT3}, {sT2}
v_mov_b32 v36, {sT3}""")
        st('flag', 'v36')
        e(f"v_add_u32 v36, {sT2}, v38")
        st('fpoll', 'v36')
        e(f"""s_lshl_b32 {sT3}, {sRHO}, 12
s_add_u32 {sT3}, {sT3}, {ST}
v_lshlrev_b32 v37, 6, v2
v_add_u32 v37, {sT3}, v37
v_add_u32 v36, v39, v37""")
        st('st_ld', 'v36')
        e(f"s_lshl_b32 {sT3}, {sJ}, 3\nv_add_u32 v36, {sT3}, v37")
        st('st_st', 'v36')
        e(f"s_add_u32 {sT3}, {sT0}, {OB}\nv_add_u32 v36, {sT3}, v1")
        st('b_o', 'v36')
        e(f"s_add_u32 {sT3}, {sT0}, {HB}\nv_add_u32 v36, {sT3}, v1")
        st('b_h', 'v36')
        e(f"""s_mul_i32 {sT3}, {sRHO}, {HIDS}
s_add_u32 {sT3}, {sT3}, {HIDB}
v_add_u32 v36, {sT3}, v1""")
        st('hid_ld', 'v36')
        st('hid_st', 'v36')
        e(f"""s_lshl_b32 {sT0}, {sRHO}, 14
s_lshl_b32 {sT1}, {sJ}, 7
s_add_u32 {sT0}, {sT0}, {sT1}
v_and_b32 v36, 1, v3
v_lshlrev_b32 v36, 5, v36
v_lshrrev_b32 v37, 1, v3
v_lshl_add_u32 v36, v37, 4, v36
v_lshl_add_u32 v36, v2, 10, v36
v_add_u32 v36, {sT0}, v36""")
        st('out_st', 'v36')

    def setup_shift(self, part=0):
        e = self.e; st = self.stash
        e(f"""s_lshr_b32 {sT0}, {sJ}, 2
s_add_u32 {sT0}, {sT0}, 1
s_bitcmp1_b32 {sJ}, 1
s_cselect_b32 {sT1}, -1, 1
s_mul_i32 {sT0}, {sT0}, {sT1}
{'s_mov_b32 ' + sT0 + ', 0' if self.opt.get('x_noshift') else ''}
s_lshl_b32 {sT1}, {sRHO}, 4
s_add_u32 {sT1}, {sT1}, {sT0}
v_add_u32 v36, {sT1}, v2
v_lshrrev_b32 v37, 4, v36
v_lshlrev_b32 v37, 14, v37
v_and_b32 v38, 15, v36
v_lshl_add_u32 v38, v3, 4, v38
v_lshlrev_b32 v38, 4, v38
v_add_u32 v37, v37, v38
s_lshl_b32 {sT1}, {sJ}, 11
s_add_u32 {sT2}, {sT1}, {HHB}
v_add_u32 v37, {sT2}, v37
s_lshl_b32 {sT2}, {sX}, 8
v_subrev_u32 v36, {sT2}, v36
v_cmp_lt_u32 vcc, 0xff, v36
v_mov_b32 v36, {hex(OOB)}
v_cndmask_b32 v37, v37, v36, vcc
s_mov_b64 s[68:69], vcc""")
        st('hh_st', 'v37')
        e(f"""s_lshl_b32 {sT2}, {sX}, 1
s_add_u32 {sT3}, {sT2}, 2
s_sub_u32 {sT2}, {sT2}, 1
s_cmp_gt_i32 {sT0}, 0
s_cselect_b32 {sT2}, {sT3}, {sT2}
s_lshl_b32 {sT3}, {sT2}, 14
s_add_u32 {sT3}, {sT3}, {sT1}
s_add_u32 {sT3}, {sT3}, {HALO}
v_add_u32 v36, {sT3}, v38""")
        st('hh_halo', 'v36')
        e(f"""s_lshl_b32 {sT3}, {sT2}, 5
s_lshl_b32 {sT1}, {sJ}, 2
s_add_u32 {sT3}, {sT3}, {sT1}
s_add_u32 {sT3}, {sT3}, {F_HALO}
v_mov_b32 v36, {sT3}
s_cmp_lt_u32 {sT2}, 16
s_cselect_b64 s[68:69], s[68:69], 0""")
        st('hh_haloflag', 'v36')
        if part == 0: return
        self.setup_shift_cons()

    def setup_shift_cons(self):
        e = self.e; st = self.stash
        e(f"""s_lshl_b32 {sT0}, {sRHO}, 8
s_add_u32 {sT0}, {sT0}, {FLG+32}
v_and_b32 v38, 7, v0
v_lshlrev_b32 v38, 2, v38
v_add_u32 v39, {sT0}, v38
s_and_b32 {sT1}, {sRHO}, 15
s_sub_u32 {sT2}, {sT0}, 256
s_cmp_eq_u32 {sT1}, 0
s_cselect_b32 {sT2}, {sT0}, {sT2}
s_add_u32 {sT4}, {sT0}, 256
s_cmp_eq_u32 {sT1}, 15
s_cselect_b32 {sT4}, {sT0}, {sT4}
s_cselect_b32 s93, 1, 0
v_lshrrev_b32 v36, 3, v0
v_bfe_u32 v37, v0, 1, 1
v_lshl_or_b32 v36, v36, 1, v37
v_add_u32 v37, {sT2}, v38
v_cmp_eq_u32 vcc, 2, v36
v_cndmask_b32 v39, v39, v37, vcc
v_add_u32 v37, {sT4}, v38
v_cmp_eq_u32 vcc, 5, v36
v_cndmask_b32 v39, v39, v37, vcc""")
        st('hh_poll', 'v39')
        e(f"""s_lshl_b32 s70, {sX}, 6
s_add_u32 s70, s70, {F_HALO}
s_lshl_b32 {sT2}, s93, 5
s_add_u32 s70, s70, {sT2}
s_cmp_eq_u32 {sT1}, 0
s_cselect_b32 s71, 1, 0
s_cmp_eq_u32 {sT1}, 15
s_cselect_b32 s71, 2, s71
s_cmp_eq_u32 {sRHO}, 0
s_cselect_b32 s71, 0, s71
s_cmp_eq_u32 {sRHO}, 127
s_cselect_b32 s71, 0, s71
s_lshl_b32 {sT2}, {sX}, 15
s_add_u32 {sT2}, {sT2}, {HALO}
s_add_u32 {sT3}, {sT2}, 16384
s_cmp_eq_u32 {sRHO}, 0
s_cselect_b32 {sT2}, {hex(OOB)}, {sT2}
s_cmp_eq_u32 {sRHO}, 127
s_cselect_b32 {sT3}, {hex(OOB)}, {sT3}
s_lshl_b32 {sT0}, {sRHO}, 14
s_add_u32 {sT0}, {sT0}, {OB}
v_add_u32 v36, {sT0}, v1
v_add_u32 v37, {sT2}, v1
v_add_u32 v38, {sT3}, v1
s_cmp_eq_u32 {sT1}, 0
s_cselect_b32 {sT4}, 1, 0
s_mov_b32 {sT5}, s93""")
        for q, (mag, lo) in enumerate(((1, True), (1, False), (2, True), (2, False))):
            d = f'v{248+q}'
            if lo: e(f"s_mul_i32 {sT0}, {sT4}, {mag}\nv_cmp_gt_u32 vcc, {sT0}, v2\nv_cndmask_b32 {d}, v36, v37, vcc")
            else:  e(f"s_mul_i32 {sT0}, {sT5}, {mag}\ns_sub_u32 {sT0}, 15, {sT0}\nv_cmp_lt_u32 vcc, {sT0}, v2\nv_cndmask_b32 {d}, v36, v38, vcc")
            if q: e(f"v_add_u32 {d}, {q*4096}, {d}")
        e(f"s_cmp_eq_u32 s93, 1\ns_cselect_b64 s[72:73], -1, 0")
        for pg, (qh, ql) in enumerate(((0,1),(2,3),(1,0),(3,2))):
            e(f"v_cndmask_b32 v39, v{248+ql}, v{248+qh}, s[72:73]")
            st(f'hh_ld{pg}', 'v39')

    def prewarm(self):
        e = self.e
        e(f"""s_lshl_b32 {sT0}, {sRHO}, 14
s_lshl_b32 {sT1}, {sJ}, 11
s_add_u32 {sT0}, {sT0}, {sT1}
v_and_b32 v36, 15, v0
v_lshlrev_b32 v36, 7, v36                ; (l&15)*128
s_add_u32 {sT1}, {sT0}, {OB}
v_add_u32 v37, {sT1}, v36                ; lanes 0-15: O
s_add_u32 {sT1}, {sT0}, {HB}
v_add_u32 v38, {sT1}, v36                ; lanes 16-31: H
v_cmp_lt_u32 vcc, 15, v0
v_cndmask_b32 v37, v37, v38, vcc""")
        self.fetch('kv1d', 'v38')
        e(f"""v_and_b32 v39, 7, v0
v_lshlrev_b32 v39, 7, v39
v_readfirstlane_b32 {sT1}, v38
v_bfe_u32 v38, v0, 3, 1
v_lshlrev_b32 v38, 13, v38
v_add_u32 v39, v39, v38
v_add_u32 v39, {sT1}, v39
v_cmp_lt_u32 vcc, 31, v0
v_cndmask_b32 v37, v37, v39, vcc""")
        self.fetch('kv1z', 'v38')
        e(f"""v_and_b32 v39, 1, v0
v_readfirstlane_b32 {sT1}, v38
v_lshlrev_b32 v39, 10, v39
v_add_u32 v39, {sT1}, v39                ; z lines (+0,+1024)
s_lshl_b32 {sT2}, {sRHO}, 12
s_lshl_b32 {sT3}, {sJ}, 7
s_add_u32 {sT2}, {sT2}, {sT3}
s_add_u32 {sT2}, {sT2}, {ST}
v_and_b32 v38, 1, v0
v_lshlrev_b32 v38, 11, v38
v_add_u32 v38, {sT2}, v38
v_cmp_lt_u32 vcc, 55, v0
v_cndmask_b32 v39, v39, v38, vcc
v_cmp_lt_u32 vcc, 47, v0
v_cndmask_b32 v37, v37, v39, vcc
v_accvgpr_write_b32 a{AST['pwA']}, v37
s_mul_i32 {sT1}, {sRHO}, {HIDS}
s_mul_i32 {sT2}, {sJ}, 192
s_mul_i32 {sT3}, {sJ}, 160
s_add_u32 {sT3}, {sT3}, 96
s_cmp_lt_u32 {sJ}, 3
s_cselect_b32 {sF0}, {sT2}, {sT3}
s_cselect_b32 {sFW}, 8, 4
s_mul_i32 {sT2}, {sJ}, 6144
s_add_u32 {sT1}, {sT1}, {sT2}
s_add_u32 {sT1}, {sT1}, {HIDB}
v_min_u32 v38, 47, v0
v_lshlrev_b32 v38, 7, v38
v_add_u32 v38, {sT1}, v38
v_accvgpr_write_b32 a{AST['pwB']}, v38
s_lshl_b32 {sT0}, {sRHO}, 14
s_lshl_b32 {sT1}, {sJ}, 7
s_add_u32 {sT0}, {sT0}, {sT1}
v_lshlrev_b32 v36, 3, v36                ; (l&15)*1024
v_add_u32 v36, {sT0}, v36
v_accvgpr_write_b32 a{AST['pwC']}, v36
s_lshr_b32 {sT0}, s2, 3
s_lshl_b32 {sT0}, {sT0}, 2
s_add_u32 {sT0}, {sT0}, {sW}
s_lshl_b32 {sT1}, {sT0}, 5
v_and_b32 v36, 31, v0
v_add_u32 v36, {sT1}, v36
v_lshlrev_b32 v37, 7, v36
v_accvgpr_write_b32 a{AST['pf32']}, v37
v_lshrrev_b32 v37, 3, v36
v_mul_u32_u24 v37, 3072, v37
v_and_b32 v36, 7, v36
v_lshl_add_u32 v37, v36, 7, v37
v_accvgpr_write_b32 a{AST['pfqkv']}, v37
s_mul_i32 {sT1}, {sT0}, 96
v_add_u32 v36, {sT1}, v0
v_lshlrev_b32 v36, 7, v36
v_accvgpr_write_b32 a{AST['pf96']}, v36
v_and_b32 v37, 31, v0
v_add_u32 v37, {sT1}, v37
v_lshlrev_b32 v37, 7, v37
v_add_u32 v37, 0x2000, v37
v_accvgpr_write_b32 a{AST['pf96b']}, v37""")

    def pf(self, what, vt):
        e = self.e
        if not self.opt.get('pf'): return
        if what in ('wv', 'wq'):
            self.fetch('pfqkv', vt)
            e(f"s_movk_i32 {sD}, {2048 if what == 'wv' else 0}\nbuffer_load_dword a200, {vt}, {srd(SRD_WQKV)}, {sD} offen", tag='pf')
        elif what in ('wo', 'w1', 'w2'):
            self.fetch('pf32', vt)
            e(f"buffer_load_dword a200, {vt}, {srd({'wo': SRD_WO, 'w1': SRD_W1, 'w2': SRD_W2}[what])}, 0 offen", tag='pf')
        else:
            sr = srd(SRD_W3 if what[:2] == 'w3' else SRD_W4)
            self.fetch('pf96' if what[2] == 'a' else 'pf96b', vt)
            e(f"buffer_load_dword a200, {vt}, {sr}, 0 offen", tag='pf')

    def prewarm_issue(self, which, vt):
        self.fetch(which, vt)
        self.e(f"buffer_load_dword a200, {vt}, {WS}, 0 offen", tag='pw')

    def xa(self, ee, t): return f"a[{(ee*16+t)*4}:{(ee*16+t)*4+3}]"
    def wreads(self, c, off, tagp, withx=False):
        buf = 128 + (c % 2)*16
        for u in range(2):
            t = 2*c+u
            if withx:
                for ee in range(2):
                    self.e(f"ds_read_b128 {self.xa(ee,t)}, v{(10 if ee == 0 else 248)+u} offset:{c*8192}", tag=f'{tagp}{c}')
            for ep in range(2):
                wb = buf + (u*2+ep)*4
                for h in range(2):
                    self.e(f"ds_read_b64_tr_b16 v[{wb+2*h}:{wb+2*h+1}], v{34+ep} offset:{off + u*4096 + h*512}", tag=f'{tagp}{c}')
    def mfma_k(self, c):
        buf = 128 + (c % 2)*16
        for u in range(2):
            t = 2*c+u
            for ep in range(2):
                wb = buf + (u*2+ep)*4
                for ee in range(2): self.mf(40 + (ep*2+ee)*4, f"v[{wb}:{wb+3}]", self.xa(ee,t), t == 0)
                self.mf(56+ep*4, f"v[{wb}:{wb+3}]", "v[20:23]", t == 0)
            self.mf(64, "v[20:23]", self.xa(0,t), t == 0)
            self.mf(72, self.xa(0,t), self.xa(0,t), t == 0)
    def mfma_vq(self, c, which):
        buf = 128 + (c % 2)*16
        for u in range(2):
            t = 2*c+u
            for ep in range(2):
                wb = buf + (u*2+ep)*4
                for ee in range(2):
                    if which == 'v': self.mf(80 + (ee*2+ep)*4, self.xa(ee,t), f"v[{wb}:{wb+3}]", t == 0)
                    else: self.mf(104 + (ep*2+ee)*4, f"v[{wb}:{wb+3}]", self.xa(ee,t), t == 0)
                if which == 'v': self.mf(96+ep*4, "v[20:23]", f"v[{wb}:{wb+3}]", t == 0)
                else: self.mf(120+ep*4, f"v[{wb}:{wb+3}]", "v[20:23]", t == 0)

    def ids_issue(self):
        self.e(f"""s_lshl_b32 s92, {sX}, 7
s_add_u32 s92, s92, {IDS}
v_and_b32 v250, 31, v0
v_lshlrev_b32 v250, 2, v250
v_add_u32 v250, s92, v250""")
        self.e(f"buffer_load_dword v251, v250, {WS}, 0 offen sc1", tag='ids')
    def ids_check(self):
        e = self.e; k = self.k
        Lp = k.label('Lid'); Ld = k.label('Lidd')
        k.wait_vm('ids')
        e(f"""s_mov_b32 {sCNT}, 0x8000
~{Lp}:
v_subrev_u32 v252, {sT}, v251
v_cmp_lt_u32 vcc, 7, v252
~s_cbranch_vccz {Ld}""")
        k.push()
        e(f"buffer_load_dword v251, v250, {WS}, 0 offen sc1", nocount=True)
        e(f"""s_waitcnt vmcnt(0)
s_sub_u32 {sCNT}, {sCNT}, 1
s_cmp_lg_u32 {sCNT}, 0
~s_cbranch_scc1 {Lp}
s_mov_b32 {sTO}, 1""")
        k.pop()
        e(f"""~{Ld}:
v_cmp_ne_u32 vcc, {sXCC}, v252
s_cmp_eq_u64 vcc, 0
s_cselect_b32 {sFAST}, {0 if self.opt.get('forceslow') else 1}, 0""")

    def pass_k(self):
        e = self.e; k = self.k; D = self.D1
        q = [('k', c) for c in range(D, 8)] + [('v', c) for c in range(6)]
        def issue(item):
            kind, c = item
            if kind == 'k':
                self.dma_k(c)
            else:
                self.dma_wqkv(c, 2, (131072 + c*8192) if c < 4 else (c-4)*8192, f'v{c}')
        sides = {}
        k.wait_vm('k0'); e("s_barrier")
        self.wreads(0, 0, 'kr', withx=True)
        qi = 0
        for c in range(8):
            if c in (0, 2, 4): k.wait_vm(f'k{c+2}'); e("s_barrier")
            if c == 6: k.wait_vm('k7'); e("s_barrier")
            k.wait_lg(f'kr{c}')
            if self.opt.get('pkstamp') and c in (0, 2, 4, 6): self.stamp(f'  pk c{c}')
            main = self.cap(self.mfma_k, c)
            rd = self.cap(self.wreads, c+1, (c+1)*8192, 'kr', True) if c < 7 else []
            items = []
            while qi < len(q) and len(items) < 4:
                kind, cc = q[qi]
                cost = 4 if kind == 'k' else 2
                if sum(4 if a == 'k' else 2 for a, _ in items) + cost > 4: break
                items.append(q[qi]); qi += 1
            dm = self.cap(lambda: [issue(it) for it in items])
            if self.opt.get('x_pk') == 1: dm = [x for x in dm if not x.text.startswith('buffer_load')] + [x for x in dm if x.text.startswith('buffer_load')][:0] + self.cap(lambda: [self.e("s_nop 0\nbuffer_load_dword a200, off, " + WS + ", 0", tag=f'{kk}{cc}') for kk, cc in items])
            if self.opt.get('x_pk') == 2: main = main[:4]
            if c == 3: dm = self.cap(self.ids_issue) + dm
            sd = []
            if c == 7:
                def wp():
                    e(f"s_lshl_b32 {sT0}, {sJ}, 2\ns_lshl_b32 {sT1}, {sB}, 1\ns_add_u32 {sT0}, {sT0}, {sT1}\ns_lshl_b32 {sT0}, {sT0}, 9\ns_lshl_b32 {sT1}, {sW}, 10")
                    self.dmag(SRD_WPHI, sT0, (sT1, 5*8192), [('v1', 0)], 'wphi')
                    e(f"v_add_u32 v30, {sT1}, v30")
                sd = self.cap(wp)
            self.weave(main, (dm, 1), (rd, 0.7), (sd, 1.5))
        assert qi == len(q), (qi, len(q))

    def stats1(self):
        e = self.e
        ST1 = 4*8192
        e(f"""v_cndmask_b32 v160, v72, v73, {sMK1}
v_cndmask_b32 v160, v160, v74, {sMK2}
v_cndmask_b32 v160, v160, v75, {sMK3}
v_cndmask_b32 v160, 0, v160, {sMKD}
v_mul_f32 v36, {sINV}, v64
v_mov_b32 v161, v160""")
        self.allred([('v160','v161')], 'v_add_f32')
        e(f"""v_mul_f32 v160, {sINV}, v160
v_fma_f32 v160, -v36, v36, v160
v_max_f32 v160, 0, v160
v_add_f32 v160, {sEPS}, v160
v_rsq_f32 v38, v160
s_lshl_b32 {sT0}, {sA}, 7
s_lshl_b32 {sT1}, {sB}, 6
s_add_u32 {sT0}, {sT0}, {sT1}
v_lshlrev_b32 v253, 2, v2
v_add_u32 v253, {sT0}, v253
v_lshlrev_b32 v254, 4, v3
v_add_u32 v254, {sT0}, v254
v_xor_b32 v251, 64, v253
v_xor_b32 v252, 64, v254""")
        e(f"ds_write_b32 v253, v36 offset:{ST1}", tag='st1w')
        e(f"ds_write_b32 v253, v38 offset:{ST1 + 256}", tag='st1w')
    def stats1b(self):
        ST1 = 4*8192
        self.e(f"ds_read_b32 v37, v251 offset:{ST1}", tag='st1p')
        self.e(f"ds_read_b32 v39, v251 offset:{ST1 + 256}", tag='st1p')
        self.k.wait_lg('st1p')

    def features(self, tiles, T, safe=False):
        e = self.e
        n = len(tiles)
        def each(fn):
            for i, tl in enumerate(tiles): fn(T + 16*i, *tl)
        def sel(r): return f"v[{r&~1}:{(r&~1)+1}]", r & 1
        def s1(t, acc, cs, m, rs, wp, out):
            if safe:
                for p in range(2): e(f"v_pk_fma_f32 v[{t+2*p}:{t+2*p+1}], v[{cs+2*p}:{cs+2*p+1}], v[{m}:{m+1}], v[{acc+2*p}:{acc+2*p+1}] neg_lo:[1,0,0] neg_hi:[1,0,0]")
                return
            mp, ms = sel(m)
            for p in range(2):
                e(f"v_pk_fma_f32 v[{t+2*p}:{t+2*p+1}], v[{cs+2*p}:{cs+2*p+1}], {mp}, v[{acc+2*p}:{acc+2*p+1}] op_sel:[0,{ms},0] op_sel_hi:[1,{ms},1] neg_lo:[1,0,0] neg_hi:[1,0,0]")
        def s2(t, acc, cs, m, rs, wp, out):
            if safe:
                for p in range(2): e(f"v_pk_mul_f32 v[{t+2*p}:{t+2*p+1}], v[{t+2*p}:{t+2*p+1}], v[{rs}:{rs+1}]")
                return
            rp, rsl = sel(rs)
            for p in range(2):
                e(f"v_pk_mul_f32 v[{t+2*p}:{t+2*p+1}], v[{t+2*p}:{t+2*p+1}], {rp} op_sel:[0,{rsl}] op_sel_hi:[1,{rsl}]")
        each(s1); each(s2)
        each(lambda t,*a: e(f"v_cvt_pk_bf16_f32 v{t+4}, v{t}, v{t+1}\nv_cvt_pk_bf16_f32 v{t+5}, v{t+2}, v{t+3}"))
        each(lambda t,acc,cs,m,rs,wp,out: e(f"v_mfma_f32_16x16x16_bf16 v[{t}:{t+3}], v[{wp}:{wp+1}], v[{t+4}:{t+5}], 0"))
        each(lambda t,*a: e(f"v_max3_f32 v{t+4}, v{t}, v{t+1}, v{t+2}\nv_max3_f32 v{t+5}, -v{t}, -v{t+1}, -v{t+2}"))
        each(lambda t,*a: e(f"v_max_f32 v{t+4}, v{t+4}, v{t+3}\nv_max_f32_e64 v{t+5}, v{t+5}, -v{t+3}"))
        self.allred([(f'v{T+16*i+4}', f'v{T+16*i+5}') for i in range(n)], 'v_max_f32')
        if safe:
            each(lambda t,*a: e(f"v_mul_f32 v{t+4}, s78, v{t+4}\nv_mul_f32 v{t+5}, s78, v{t+5}"))
            for r in range(4):
                each(lambda t,*a: e(f"v_fma_f32 v{t+8+2*r}, v{t+r}, s78, -v{t+4}\nv_fma_f32 v{t+9+2*r}, v{t+r}, s79, -v{t+5}"))
        else:
            each(lambda t,*a: e(f"v_pk_mul_f32 v[{t+4}:{t+5}], v[{t+4}:{t+5}], {sLL} op_sel_hi:[1,0]"))
            for r in range(4):
                each(lambda t,*a: e(f"v_pk_fma_f32 v[{t+8+2*r}:{t+9+2*r}], v[{t+(r&~1)}:{t+(r&~1)+1}], {sLL}, v[{t+4}:{t+5}] op_sel:[{r&1},0,0] op_sel_hi:[{r&1},1,1] neg_lo:[0,0,1] neg_hi:[0,0,1]"))
        for i8 in range(8): each(lambda t,*a: e(f"v_exp_f32 v{t+8+i8}, v{t+8+i8}"))
        each(lambda t,*a: e(f"v_pk_add_f32 v[{t}:{t+1}], v[{t+8}:{t+9}], v[{t+10}:{t+11}]\nv_pk_add_f32 v[{t+2}:{t+3}], v[{t+12}:{t+13}], v[{t+14}:{t+15}]"))
        each(lambda t,*a: e(f"v_pk_add_f32 v[{t}:{t+1}], v[{t}:{t+1}], v[{t+2}:{t+3}]"))
        self.allred([(f'v{T+16*i}', f'v{T+16*i+1}') for i in range(n)], 'v_add_f32')
        each(lambda t,*a: e(f"v_rcp_f32 v{t}, v{t}\nv_rcp_f32 v{t+1}, v{t+1}"))
        for r in range(4):
            each(lambda t,*a: e(f"v_pk_mul_f32 v[{t+8+2*r}:{t+9+2*r}], v[{t+8+2*r}:{t+9+2*r}], v[{t}:{t+1}]"))
        each(lambda t,acc,cs,m,rs,wp,out: e(f"""v_cvt_pk_bf16_f32 v{out}, v{t+8}, v{t+10}
v_cvt_pk_bf16_f32 v{out+1}, v{t+12}, v{t+14}
v_cvt_pk_bf16_f32 v{out+2}, v{t+9}, v{t+11}
v_cvt_pk_bf16_f32 v{out+3}, v{t+13}, v{t+15}"""))

    def ksideA(self):
        e = self.e; k = self.k
        self.stats1()
        k.wait_vm('wphi')
        e(f"ds_read_b64_tr_b16 v[32:33], v30 offset:{5*8192+512}", tag='wpr')
        e(f"ds_read_b64_tr_b16 v[30:31], v30 offset:{5*8192}", tag='wpr')
        k.wait_lg('wpr')
    def ksideB(self):
        e = self.e; k = self.k
        self.stats1b()
        for q_, r_ in enumerate((36, 37, 38, 39)): e(f"v_mov_b32 v{240+2*q_}, v{r_}\nv_mov_b32 v{241+2*q_}, v{r_}")
        tiles = [(40 + (ep*2+ee)*4, 56 + ep*4, 240+2*ee, 244+2*ee, 30+2*ep, 224 + (ep*2+ee)*4) for ep in range(2) for ee in range(2)]
        self.features(tiles, 160, safe=True)
        for i in range(4):
            for sg in range(2):
                o = 224 + 4*i + 2*sg
                e(f"v_mfma_f32_16x16x16_bf16 v[{160+8*i+4*sg}:{163+8*i+4*sg}], v[{o}:{o+1}], v[26:27], 0")
        for ep in range(2):
            for ee in range(2):
                i = ep*2+ee
                for sg in range(2):
                    d = 192 + 8*ep + 4*sg + 2*ee; s = 160 + 8*i + 4*sg
                    e(f"v_cvt_pk_bf16_f32 v{d}, v{s}, v{s+1}\nv_cvt_pk_bf16_f32 v{d+1}, v{s+2}, v{s+3}")
        self.fetch('kv1d', 'v248'); self.fetch('kv1z', 'v249'); self.fetch('kv1f', 'v250')

    def pass_v(self):
        e = self.e; k = self.k
        sideA = self.cap(self.ksideA); side = self.cap(self.ksideB)
        e("v_add_u32 v34, 0x20000, v12\nv_add_u32 v35, 0x20000, v13")
        k.wait_vm('v1'); e("s_barrier")
        self.wreads(0, 0, 'vr')
        chunk = (len(side) + 6)//7
        q0 = self.opt.get('q0', 4)
        for c in range(8):
            if c in (1, 3, 5):
                k.wait_vm(f'v{c+2}'); e("s_barrier")
            k.wait_lg(f'vr{c}')
            if c == 3: e("v_mov_b32 v34, v12\nv_mov_b32 v35, v13")
            main = self.cap(self.mfma_vq, c, 'v')
            if c < 7:
                off = (c+1)*8192 if c+1 < 4 else (c+1-4)*8192
                rd = self.cap(self.wreads, c+1, off, 'vr')
            else: rd = []
            def dm():
                if c == 0:
                    for cc in (6, 7): self.dma_wqkv(cc, 2, (cc-4)*8192, f'v{cc}')
                if c == self.opt.get('pwa_at', 0): self.prewarm_issue('pwA', 'v236')
                if q0 <= c < q0 + 4:
                    for cc in (2*(c-q0), 2*(c-q0)+1): self.dma_wqkv(cc, 0, 65536 + cc*8192, f'q{cc}')
                if c == self.opt.get('pf2_at', 5): self.pf('wo', 'v236'); self.pf('w1', 'v237')
            sd = sideA if c == 0 else side[(c-1)*chunk:c*chunk]
            self.weave(main, (rd, 0.7), (self.cap(dm), 1.0), (sd, len(sd)/12.0))

    def kv_publish(self):
        e = self.e; k = self.k
        ST1 = 4*8192
        for ee in range(2):
            e(f"ds_read_b128 v[{128+8*ee}:{131+8*ee}], {'v254' if ee == 0 else 'v252'} offset:{ST1}", tag='st1r')
            e(f"ds_read_b128 v[{132+8*ee}:{135+8*ee}], {'v254' if ee == 0 else 'v252'} offset:{ST1 + 256}", tag='st1r')
        k.wait_lg('st1r')
        T = 160
        tl = [(ee, ep) for ee in range(2) for ep in range(2)]
        for i, (ee, ep) in enumerate(tl):
            M = 128 + 8*ee; acc = 80 + (ee*2+ep)*4; cs = 96 + ep*4; t = T + 4*i
            for p in range(2):
                e(f"v_pk_fma_f32 v[{t+2*p}:{t+2*p+1}], v[{M+2*p}:{M+2*p+1}], v[{cs}:{cs+1}], v[{acc+2*p}:{acc+2*p+1}] neg_lo:[1,0,0] neg_hi:[1,0,0]")
        for i, (ee, ep) in enumerate(tl):
            RS = 132 + 8*ee; t = T + 4*i
            for p in range(2):
                e(f"v_pk_mul_f32 v[{t+2*p}:{t+2*p+1}], v[{t+2*p}:{t+2*p+1}], v[{RS+2*p}:{RS+2*p+1}]")
        for i, (ee, ep) in enumerate(tl):
            t = T + 4*i; d = 208 + 4*ep + 2*ee
            e(f"v_cvt_pk_bf16_f32 v{d}, v{t}, v{t+1}\nv_cvt_pk_bf16_f32 v{d+1}, v{t+2}, v{t+3}")
        for ep in range(2):
            for sg in range(2):
                pa = 192 + 8*ep + 4*sg
                e(f"{MF} v[{40+8*ep+4*sg}:{43+8*ep+4*sg}], v[{pa}:{pa+3}], v[{208+4*ep}:{211+4*ep}], 0")
        for ep in range(2):
            for sg in range(2):
                pa = 192 + 8*ep + 4*sg
                e(f"{MF} v[{56+8*ep+4*sg}:{59+8*ep+4*sg}], v[{pa}:{pa+3}], v[20:23], 0")
        for ep in range(2):
            for q in range(4): e(f"v_cvt_pk_bf16_f32 v{72+8*ep+q}, v{40+8*ep+2*q}, v{41+8*ep+2*q}")
        self.pub([f"buffer_store_dwordx4 v[72:75], v248, {WS}, 0 offen",
                  f"buffer_store_dwordx4 v[80:83], v248, {WS}, {c8K} offen"], tag='kv1s')
        for ep in range(2):
            for q in range(4): e(f"v_cvt_pk_bf16_f32 v{76+8*ep+q}, v{56+8*ep+2*q}, v{57+8*ep+2*q}")
        e(f"s_mov_b64 exec, {sS0}")
        self.pub([f"buffer_store_dwordx4 v[76:79], v249, {WS}, 0 offen",
                  f"buffer_store_dwordx4 v[84:87], v249, {WS}, 0 offen offset:1024"], tag='kv1s')
        e("s_mov_b64 exec, -1")
        e("v_add_u32 v34, 0x10000, v12\nv_add_u32 v35, 0x10000, v13")
        self.flag('v250', [0, 32], wait_tag='kv1s')

    def pass_q(self):
        e = self.e; k = self.k
        e("v_add_u32 v10, 7168, v8\nv_add_u32 v11, 14336, v8\nv_add_u32 v255, 21504, v8")
        k.wait_vm('q7'); e("s_barrier")
        self.wreads(0, 0, 'qr')
        sa = self.cap(self.setup_addr, 2); na = (len(sa) + 3)//4
        def rx():
            e(f"s_lshl_b32 {sT2}, {sRHO}, 14\ns_lshl_b32 {sT1}, {sJ}, 7\ns_add_u32 {sT2}, {sT2}, {sT1}\nv_lshlrev_b32 v236, 10, v2\nv_lshl_add_u32 v236, v3, 3, v236")
            for ct in range(4):
                e(f"buffer_load_dwordx2 v[{240+2*ct}:{241+2*ct}], v236, {srd(SRD_X)}, {sT2} offen offset:{ct*32}", tag='resx')
        cmid = self.opt.get('red_at', 4)
        for c in range(8):
            if c == cmid:
                k.push(); self.reduce1a(); k.pop()
                self.stamp('reduce1')
            k.wait_lg(f'qr{c}')
            main = self.cap(self.mfma_vq, c, 'q')
            rd = self.cap(self.wreads, c+1, (c+1)*8192, 'qr') if c < 7 else []
            sd = []
            if c < 4: sd = sa[c*na:(c+1)*na]
            if c == 3: sd = sd + self.cap(lambda: (self.fetch('r_poll', 'v248'), self.fetch('r_kv', 'v249'), self.fetch('r_z', 'v250')))
            if c == 7: sd = self.cap(rx)
            self.weave(main, (rd, 0.7), (sd, max(0.5, len(sd)/11)))

    def sum8(self, vkv, vz, tagp, after_loads=None):
        e = self.e; k = self.k
        e(f"buffer_load_dwordx4 v[208:211], {vz}, {WS}, 0 offen sc1", tag=f'{tagp}z')
        for x in range(8):
            e(f"buffer_load_dwordx4 v[{176+4*x}:{179+4*x}], {vkv}, {WS}, {CQ[x>>2]} offen offset:{(x&3)*1024} sc1", tag=f'{tagp}{x}')
        self.fetch('selJ0', 'v214'); self.fetch('selJ1', 'v215')
        for r in (212, 213, 216, 217): e(f"v_mov_b32 v{r}, 0")
        k.wait_vm(f'{tagp}z')
        self.mf(48, "v[214:217]", "v[208:211]", True)
        self.mf(52, "v[212:215]", "v[208:211]", True)
        for x in range(8):
            k.wait_vm(f'{tagp}{x}')
            if x == 7 and after_loads: after_loads()
            self.mf(40, "v[26:29]", f"v[{176+4*x}:{179+4*x}]", x == 0)
            self.mf(44, "v[24:27]", f"v[{176+4*x}:{179+4*x}]", x == 0)
            if x == 1:
                for q in range(8): e(f"v_add_f32_dpp v{48+q}, v{48+q}, v{48+q} row_ror:4 row_mask:0xf bank_mask:0xf")
            if x == 3:
                for q in range(8): e(f"v_add_f32_dpp v{48+q}, v{48+q}, v{48+q} row_ror:8 row_mask:0xf bank_mask:0xf")
            if x == 5:
                for q in range(4): e(f"v_cvt_pk_bf16_f32 v{60+q}, v{48+2*q}, v{49+2*q}")
        for q in range(4): e(f"v_cvt_pk_bf16_f32 v{56+q}, v{40+2*q}, v{41+2*q}")

    def reduce1a(self):
        e = self.e; k = self.k
        Lskip = k.label('Lred')
        e(f"s_cmp_lg_u32 {sW}, 0\ns_cbranch_scc1 {Lskip}")
        self.poll('v248', 'v161')
        self.fetch('kv2d', 'v251'); self.fetch('kv2z', 'v252'); self.fetch('kv2f', 'v253')
        self.sum8('v249', 'v250', 'r', after_loads=lambda: e('s_barrier'))
        e(f"""buffer_store_dwordx4 v[56:59], v251, {WS}, 0 offen sc1
s_mov_b64 exec, 15
buffer_store_dwordx4 v[60:63], v252, {WS}, 0 offen sc1
s_mov_b64 exec, -1""", nocount=True)
        e(f"{Lskip}:")
    def reduce1b(self):
        e = self.e; k = self.k
        Lskip = k.label('Lred')
        e(f"s_cmp_lg_u32 {sW}, 0\ns_cbranch_scc1 {Lskip}")
        self.flag('v253', 0, force_sc1=True)
        e(f"{Lskip}:")

    def qfeat(self):
        for q_, r_ in enumerate((36, 37, 38, 39)): self.e(f"v_mov_b32 v{232+2*q_}, v{r_}\nv_mov_b32 v{233+2*q_}, v{r_}")
        tiles = [(104 + (ep*2+ee)*4, 120 + ep*4, 232+2*ee, 236+2*ee, 30+2*ep, 128 + 8*ep + 4*ee) for ep in range(2) for ee in range(2)]
        self.features(tiles, 160, safe=True)

    def final_kv_and_o(self):
        e = self.e; k = self.k
        SC = 152*1024
        self.fetch('k_poll', 'v248'); self.fetch('k_kv', 'v249'); self.fetch('k_z', 'v250')
        self.fetch('o_st', 'v253'); self.fetch('o_fl', 'v254'); self.fetch('o_st1', 'v152')
        e(f"""s_lshl_b32 {sT0}, {sW}, 10
v_add_u32 v251, {sT0}, v1
v_add_u32 v251, {SC}, v251
s_lshl_b32 {sT0}, {sB}, 11
v_add_u32 v252, {sT0}, v1
v_add_u32 v252, {SC}, v252
s_lshl_b32 {sT0}, {sW}, 6
v_add_u32 v150, {sT0}, v1
v_add_u32 v150, {SC+4096}, v150
s_lshl_b32 {sT0}, {sB}, 7
v_lshlrev_b32 v151, 4, v3
v_add_u32 v151, {sT0}, v151
v_add_u32 v151, {SC+4096}, v151""")
        self.poll('v248', 'v161')
        self.stamp('kv2 ready')
        self.sum8('v249', 'v250', 'kv')
        if self.opt.get('ostamp'): self.stamp('  sum8 done')
        e("ds_write_b128 v251, v[56:59]", tag='kvw')
        e("s_mov_b64 exec, 15")
        e("ds_write_b128 v150, v[60:63]", tag='kvw')
        e("s_mov_b64 exec, -1")
        k.wait_lg('kvw')
        e("s_barrier")
        for ep in range(2):
            e(f"ds_read_b128 v[{40+8*ep}:{43+8*ep}], v252 offset:{ep*1024}", tag='kvr')
            e(f"ds_read_b128 v[{44+8*ep}:{47+8*ep}], v151 offset:{ep*64}", tag='kvr')
        k.wait_lg('kvr')
        if self.opt.get('ostamp'): self.stamp('  kv xchg')
        tl = [(ee, ep) for ee in range(2) for ep in range(2)]
        for i, (ee, ep) in enumerate(tl):
            pq = 128 + 8*ep + 4*ee; n = 176 + i*8
            e(f"{MF} v[{n}:{n+3}], v[{40+8*ep}:{43+8*ep}], v[{pq}:{pq+3}], 0")
            e(f"{MF} v[{n+4}:{n+7}], v[{44+8*ep}:{47+8*ep}], v[{pq}:{pq+3}], 0")
        for i in range(4): n = 176 + i*8; e(f"v_add_f32 v{n+4}, 0x358637bd, v{n+4}")
        for i in range(4): n = 176 + i*8; e(f"v_rcp_f32 v{n+4}, v{n+4}")
        for i in range(4): n = 176 + i*8; e(f"v_mov_b32 v{n+5}, v{n+4}")
        for i in range(4):
            n = 176 + i*8
            e(f"v_pk_mul_f32 v[{n}:{n+1}], v[{n}:{n+1}], v[{n+4}:{n+5}]\nv_pk_mul_f32 v[{n+2}:{n+3}], v[{n+2}:{n+3}], v[{n+4}:{n+5}]")
        for i, (ee, ep) in enumerate(tl):
            n = 176 + i*8
            e(f"v_cvt_pk_bf16_f32 v{72+4*ee+2*ep}, v{n}, v{n+1}\nv_cvt_pk_bf16_f32 v{72+4*ee+2*ep+1}, v{n+2}, v{n+3}")
        self.pub([f"buffer_store_dwordx4 v[72:75], v253, {WS}, 0 offen",
                  f"buffer_store_dwordx4 v[76:79], v152, {WS}, 0 offen"], tag='os')
        if self.opt.get('ostamp'): self.stamp('  o stored')
        self.flag('v254', 0, wait_tag='os')

    PLACE = {'w1_0': 'O', 'w1_r': 'A', 'w2_0': 'B', 'w2_r': 'C', 'w3_2': 'A', 'w3_1': 'F', 'w3_0': 'E', 'w3_3': 'G', 'w3_4': 'G'}
    def slot_dmas(self, slot):
        pl = dict(self.PLACE); pl.update(self.opt.get('place', {}))
        def f():
            for item in ('w1_0', 'w1_r', 'w2_0', 'w2_r', 'w3_2', 'w3_1', 'w3_0', 'w3_3', 'w3_4'):
                if pl[item] != slot: continue
                if item == 'w1_0': self.dma_w64(SRD_W1, 0x10000, 'w1', [0])
                if item == 'w1_r': self.dma_w64(SRD_W1, 0x10000, 'w1', [1, 2, 3])
                if item == 'w2_0': self.dma_w64(SRD_W2, 0, 'w2', [0])
                if item == 'w2_r': self.dma_w64(SRD_W2, 0, 'w2', [1, 2, 3])
                if item.startswith('w3_'): self.dma_w3(int(item[3]))
        return self.cap(f)

    def phase_regs(self):
        e = self.e
        for ct in range(4): e(f"v_add_u32 v{56+ct}, 0x10000, v{14+ct}")
        self.fetch('tile', 'v60'); self.fetch('flag', 'v61'); self.fetch('fpoll', 'v62'); self.fetch('st_st', 'v63'); self.fetch('st_ld', 'v224')

    def unpack16(self, src, dst):
        for q in range(8):
            self.e(f"v_lshlrev_b32 v{dst+2*q}, 16, v{src+q}\nv_and_b32 v{dst+2*q+1}, 0xffff0000, v{src+q}")

    def a_reads(self, t, basereg, imm, tagp):
        buf = 128 + (t % 3)*16
        for ct in range(4):
            for h in range(2):
                self.e(f"ds_read_b64_tr_b16 v[{buf+4*ct+2*h}:{buf+4*ct+2*h+1}], v{basereg+ct} offset:{imm + h*2048}", tag=f'{tagp}{t}')

    def gemm64_pre(self, base, tagp):
        for t in range(3): self.a_reads(t, base, t*4096, tagp)

    def bload(self, t, btag, vaddr=None):
        va = 'v225' if vaddr is None else vaddr(t)
        self.e(f"buffer_load_dwordx4 v[{64+4*t}:{67+4*t}], {va}, {WS}, {CQ[t//4]} offen offset:{(t%4)*1024} sc1", tag=f'{btag}{t}')

    def gemm64_main(self, base, tagp, btag, first_zero=False, mid=None, late=(), pre_step=None, vaddr=None, pre=None):
        k = self.k
        late = list(late)
        D = self.opt.get('bdepth', 6)
        for t in range(D): self.bload(t, btag, vaddr)
        if pre: pre()
        midl = self.cap(mid) if mid else []
        nm = (len(midl) + 7)//8
        for t in range(16):
            k.wait_lg(f'{tagp}{t}')
            k.wait_vm(f'{btag}{t}')
            if self.opt.get('gstamp') and t in (0, 4, 8, 12): self.stamp(f'  {btag} t{t}')
            if pre_step: pre_step(t)
            buf = 128 + (t % 3)*16
            def mm():
                for ct in range(4):
                    self.mf(40+4*ct, f"v[{buf+4*ct}:{buf+4*ct+3}]", f"v[{64+4*t}:{67+4*t}]", first_zero and t == 0)
            rd = self.cap(self.a_reads, t+3, base, (t+3)*4096, tagp) if t + 3 < 16 else []
            bl = self.cap(self.bload, t+D, btag, vaddr) if t + D < 16 else []
            if t + D >= 16 and late:
                bl = late[:6]; late = late[6:]
            sd = midl[(t-4)*nm:(t-3)*nm] if 4 <= t < 12 else []
            self.weave(self.cap(mm), (bl, 1.5), (rd, 2), (sd, 1.5))
        self.k.L += late

    def row_stats(self):
        e = self.e
        e("v_pk_add_f32 v[180:181], v[40:41], v[42:43]\nv_pk_mul_f32 v[182:183], v[40:41], v[40:41]")
        e("v_pk_add_f32 v[184:185], v[44:45], v[46:47]\nv_pk_mul_f32 v[186:187], v[44:45], v[44:45]")
        e("v_pk_fma_f32 v[182:183], v[42:43], v[42:43], v[182:183]\nv_pk_fma_f32 v[186:187], v[46:47], v[46:47], v[186:187]")
        for q in range(4, 8, 2):
            e(f"v_pk_add_f32 v[180:181], v[180:181], v[{40+2*q}:{41+2*q}]\nv_pk_add_f32 v[184:185], v[184:185], v[{42+2*q}:{43+2*q}]")
            e(f"v_pk_fma_f32 v[182:183], v[{40+2*q}:{41+2*q}], v[{40+2*q}:{41+2*q}], v[182:183]\nv_pk_fma_f32 v[186:187], v[{42+2*q}:{43+2*q}], v[{42+2*q}:{43+2*q}], v[186:187]")
        e("v_pk_add_f32 v[180:181], v[180:181], v[184:185]\nv_pk_add_f32 v[182:183], v[182:183], v[186:187]")
        e("v_add_f32 v180, v180, v181\nv_add_f32 v181, v182, v183")
        self.allred([('v180','v181')], 'v_add_f32')

    def pack(self, dst):
        for q in range(8): self.e(f"v_cvt_pk_bf16_f32 v{dst+q}, v{40+2*q}, v{41+2*q}")
    def pub_tile(self, pk, tag):
        self.pub([f"buffer_store_dwordx4 v[{pk}:{pk+3}], v60, {WS}, 0 offen",
                  f"buffer_store_dwordx4 v[{pk+4}:{pk+7}], v60, {WS}, 0 offen offset:1024"], tag=tag)
    def pub_stats(self, off, tag):
        self.e("s_mov_b64 exec, 0xffff")
        self.pub([f"buffer_store_dwordx2 v[180:181], v63, {WS}, 0 offen offset:{off}"], tag=tag)
        self.e("s_mov_b64 exec, -1")
    def load_stats(self, off, tag):
        self.e(f"buffer_load_dwordx4 v[188:191], v224, {WS}, 0 offen offset:{off} sc1", tag=tag)

    def reduce_stats(self, tag, m, rs):
        e = self.e
        self.k.wait_vm(tag)
        e("v_pk_add_f32 v[188:189], v[188:189], v[190:191]")
        self.allred([('v188','v189')], 'v_add_f32')
        e(f"""v_mul_f32 v{m}, {sINV}, v188
v_mul_f32 v189, {sINV}, v189
v_fma_f32 v189, -v{m}, v{m}, v189
v_max_f32 v189, 0, v189
v_add_f32 v190, {sEPS}, v189
v_rsq_f32 v{rs}, v190""")

    def gelu_pairs(self, regs, T):
        e = self.e
        P = list(enumerate(regs))
        for i, y in P: e(f"v_pk_mul_f32 v[{T+2*i}:{T+2*i+1}], v[{y}:{y+1}], v[{y}:{y+1}]")
        for i, y in P: e(f"v_pk_fma_f32 v[{T+2*i}:{T+2*i+1}], v[{T+2*i}:{T+2*i+1}], s[80:81], s[80:81] op_sel:[0,1,0] op_sel_hi:[1,1,0]")
        for i, y in P: e(f"v_pk_mul_f32 v[{T+2*i}:{T+2*i+1}], v[{T+2*i}:{T+2*i+1}], v[{y}:{y+1}]")
        for i, y in P: e(f"v_exp_f32 v{T+2*i}, v{T+2*i}\nv_exp_f32 v{T+2*i+1}, v{T+2*i+1}")
        for i, y in P: e(f"v_pk_add_f32 v[{T+2*i}:{T+2*i+1}], v[{T+2*i}:{T+2*i+1}], s[94:95]")
        for i, y in P: e(f"v_rcp_f32 v{T+2*i}, v{T+2*i}\nv_rcp_f32 v{T+2*i+1}, v{T+2*i+1}")
        for i, y in P: e(f"v_pk_mul_f32 v[{y}:{y+1}], v[{y}:{y+1}], v[{T+2*i}:{T+2*i+1}]")

    def cs1(self):
        e = self.e; k = self.k
        SC1 = 154*1024
        e(f"s_lshl_b32 {sT0}, {sW}, 5\nv_xor_b32 v184, {sT0}, v56")
        for t in range(16):
            for h in range(2): e(f"ds_read_b64_tr_b16 v[{64+4*t+2*h}:{64+4*t+2*h+1}], v184 offset:{t*4096 + h*2048}", tag=f'c1_{t}')
        e(f"""s_lshl_b32 {sT0}, {sW}, 6
v_lshlrev_b32 v185, 4, v3
v_add_u32 v185, {SC1}, v185
v_add_u32 v186, {sT0}, v185""")
        for t in range(16):
            if t % 4 == 0: k.wait_lg(f'c1_{t+3}')
            self.mf(188 if t % 2 == 0 else 180, f"v[{64+4*t}:{67+4*t}]", "v[20:23]", t < 2)
        e("v_pk_add_f32 v[188:189], v[188:189], v[180:181]\nv_pk_add_f32 v[190:191], v[190:191], v[182:183]")
        e(f"s_mov_b64 exec, {sS0}")
        e("ds_write_b128 v186, v[188:191]", tag='c1w')
        e("s_mov_b64 exec, -1")
        k.wait_lg('c1w')
        e("s_barrier")
        for ct in range(4): e(f"ds_read_b128 v[{208+4*ct}:{211+4*ct}], v185 offset:{ct*64}", tag='c1r')

    def phase_wo(self):
        e = self.e; k = self.k; o = self.opt
        if self.opt.get('mv', 0):
            self.setup_addr(3); self.mlp_setup(); self.setup_shift(0)
        self.k.L += self.slot_dmas('O')
        self.phase_regs()
        self.gemm64_pre(14, 'ao')
        k.wait_vm('resx')
        self.unpack16(240, 40)
        self.fetch('o_poll', 'v184'); self.fetch('b_o', 'v225')
        self.poll('v184', 'v185')
        self.stamp('o ready')
        self.gemm64_main(14, 'ao', 'bo', late=self.slot_dmas('A'))
        self.stamp('wo gemm')
        self.pack(232)
        self.pub_tile(232, 'hs')
        self.row_stats()
        self.pub_stats(0, 'hs2')
        self.flag('v61', 0, wait_tag='hs2')

    def phase_w1(self):
        e = self.e; k = self.k; o = self.opt
        e("s_barrier")
        self.k.L += self.slot_dmas('B')
        self.cs1()
        self.fetch('b_h', 'v225'); self.fetch('hh_st', 'v200'); self.fetch('hh_halo', 'v201'); self.fetch('hh_haloflag', 'v202')
        self.poll('v62', 'v185', 0)
        self.stamp('h ready')
        self.load_stats(0, 'sth')
        def mid():
            self.reduce_stats('sth', 230, 231)
            e(f"""v_mul_f32 v190, v231, v231
v_mul_f32 v190, v189, v190
v_add_f32 v190, {sEPS}, v190
v_rsq_f32 v190, v190
v_mov_b32 v226, v230
v_mov_b32 v227, v230
v_mul_f32 v228, v231, v190
v_mul_f32 v229, v231, v190""")
        w2 = self.slot_dmas('C')
        nl = 36
        self.gemm64_main(56, 'a1', 'b1', first_zero=True, mid=mid, late=w2[:nl], pre=lambda: self.gemm64_pre(56, 'a1'))
        self.stamp('w1 gemm')
        k.wait_lg('c1r')
        def epi():
            for q in range(8):
                e(f"v_pk_fma_f32 v[{40+2*q}:{41+2*q}], v[{208+2*q}:{209+2*q}], v[226:227], v[{40+2*q}:{41+2*q}] neg_lo:[1,0,0] neg_hi:[1,0,0]")
            for q in range(8):
                e(f"v_pk_mul_f32 v[{40+2*q}:{41+2*q}], v[{40+2*q}:{41+2*q}], v[228:229]")
            self.gelu_pairs([40+2*q for q in range(8)], 64)
            self.pack(192)
        dD = self.slot_dmas('D')
        if dD: e("s_barrier")
        dl = w2[nl:] + dD; el = self.cap(epi)
        self.mix(el, dl, max(1.0, 0.8*len(el)/max(1, len(dl))))
        self.pub([f"buffer_store_dwordx4 v[192:195], v200, {WS}, 0 offen",
                  f"buffer_store_dwordx4 v[196:199], v200, {WS}, 0 offen offset:1024"], tag='hhs')
        self.flag('v61', 32, wait_tag='hhs')
        Lh = k.label('Lhalo')
        e(f"s_cmp_eq_u64 s[68:69], 0\n~s_cbranch_scc1 {Lh}")
        k.push()
        e(f"""s_mov_b64 exec, s[68:69]
buffer_store_dwordx4 v[192:195], v201, {WS}, 0 offen sc1
buffer_store_dwordx4 v[196:199], v201, {WS}, 0 offen offset:1024 sc1
s_mov_b64 exec, -1""", nocount=True)
        self.flag('v202', 0, force_sc1=True)
        k.pop()
        e(f"~{Lh}:")

    def phase_w2(self):
        e = self.e; k = self.k; o = self.opt
        e("s_barrier")
        if self.opt.get('mv', 0): self.setup_shift_cons()
        self.k.L += self.slot_dmas('E')
        for pg, (qh, ql) in enumerate(((0,1),(2,3),(1,0),(3,2))):
            e(f"s_cmp_eq_u32 s93, 1\ns_cselect_b32 {sT0}, {qh}, {ql}\ns_lshl_b32 {sT0}, {sT0}, 14")
            for ct in range(4): e(f"v_add_u32 v{192+4*pg+ct}, {sT0}, v{14+ct}")
        def ard(t): self.a_reads(t, 192 + 4*(t >> 2), (t & 3)*4096, 'a2')
        for t in range(3): ard(t)
        self.unpack16(232, 40)
        e("v_mul_f32 v228, v230, v231\nv_mul_f32 v229, v230, v231\nv_mov_b32 v226, v231\nv_mov_b32 v227, v231")
        for q in range(8):
            e(f"v_pk_fma_f32 v[{40+2*q}:{41+2*q}], v[{40+2*q}:{41+2*q}], v[226:227], v[228:229] neg_lo:[0,0,1] neg_hi:[0,0,1]")
        self.fetch('hh_poll', 'v185')
        for q in range(4): self.fetch(f'hh_ld{q}', f'v{244+q}')
        self.poll('v185', 'v186')
        self.stamp('hh ready')
        def bl(t): e(f"buffer_load_dwordx4 v[{64+4*t}:{67+4*t}], v{244 + (t >> 2)}, {WS}, 0 offen offset:{(t&3)*1024} sc1", tag=f'b2{t}')
        for t in range(6): bl(t)
        late = self.slot_dmas('F')
        sched = {0: [6], 1: [7], 4: [8, 9], 5: [10, 11], 6: [12, 13], 7: [14, 15]}
        for t in range(16):
            if t == 4:
                Lh = k.label('Lhw'); Lp = k.label('Lhp'); Lq = k.label('Lhq')
                e(f"s_cmp_eq_u32 s71, 0\n~s_cbranch_scc1 {Lh}")
                k.push()
                e(f"""s_mov_b32 {sCNT}, 0x8000
{Lp}:
s_load_dwordx8 s[8:15], s[{SRD_WS}:{SRD_WS+1}], s70 glc
s_waitcnt lgkmcnt(0)
s_cmp_eq_u32 s71, 1
s_cselect_b32 s8, s8, s10
s_cselect_b32 s9, s9, s11
s_cselect_b32 s10, s12, s14
s_cselect_b32 s11, s13, s15
s_xor_b32 s8, s8, {sT}
s_xor_b32 s9, s9, {sT}
s_xor_b32 s10, s10, {sT}
s_xor_b32 s11, s11, {sT}
s_or_b32 s8, s8, s9
s_or_b32 s10, s10, s11
s_or_b32 s8, s8, s10
s_cmp_eq_u32 s8, 0
s_cbranch_scc1 {Lq}
s_sub_u32 {sCNT}, {sCNT}, 1
s_cmp_lg_u32 {sCNT}, 0
s_cbranch_scc1 {Lp}
s_mov_b32 {sTO}, 1
{Lq}:""")
                k.pop()
                e(f"~{Lh}:")
            k.wait_lg(f'a2{t}')
            k.wait_vm(f'b2{t}')
            if self.opt.get('gstamp') and t in (0, 4, 8, 12): self.stamp(f'  b2 t{t}')
            buf = 128 + (t % 3)*16
            def mm():
                for ct in range(4): self.mf(40+4*ct, f"v[{buf+4*ct}:{buf+4*ct+3}]", f"v[{64+4*t}:{67+4*t}]")
            rd = self.cap(ard, t+3) if t + 3 < 16 else []
            blx = self.cap(lambda: [bl(u) for u in sched.get(t, [])])
            if t >= 9 and late:
                blx = late[:6]; late = late[6:]
            self.weave(self.cap(mm), (blx, 1.5), (rd, 2))
        self.k.L += late
        self.stamp('w2 gemm')
        self.pack(192)
        self.pub_tile(192, 'x1s')
        self.row_stats()
        self.pub_stats(2048, 'x1s2')
        if self.opt.get('ostamp'): self.stamp('  x1 stored')
        self.flag('v61', 64, wait_tag='x1s2')
        if self.opt.get('ostamp'): self.stamp('  x1 flagged')
        e("s_barrier")
        def hx():
            self.unpack16(232, 208)
            for q in range(8):
                e(f"v_pk_add_f32 v[{208+2*q}:{209+2*q}], v[{208+2*q}:{209+2*q}], v[{40+2*q}:{41+2*q}]")
            for q in range(16): e(f"v_accvgpr_write_b32 a{240+q}, v{208+q}")
        self.mix(self.cap(hx), self.slot_dmas('G'), 1.3)

    def mlp_setup(self):
        e = self.e
        e(f"""v_lshrrev_b32 v18, 3, v0
v_and_b32 v5, 6, v18
v_and_b32 v6, 7, v0
v_xor_b32 v6, v6, v5
v_mul_u32_u24 v4, 2752, v18
v_lshl_add_u32 v4, v6, 4, v4
s_lshl_b32 {sT0}, {sF0}, 1
s_mul_i32 {sT1}, {sW}, {16*2752}
s_add_u32 {sT0}, {sT0}, {sT1}
v_add_u32 v4, {sT0}, v4
v_add_u32 v7, {8*2752-1024}, v4
v_cmp_gt_u32 vcc, {sFW}, v6
v_mov_b32 v12, {hex(OOB)}
v_cndmask_b32 v5, v12, v4, vcc
v_cndmask_b32 v12, v12, v7, vcc
s_lshl_b32 s98, {sW}, 12
s_lshl_b32 s99, {sRHO}, 14
s_add_u32 s99, s99, {X1B}
s_mul_i32 s19, {sI}, 11
s_add_u32 {sROT}, s19, {sW}""")

    G4S = [4, 8, 12, 16, 20, 24, 28, 0, 32, 4, 8]
    W3A = [65536, 65536+24576, 131072, 16384, 40960, 65536, 65536+24576, 131072]
    X1A = [114688, 122880, 0, 8192, 114688, 122880, 0, 8192]
    def dma_w3(self, c):
        self.e(f"s_lshl_b32 s0, {sI}, 1\ns_add_u32 s0, s0, {c}\ns_and_b32 s0, s0, 7\ns_mul_i32 s1, s0, {64*2752}")
        for q in range(3):
            self.dmag(SRD_W3, ('s1', q*128) if q else 's1', (sM0W, self.W3A[c] + q*8192), [('v4', 0), ('v7', 1024)] if q < 2 else [('v5', 0), ('v12', 1024)], f'm{c}')
    def dma_x1(self, c):
        self.e(f"s_lshl_b32 s0, {sI}, 1\ns_add_u32 s0, s0, {c}\ns_and_b32 s0, s0, 7\ns_lshl_b32 s0, s0, 11\ns_add_u32 s0, s0, s99")
        self.dmag(SRD_WS, 's0', (sM0W, self.X1A[c]), [('v1', 0), ('v1', 1024)], f'm{c}', sc1=True)
    def dma_w4(self, n, slot0):
        self.e(f"s_add_u32 s0, {sROT}, {4*n}\ns_sub_u32 s1, s0, 43\ns_cmp_lt_u32 s0, 43\ns_cselect_b32 s0, s0, s1\ns_lshl_b32 s0, s0, 15")
        if n == 10: self.e(f"s_cmp_eq_u32 {sW}, 3\ns_cselect_b32 s0, {hex(OOB)}, s0")
        self.dmag(SRD_W4, 's0', ('s98', slot0*4096), self.W4V, f'w4_{n}')

    def w3_reads(self, c):
        def base(addr, regs): return regs[addr >> 16], addr & 0xffff
        par = c % 2
        for u in range(2):
            for rl in range(4):
                b = 40 + par*32 + u*16 + rl*4
                r, o = base(self.X1A[c] + (rl*2+u)*1024, ('v1', 'v110'))
                self.e(f"ds_read_b128 v[{b}:{b+3}], {r} offset:{o}", tag=f'mr{c}')
            for q in range(3):
                b = 192 + par*24 + u*12 + q*4
                for h in range(2):
                    r, o = base(self.W3A[c] + q*8192 + u*4096 + h*2048, ('v108', 'v109', 'v111'))
                    self.e(f"ds_read_b64_tr_b16 v[{b+2*h}:{b+2*h+1}], {r} offset:{o}", tag=f'mr{c}')
    def w3_mfma(self, c):
        par = c % 2
        for u in range(2):
            for q in range(3):
                wb = 192 + par*24 + u*12 + q*4
                for rl in range(4):
                    acc = 128 + (q*4+rl)*4; xbb = 40 + par*32 + u*16 + rl*4
                    self.mf(acc, f"v[{wb}:{wb+3}]", f"v[{xbb}:{xbb+3}]", c == 0 and u == 0)
                self.mf(176+4*q, f"v[{wb}:{wb+3}]", "v[20:23]", c == 0 and u == 0)

    def phase_w3(self):
        e = self.e; k = self.k; o = self.opt
        SC = 152*1024; XCH = 128*1024
        e("v_mov_b32 v112, v62\nv_mov_b32 v113, v61")
        e(f"s_lshl_b32 {sT0}, {sW}, 5\nv_xor_b32 v108, {sT0}, v14\nv_add_u32 v109, 0x10000, v108\nv_add_u32 v110, 0x10000, v1\nv_add_u32 v111, 0x20000, v108")
        e(f"""s_lshl_b32 {sT0}, {sW}, 7
v_lshlrev_b32 v104, 4, v2
v_add_u32 v104, {SC+1024}, v104
v_add_u32 v105, {sT0}, v104
v_add_u32 v105, {sT0}, v105""")
        e(f"""s_lshr_b32 {sT0}, {sW}, 1
s_lshl_b32 {sT0}, {sT0}, 10
s_and_b32 {sT1}, {sW}, 1
s_lshl_b32 {sT1}, {sT1}, 3
s_add_u32 {sT0}, {sT0}, {sT1}
s_add_u32 {sT0}, {sT0}, {XCH}
v_add_u32 v116, {sT0}, v1
s_mul_i32 {sT0}, {sW}, 6144
s_add_u32 {sT0}, {sT0}, {XCH}
v_add_u32 v117, {sT0}, v1
s_lshr_b32 {sT0}, {sF0}, 5
s_add_u32 {sT0}, {sT0}, 43
s_sub_u32 {sT0}, {sT0}, s19""")
        for uu in range(6):
            e(f"s_add_u32 s{8+uu}, {sT0}, {uu}\ns_sub_u32 {sT1}, s{8+uu}, 43\ns_cmp_lt_u32 s{8+uu}, 43\ns_cselect_b32 s{8+uu}, s{8+uu}, {sT1}\ns_lshl_b32 s{8+uu}, s{8+uu}, 10")
        e(f"s_cmp_eq_u32 {sFW}, 8\ns_cselect_b32 s13, s13, {hex(OOB)}")
        self.fetch('hid_st', 'v118')
        self.poll('v112', 'v185', 64)
        self.stamp('x1 ready')
        self.dma_x1(0)
        self.load_stats(2048, 'stx')
        self.dma_x1(1)
        def statside():
            self.reduce_stats('stx', 120, 122)
            e("v_mov_b32 v121, v120\nv_mov_b32 v123, v122")
            e("ds_write_b128 v105, v[120:123]", tag='s3w')
        k.wait_vm('m0'); e("s_barrier")
        if self.opt.get('ostamp'): self.stamp('  x1(0) in')
        self.w3_reads(0)
        G4S = self.G4S
        self.g4at = {0: [4, 6, 7], 1: [4, 5, 6, 6, 7, 7], 2: [4, 7], 3: [5]}[o.get('g4', 0)]
        for c in range(8):
            if c < 7:
                k.wait_vm(f'm{c+1}')
                if c == 1: k.wait_lg('s3w')
                e("s_barrier")
            else: e("s_barrier")
            k.wait_lg(f'mr{c}')
            main = self.cap(self.w3_mfma, c)
            rd = self.cap(self.w3_reads, c+1) if c < 7 else []
            def dmf():
                if c == 0: self.dma_x1(2); self.dma_x1(3)

                if 1 <= c <= 3: self.dma_x1(c+3); self.dma_w3(c+4)
                if c == 4: self.dma_x1(7)
                for n, cc in enumerate(self.g4at):
                    if cc == c: self.dma_w4(n, G4S[n])
                if c == o.get('pwb_at', 2): self.prewarm_issue('pwB', 'v114')
            sd = self.cap(statside) if c == 0 else []
            if c == 7: sd = self.cap(lambda: [e(f"ds_read_b128 v[{192+4*rl}:{195+4*rl}], v104 offset:{rl*256}", tag='s3r') for rl in range(4)])
            dml = self.cap(dmf)
            self.weave(main, (rd, 0.8), (dml, max(0.2, len(dml)/29.0) if o.get('spread', 1) else 0.9), (sd, 1.2))
        self.stamp('w3 gemm')
        e("s_barrier")
        k.wait_lg('s3r')
        def epi():
            for q in range(3):
                for rl in range(4):
                    acc = 128 + (q*4+rl)*4; cs = 176 + 4*q; m = 192 + 4*rl
                    for p in range(2):
                        e(f"v_pk_fma_f32 v[{acc+2*p}:{acc+2*p+1}], v[{cs+2*p}:{cs+2*p+1}], v[{m}:{m+1}], v[{acc+2*p}:{acc+2*p+1}] neg_lo:[1,0,0] neg_hi:[1,0,0]")
                for rl in range(4):
                    acc = 128 + (q*4+rl)*4; m = 192 + 4*rl
                    for p in range(2):
                        e(f"v_pk_mul_f32 v[{acc+2*p}:{acc+2*p+1}], v[{acc+2*p}:{acc+2*p+1}], v[{m+2}:{m+3}]")
                self.gelu_pairs([128 + q*16 + 2*i for i in range(8)], 40)
                for rl in range(4):
                    acc = 128 + (q*4+rl)*4
                    e(f"v_cvt_pk_bf16_f32 v{72+8*q+2*rl}, v{acc}, v{acc+1}\nv_cvt_pk_bf16_f32 v{73+8*q+2*rl}, v{acc+2}, v{acc+3}")
                for rl in range(4):
                    e(f"ds_write_b64 v116, v[{72+8*q+2*rl}:{73+8*q+2*rl}] offset:{(rl*6 + 2*q)*1024}", tag='hidw')
        ep_l = self.cap(epi); dm_l = self.cap(lambda: [self.dma_w4(n, self.G4S[n]) for n in range(len(self.g4at), 8)])
        self.mix(ep_l, dm_l, len(ep_l)/len(dm_l)*o.get('gmix', 95)/100)
        k.wait_lg('hidw')
        e("s_barrier")
        self.stamp('gelu done')
        for uu in range(6): e(f"ds_read_b128 v[{40+4*uu}:{43+4*uu}], v117 offset:{uu*1024}", tag='hidr')
        k.wait_lg('hidr')
        lines = [f"buffer_store_dwordx4 v[{40+4*uu}:{43+4*uu}], v118, {WS}, s{8+uu} offen" for uu in range(6)]
        self.pub(lines, tag='hids')
        self.flag('v113', 96, wait_tag='hids')
        e("s_barrier")
        self.dma_w4(8, self.G4S[8])

    def phase_w4(self):
        e = self.e; k = self.k
        for ct in range(4):
            e(f"v_mov_b32 v{176+ct}, v{14+ct}\nv_add_u32 v{180+ct}, 0x10000, v{14+ct}\nv_add_u32 v{184+ct}, 0x20000, v{14+ct}")
        self.fetch('hid_ld', 'v225'); self.fetch('out_st', 'v224')
        self.poll('v112', 'v189', 96)
        self.stamp('hid ready')
        e("s_barrier")
        NK = 43
        def slot(t): return self.G4S[t >> 2] + (t & 3)
        def ard(t):
            ad = slot(t)*4096
            self.a_reads(t, 176 + 4*(ad >> 16), ad & 0xffff, 'a4')
        def bld(t):
            if t % 4 == 0: e(f"s_mov_b32 {sT5}, {t*1024}")
            b = 64 + 4*(t % 16)
            e(f"buffer_load_dwordx4 v[{b}:{b+3}], v225, {WS}, {sT5} offen offset:{(t%4)*1024} sc1", tag=f'b4{t}')
        D = self.opt.get('bdepth4', 6)
        for t in range(D): bld(t)
        for t in range(3): ard(t)
        for t in range(NK):
            if t == 8: e("s_barrier")
            if t == 31:
                k.wait_vm('w4_10'); e("s_barrier")
            k.wait_lg(f'a4{t}')
            k.wait_vm(f'b4{t}')
            buf = 128 + (t % 3)*16; b = 64 + 4*(t % 16)
            def mm():
                for ct in range(4):
                    self.mf(240+4*ct, f"v[{buf+4*ct}:{buf+4*ct+3}]", f"v[{b}:{b+3}]", ag=True)
            def side():
                if t + 3 < NK: ard(t+3)
            def side2():
                if t + D < NK: bld(t+D)
                if t == 8: self.dma_w4(9, self.G4S[9])
                if t == 11: self.dma_w4(10, self.G4S[10])
            self.weave(self.cap(mm), (self.cap(side2), 1), (self.cap(side), 2))
        self.stamp('w4 gemm')
        for q in range(16): e(f"v_accvgpr_read_b32 v{40+q}, a{240+q}")
        for q in range(8): e(f"v_cvt_pk_bf16_f32 v{56+q}, v{40+2*q}, v{41+2*q}")
        for pp in range(2):
            b = 56 + 4*pp
            e(f"v_permlane16_swap_b32 v{b}, v{b+2}\nv_permlane16_swap_b32 v{b+1}, v{b+3}")
        for pp in range(2):
            b = 56 + 4*pp
            e(f"buffer_store_dwordx4 v[{b}:{b+3}], v224, {srd(SRD_OUT)}, 0 offen offset:{pp*64}")

    def epoch_update(self):
        e = self.e
        e(f"""s_or_b32 {sT0}, s2, {sW}
s_cmp_eq_u32 {sT0}, 0
s_cselect_b32 {sT0}, {EPOCH}, {hex(OOB)}
s_mov_b64 exec, 1
buffer_store_dword v9, off, {WS}, {sT0} sc1
s_mov_b64 exec, -1""")

    def finish(self):
        e = self.e
        if self.debug:
            e(f"""s_lshl_b32 {sT0}, s2, 10
s_lshl_b32 {sT1}, {sW}, 8
s_add_u32 {sT0}, {sT0}, {sT1}
s_add_u32 {sT0}, {sT0}, {DBG}
s_memrealtime s[84:85]
s_waitcnt lgkmcnt(0)
s_sub_u32 s84, s84, s90
v_writelane_b32 v19, s84, 61
v_writelane_b32 v19, s90, 60
v_writelane_b32 v19, {sTO}, 62
v_writelane_b32 v19, {sFAST}, 63
v_lshlrev_b32 v18, 2, v0
buffer_store_dword v19, v18, {WS}, {sT0} offen""")
        if self.opt.get('dbgout'):
            e(f"""s_memtime s[66:67]
s_memrealtime s[62:63]
s_waitcnt lgkmcnt(0)
s_mov_b32 s12, s84
s_mov_b32 s13, s85
s_mov_b32 s14, 256
s_mov_b32 s15, 0x20000
s_sub_u32 s66, s66, s86
s_sub_u32 s62, s62, s90
v_mov_b32 v40, s66
v_mov_b32 v41, s62
s_and_b32 s64, s2, 7
s_lshl_b32 s64, s64, 3
s_lshr_b32 s65, s2, 3
s_or_b32 s65, s65, {sW}
s_cmp_eq_u32 s65, 0
s_cselect_b32 s64, s64, {hex(OOB)}
s_mov_b64 exec, 1
buffer_store_dwordx2 v[40:41], off, s[12:15], s64
s_mov_b64 exec, -1""")
        e("s_waitcnt vmcnt(0)")
        e("L_end:\ns_endpgm")
        for blk in self.ool: e(blk)

    def build(self):
        k = self.k; e = self.e
        self.prologue()
        self.stamp('prologue')
        k.raw('@PAGESTART')
        self.pass_k(); self.ids_check(); self.stamp('pass k')
        self.pass_v(); self.stamp('pass v')
        self.kv_publish(); self.stamp('kv1 pub')
        self.pass_q(); self.stamp('pass q')
        e(f"s_cmp_eq_u32 {sW}, 0\ns_cbranch_scc1 L_q0\ns_barrier")
        k.push()
        self.dma_w64_3w(SRD_WO, 0, 'wo', [0])
        k.pop()
        e("L_q0:")
        qf = self.cap(self.qfeat)
        cut = int(len(qf)*self.opt.get('qcut', 20)/100)
        k.L += qf[:cut]
        k.push(); self.reduce1b(); k.pop()
        if self.opt.get('pf3', 1): self.pf('w3a', 'v237')
        k.L += qf[cut:]
        e(f"s_cmp_eq_u32 {sW}, 0\ns_cbranch_scc1 L_qd")
        k.push()
        e("s_waitcnt vmcnt(0)")
        self.dma_w64_3w(SRD_WO, 0, 'wo', [1, 2, 3, 4, 5])
        k.pop()
        e("L_qd:")
        self.touches(list(range(3, 16)), waves=(1, 2, 3))
        self.setup_addr(1)
        if not self.opt.get('mv', 0):
            self.setup_addr(3); self.mlp_setup(); self.setup_shift(0); self.setup_shift_cons()
        self.stamp('qfeat')
        self.final_kv_and_o(); self.stamp('o pub')
        self.phase_wo(); self.epoch_update(); self.stamp('h pub')
        self.phase_w1(); self.stamp('hh pub')
        self.phase_w2(); self.stamp('x1 pub')
        self.phase_w3(); self.stamp('hid pub')
        self.phase_w4(); self.stamp('end')
        self.finish()
        body = k.finalize()
        lds = 160*1024
        hdr = open('cdna_kernels/' + NAME[:-7] + '.s.ref').read().split('\n')
        top = [l for l in hdr if l.startswith(';') and '@launch' not in l and 'Override' not in l and 'grid=ceil' not in l]
        txt = '\n'.join(top) + '\n'
        txt += f"; @launch grid=(256,1,1) block=(256,1,1) lds={lds}\n"
        txt += f""".amdgcn_target "amdgcn-amd-amdhsa--gfx950"
.text
.globl {NAME}
.p2align 8
.type {NAME},@function
{NAME}:
{body}
.section .rodata,"a"
.p2align 6
.amdhsa_kernel {NAME}
  .amdhsa_next_free_vgpr 512
  .amdhsa_next_free_sgpr 102
  .amdhsa_accum_offset 256
  .amdhsa_group_segment_fixed_size 0
  .amdhsa_kernarg_size 96
  .amdhsa_user_sgpr_count 2
  .amdhsa_user_sgpr_kernarg_segment_ptr 1
  .amdhsa_system_sgpr_workgroup_id_x 1
  .amdhsa_float_denorm_mode_32 3
.end_amdhsa_kernel
"""
        return txt

def generate(debug=True, opt=None):
    g = G(debug=debug, npages=0, opt=opt); g.build(); n = g.k.npages
    n2 = n if not (opt or {}).get('notouch') else 0
    g = G(debug=debug, npages=n2, opt=opt); txt = g.build()
    if g.k.npages != n:
        n = g.k.npages
        g = G(debug=debug, npages=n, opt=opt); txt = g.build()
    return txt, g

if __name__ == '__main__':
    debug = '--nodebug' not in sys.argv
    opt = {}
    for a in sys.argv[1:]:
        if '=' in a and not a.startswith('/'):
            kk, v = a.split('=')
            if kk == 'place': opt['place'] = dict(x.split(':') for x in v.split(','))
            else: opt[kk.lstrip('-')] = int(v)
    txt, g = generate(debug, opt)
    out = sys.argv[1] if len(sys.argv) > 1 and not sys.argv[1].startswith('--') and '=' not in sys.argv[1] else 'k4.s'
    open(out, 'w').write(txt)
    open('stamps.txt', 'w').write('\n'.join(g.stamp_names))
    print('wrote', out, len(txt), 'bytes', txt.count('\n'), 'lines; pages', g.k.npages)
```
